```python
import torch

def _softmax(x, axis=-1):
    return torch.softmax(x, dim=axis)
def _gelu(x):
    return torch.nn.functional.gelu(x, approximate="tanh")
def _silu(x):
    return torch.nn.functional.silu(x)
def _sigmoid(x):
    return torch.sigmoid(x)
def _layernorm(x, axis=-1, eps=1e-5):
    m = x.mean(dim=axis, keepdim=True)
    v = x.var(dim=axis, keepdim=True, unbiased=False)
    return (x - m) / torch.sqrt(v + eps)
def _scatter_add(tgt, idx, src, axis=0):
    return tgt.clone().index_add_(axis, idx, src)
def _segment_sum(src, seg, n):
    out = torch.zeros((n,) + src.shape[1:], dtype=src.dtype)
    return out.index_add_(0, seg, src)
def _pad(x, pw):
    flat = tuple(v for pair in reversed(pw) for v in pair)
    return torch.nn.functional.pad(x, flat)

kernel_name = 'parallel_sum__grouped_kv_mqa__dense_activation_silu__prompt'

def setup_inputs():

    _w = (lambda a: (lambda t: t.to(torch.bfloat16) if t.is_floating_point() else t)(torch.as_tensor(a)))
    def _A_setup():
        B, S, D, H = 1, 2048, 640, 32
        Dh = D // H
        return {
            "x": _w((lambda *s: torch.randn(*s, dtype=torch.bfloat16) * 0.05)(B, S, D)),
            "wq": _w((lambda *s: torch.randn(*s, dtype=torch.bfloat16) * 0.05)(D, H * Dh)),
            "wk": _w((lambda *s: torch.randn(*s, dtype=torch.bfloat16) * 0.05)(D, Dh)),
            "wv": _w((lambda *s: torch.randn(*s, dtype=torch.bfloat16) * 0.05)(D, Dh)),
            "wo": _w((lambda *s: torch.randn(*s, dtype=torch.bfloat16) * 0.05)(H * Dh, D)),
        }
    _A_in = _A_setup()

    def _B_setup():
        B, S, D, F = 1, 2048, 640, 1728
        return {
            "x": _w((lambda *s: torch.randn(*s, dtype=torch.bfloat16) * 0.05)(B, S, D)),
            "w1": _w((lambda *s: torch.randn(*s, dtype=torch.bfloat16) * 0.8)(D, F) * (D ** -0.5)),
            "w2": _w((lambda *s: torch.randn(*s, dtype=torch.bfloat16) * 0.8)(F, D) * (F ** -0.5)),
        }
    _B_in = _B_setup()

    return {
        "A_x": _A_in["x"],
        "A_wq": _A_in["wq"],
        "A_wk": _A_in["wk"],
        "A_wv": _A_in["wv"],
        "A_wo": _A_in["wo"],
        "B_x": _B_in["x"],
        "B_w1": _B_in["w1"],
        "B_w2": _B_in["w2"],
    }

def reference(A_x, A_wq, A_wk, A_wv, A_wo, B_x, B_w1, B_w2):
    def _A_ref(x, wq, wk, wv, wo):
        B, S, D = x.shape
        H = 32
        Dh = D // H
        q = (lambda x, *d: x.permute(*d))((x @ wq).reshape(B, S, H, Dh), 0, 2, 1, 3)
        k = x @ wk
        v = x @ wv
        scores = torch.einsum("bhqd,bkd->bhqk", q, k) * (Dh ** -0.5)
        p = _softmax(scores, axis=-1)
        o = torch.einsum("bhqk,bkd->bhqd", p, v)
        return (lambda x, *d: x.permute(*d))(o, 0, 2, 1, 3).reshape(B, S, H * Dh) @ wo

    def _B_ref(x, w1, w2):
        h = torch.einsum("bsd,df->bsf", x, w1)
        h = _silu(h)
        out = torch.einsum("bsf,fd->bsd", h, w2)
        return out

    x = A_x
    xn = _layernorm(x, axis=-1)
    return x + _A_ref(xn, A_wq, A_wk, A_wv, A_wo) + _B_ref(xn, B_w1, B_w2)
```

```python
import re

class Asm:
    def __init__(self):
        self.lines = []
        self._uid = 0
    def __call__(self, s, *a):
        for ln in s.split("\n"):
            ln = ln.strip()
            if ln: self.lines.append(ln)
    def label(self, name): self.lines.append(name + ":")
    def uid(self, p="L"):
        self._uid += 1
        return f"{p}_{self._uid}"
    def c(self, txt): self.lines.append("; " + txt)
    def text(self): return "\n".join(("" if l.endswith(":") or l.startswith(";") or l.startswith(".") else "    ") + l for l in self.lines) + "\n"

def vr(a, n=1): return f"v{a}" if n == 1 else f"v[{a}:{a+n-1}]"
def sr(a, n=1): return f"s{a}" if n == 1 else f"s[{a}:{a+n-1}]"
def ar(a, n=1): return f"a{a}" if n == 1 else f"a[{a}:{a+n-1}]"

_REG = re.compile(r"^(-|\|)?(abs\()?([vsa])(\d+|\[(\d+):(\d+)\])\)?\|?$")
def _regs(tok):
    tok = tok.strip()
    tok = tok.replace("neg(", "").replace("abs(", "").replace(")", "").lstrip("-").strip("|")
    m = re.match(r"^([vsa])(\d+)$", tok)
    if m: return [(m.group(1), int(m.group(2)))]
    m = re.match(r"^([vsa])\[(\d+):(\d+)\]$", tok)
    if m: return [(m.group(1), i) for i in range(int(m.group(2)), int(m.group(3)) + 1)]
    if tok == "vcc": return [("s", 106), ("s", 107)]
    if tok == "exec": return [("x", 0)]
    if tok == "m0": return [("m", 0)]
    return []

TRANS = ("v_exp_f32", "v_log_f32", "v_rcp_f32", "v_rsq_f32", "v_sqrt_f32", "v_sin_f32", "v_cos_f32", "v_exp_f16", "v_rcp_f16", "v_rcp_iflag_f32")
def passes(op):
    if "32x32" in op: return 8
    if "16x16" in op: return 4
    if "4x4" in op: return 2
    return 8

class Ins:
    def __init__(self, text):
        self.text = text
        t = text.split(";")[0].strip()
        parts = t.split(None, 1)
        self.op = parts[0]
        o = self.op
        for suf in ("_e32", "_e64", "_sdwa", "_dpp"):
            if o.endswith(suf): o = o[:-len(suf)]
        self.base = o
        rest = parts[1] if len(parts) > 1 else ""
        toks = [x.strip() for x in rest.split(",")] if rest else []
        ops = []
        for x in toks:
            ops.append(x.split()[0] if x else x)
        self.mods = rest
        self.ops = ops
        self.w = []; self.r = []
        self.kind = "other"
        R = lambda i: _regs(ops[i]) if i < len(ops) else []
        if o.startswith("v_mfma"):
            self.kind = "mfma"; self.w = R(0); self.a = R(1); self.b = R(2); self.cc = R(3); self.r = self.a + self.b + self.cc
            self.p = passes(o)
        elif o.startswith("v_cmp"):
            self.kind = "valu"; self.w = R(0); self.r = sum((R(i) for i in range(1, len(ops))), [])
            if o.startswith("v_cmpx"): self.w += [("x", 0)]
        elif o in ("v_readfirstlane_b32", "v_readlane_b32"):
            self.kind = "valu"; self.w = R(0); self.r = sum((R(i) for i in range(1, len(ops))), [])
        elif o.startswith("v_permlane") and "swap" in o:
            self.kind = "valu"; self.w = R(0) + R(1); self.r = R(0) + R(1)
        elif o.startswith("v_"):
            self.kind = "valu"; self.w = R(0)
            st = 1
            if o in ("v_add_co_u32", "v_addc_co_u32", "v_sub_co_u32", "v_subb_co_u32", "v_div_scale_f32", "v_mad_u64_u32"):
                self.w += R(1); st = 2
            self.r = sum((R(i) for i in range(st, len(ops))), [])
            if o in ("v_fmac_f32", "v_fmamk_f32x", "v_dot2c_f32_bf16", "v_pk_fmac_f16", "v_writelane_b32"): self.r += R(0)
            if "UNUSED_PRESERVE" in rest or (o in ("v_exp_f16",) and "op_sel" in rest): self.r += R(0)
            if o == "v_cndmask_b32" and len(ops) == 3: self.r += _regs("vcc")
            if o == "v_cndmask_b32" and len(ops) == 4 and self.op.endswith("_e32"): pass
        elif o.startswith("ds_"):
            self.kind = "ds"
            if o.startswith(("ds_read", "ds_bpermute", "ds_permute", "ds_swizzle")) or "_rtn" in o:
                self.w = R(0); self.r = sum((R(i) for i in range(1, len(ops))), [])
            else:
                self.r = sum((R(i) for i in range(0, len(ops))), [])
        elif o.startswith(("buffer_", "global_", "flat_")):
            self.kind = "vmem"
            lds = re.search(r"\blds\b", rest) is not None or "load_lds" in o
            self.lds = lds
            if "load" in o and not lds:
                self.w = R(0); self.r = sum((R(i) for i in range(1, len(ops))), [])
            elif "atomic" in o and "sc0" in rest and o.startswith("buffer_"):
                self.w = R(0); self.r = sum((R(i) for i in range(0, len(ops))), [])
            elif "atomic" in o and "sc0" in rest and o.startswith("global_"):
                self.w = R(0); self.r = sum((R(i) for i in range(1, len(ops))), [])
            else:
                self.r = sum((R(i) for i in range(0, len(ops))), [])
            if lds: self.r += [("m", 0)]
            self.store = "store" in o
            self.wide = ("x3" in o or "x4" in o)
            self.data = []
            if self.store:
                self.data = R(0) if o.startswith("buffer_") else R(1)
        elif o.startswith("s_"):
            self.kind = "salu"
            if o in ("s_waitcnt", "s_barrier", "s_nop", "s_endpgm", "s_branch", "s_setprio", "s_sleep") or o.startswith("s_cbranch"):
                pass
            elif o.startswith("s_cmp") or o.startswith("s_bitcmp"):
                self.r = sum((R(i) for i in range(len(ops))), [])
            else:
                self.w = R(0); self.r = sum((R(i) for i in range(1, len(ops))), [])
                if "saveexec" in o: self.w += [("x", 0)]
        self.states = 1
        if o == "s_nop": self.states = int(ops[0], 0) + 1
        self.trans = o in TRANS
        self.dpp = ("row_" in rest or "quad_perm" in rest or "wave_" in rest or "row_bcast" in rest)

def check_hazards(lines, name="", window=24):
    ins = []
    for l in lines:
        l = l.strip()
        if not l or l.startswith(";") or l.startswith(".") or l.endswith(":"): continue
        ins.append(Ins(l))
    errs = []
    def vset(x): return set(r for r in x if r[0] in "va")
    def sset(x): return set(r for r in x if r[0] == "s")
    for i, c in enumerate(ins):
        dist = 0
        for j in range(i - 1, max(-1, i - window), -1):
            p = ins[j]
            need = 0; why = ""
            pw, cr, cw = set(p.w), set(c.r), set(c.w)
            if p.kind == "mfma":
                D = vset(p.w)
                if c.kind == "mfma":
                    if D & (vset(c.a) | vset(c.b)): need, why = {2: 5, 4: 8, 8: 12}[p.p], "mfma D->mfma A/B"
                    elif D & vset(c.cc):
                        same = (p.w == c.cc and p.p == c.p)
                        if not same: need, why = {2: 4, 4: 6, 8: 10}[p.p], "mfma D->mfma C overlap"
                        elif p.p == 2: need, why = 2, "mfma 2pass chain"
                    elif D & vset(c.w) and not (p.w == c.w):
                        need, why = {2: 5, 4: 8, 8: 12}[p.p], "mfma D WAW mfma partial"
                elif c.kind in ("valu", "vmem", "ds"):
                    if D & (vset(c.r) | vset(c.w)): need, why = {2: 5, 4: 8, 8: 12}[p.p], "mfma D->valu/mem"
                if c.kind == "valu" and vset(p.cc) & vset(c.w):
                    n2 = {2: 1, 4: 3, 8: 7}[p.p]
                    if n2 > need: need, why = n2, "mfma C WAR valu"
            if p.kind == "valu":
                if c.kind == "mfma" and vset(p.w) & vset(c.r): need, why = max(need, 2), "valu->mfma"
                if c.kind == "mfma" and ("x", 0) in pw: need, why = max(need, 4), "valu exec->mfma"
                if c.kind == "valu":
                    if p.trans and not c.trans and vset(p.w) & (vset(c.r)): need, why = max(need, 1), "trans->valu"
                    if p.trans and c.trans and vset(p.w) & vset(c.r): need, why = max(need, 1), "trans->trans(conservative)"
                    if c.base.startswith("v_permlane") and vset(p.w) & vset(c.r): need, why = max(need, 2), "valu->permlane"
                    if c.dpp and vset(p.w) & vset(c.r): need, why = max(need, 2), "valu->dpp"
                    if c.dpp and ("x", 0) in pw: need, why = max(need, 5), "valu exec->dpp"
                    if c.base in ("v_readfirstlane_b32", "v_readlane_b32") and vset(p.w) & vset(c.r): need, why = max(need, 1), "valu->readlane"
                    if sset(p.w) & sset(c.r):
                        n = 4 if c.base in ("v_readlane_b32", "v_writelane_b32") else 2
                        need, why = max(need, n), "valu sgpr->valu"
                    if "sdwa" in p.op and vset(p.w) & vset(c.r): need, why = max(need, 1), "sdwa->valu"
                if c.kind == "vmem" and sset(p.w) & sset(c.r): need, why = max(need, 5), "valu sgpr->vmem"
            if p.kind == "vmem" and getattr(p, "store", False) and p.wide:
                if c.kind == "valu" and vset(p.data) & vset(c.w): need, why = max(need, 2), "store data WAR"
                elif c.kind in ("ds", "vmem", "mfma") and vset(p.data) & vset(c.w): need, why = max(need, 1), "store data WAR"
            if p.kind == "salu" and ("m", 0) in pw and c.kind == "vmem" and getattr(c, "lds", False): need, why = max(need, 1), "m0->ldsdma"
            if need > dist:
                errs.append(f"[{name}] {why}: need {need} have {dist}\n    P: {p.text}\n    C: {c.text}")
            dist += p.states
            if dist >= 20: break
    return errs
```

```python
from asmlib import *
from layout import *

def srd(a, d, ptr, size, off=0):
    if off:
        a(f"s_add_u32 s{d}, s{ptr}, {off}")
        a(f"s_addc_u32 s{d+1}, s{ptr+1}, 0")
    else:
        a(f"s_mov_b32 s{d}, s{ptr}")
        a(f"s_mov_b32 s{d+1}, s{ptr+1}")
    a(f"s_mov_b32 s{d+2}, {size}")
    a(f"s_mov_b32 s{d+3}, 0x20000")

def gen_k0(name="prep_kernel"):
    a = Asm()
    NLN = 128; NJOB = 720
    a(f".globl {name}\n.p2align 8\n.type {name},@function")
    a.label(name)
    a(f"s_cmp_ge_u32 s2, {NLN + NJOB//4}")
    a(f"s_cbranch_scc1 {name}_end")
    a("s_load_dwordx8 s[4:11], s[0:1], 0")
    a("s_load_dwordx2 s[12:13], s[0:1], 32")
    a("s_load_dwordx4 s[16:19], s[0:1], 48")
    a("s_load_dwordx2 s[20:21], s[0:1], 80")
    a("v_lshrrev_b32 v1, 6, v0")
    a("v_and_b32 v0, 63, v0")
    a("v_readfirstlane_b32 s3, v1")
    a("v_lshlrev_b32 v2, 4, v0")
    a(f"s_cmp_ge_u32 s2, {NLN}")
    a(f"s_cbranch_scc1 {name}_relayout")
    a("s_waitcnt lgkmcnt(0)")
    srd(a, 24, 4, X_SZ)
    srd(a, 28, 8, 25600)
    srd(a, 32, 10, 25600)
    srd(a, 36, 20, KMX + KMX_SZ)
    a("v_lshrrev_b32 v3, 4, v0")
    a("v_and_b32 v4, 15, v0")
    a("s_lshl_b32 s22, s2, 4")
    a("s_lshl_b32 s23, s3, 2")
    a("s_add_u32 s22, s22, s23")
    a("v_add_u32 v5, s22, v3")
    a("v_mul_u32_u24 v5, 1280, v5")
    a("v_lshl_add_u32 v5, v4, 4, v5")
    for j in range(5):
        a(f"buffer_load_dwordx4 v[{16+4*j}:{19+4*j}], v5, s[24:27], 0 offen offset:{256*j}")
    a("s_lshl_b32 s40, s3, 10")
    for j in range(6):
        a(f"s_add_u32 s41, s40, {j*4096}")
        a("s_mov_b32 m0, s41")
        a(f"s_add_u32 s42, s41, 25600")
        a("buffer_load_dwordx4 v2, s[28:31], s41 offen lds")
        a("s_mov_b32 m0, s42")
        a("s_nop 0")
        a("buffer_load_dwordx4 v2, s[32:35], s41 offen lds")
    l = a.uid("k0_nolast")
    a("s_cmp_lg_u32 s3, 0")
    a(f"s_cbranch_scc1 {l}")
    a("s_movk_i32 s41, 24576")
    a("s_mov_b32 m0, s41")
    a("s_mov_b32 s42, 50176")
    a("buffer_load_dwordx4 v2, s[28:31], s41 offen lds")
    a("s_mov_b32 m0, s42")
    a("s_nop 0")
    a("buffer_load_dwordx4 v2, s[32:35], s41 offen lds")
    a.label(l)
    a("v_mov_b32 v6, 0x3f803f80")
    a("v_mov_b32 v7, 0")
    a("v_mov_b32 v8, 0")
    a("s_waitcnt vmcnt(12)")
    for i in range(20):
        a(f"v_dot2_f32_bf16 v7, v{16+i}, v6, v7")
        a(f"v_dot2_f32_bf16 v8, v{16+i}, v{16+i}, v8")
    for sh in (8, 4, 2, 1):
        a("s_nop 1")
        a(f"v_add_f32_dpp v7, v7, v7 row_ror:{sh} row_mask:0xf bank_mask:0xf")
        a(f"v_add_f32_dpp v8, v8, v8 row_ror:{sh} row_mask:0xf bank_mask:0xf")
    a("s_nop 0")
    a(f"v_mul_f32 v7, {f2u(1/640.):#x}, v7")
    a(f"v_mul_f32 v8, {f2u(1/640.):#x}, v8")
    a("v_fma_f32 v8, -v7, v7, v8")
    a("v_max_f32 v8, 0, v8")
    a(f"v_add_f32 v8, {f2u(1e-5):#x}, v8")
    a("v_rsq_f32 v8, v8")
    a("s_nop 0")
    a("v_mul_f32 v9, v7, v8")
    for i in range(20):
        a(f"v_lshlrev_b32 v10, 16, v{16+i}")
        a(f"v_and_b32 v11, 0xffff0000, v{16+i}")
        a(f"v_fma_f32 v10, v10, v8, -v9")
        a(f"v_fma_f32 v11, v11, v8, -v9")
        a(f"v_cvt_pk_bf16_f32 v{16+i}, v10, v11")
    a("v_lshrrev_b32 v10, 2, v4")
    a("v_lshlrev_b32 v10, 10, v10")
    a("v_and_b32 v11, 3, v4")
    a("v_lshl_add_u32 v10, v11, 8, v10")
    a("v_add_u32 v11, s23, v3")
    a("v_lshl_add_u32 v10, v11, 4, v10")
    a("v_add_u32 v10, 51200, v10")
    for j in range(5):
        a(f"ds_write_b128 v10, v[{16+4*j}:{19+4*j}] offset:{j*4096}")
    a("s_waitcnt vmcnt(0) lgkmcnt(0)")
    a("s_barrier")
    XF = 32; WF = 112
    a("v_add_u32 v12, 51200, v2")
    a("v_lshrrev_b32 v13, 4, v0")
    a("v_and_b32 v14, 15, v0")
    a("v_lshrrev_b32 v15, 2, v14")
    a("v_lshl_add_u32 v15, v13, 3, v15")
    a("v_mul_u32_u24 v15, 40, v15")
    a("v_and_b32 v16, 3, v14")
    a("v_lshl_add_u32 v15, v16, 3, v15")
    a("s_and_b32 s43, s3, 1")
    a("s_lshl_b32 s43, s43, 5")
    a("s_lshr_b32 s44, s3, 1")
    a("s_mul_i32 s44, s44, 25600")
    a("s_add_u32 s43, s43, s44")
    a("v_add_u32 v15, s43, v15")
    for ks in range(20):
        a(f"ds_read_b128 v[{XF+4*ks}:{XF+4*ks+3}], v12 offset:{ks*1024}")
        a(f"ds_read_b64_tr_b16 v[{WF+4*ks}:{WF+4*ks+1}], v15 offset:{ks*1280}")
        a(f"ds_read_b64_tr_b16 v[{WF+4*ks+2}:{WF+4*ks+3}], v15 offset:{ks*1280+160}")
        if ks % 4 == 3: a("s_waitcnt lgkmcnt(0)")
    a("s_waitcnt lgkmcnt(0)")
    a("v_lshrrev_b32 v16, 1, v13")
    a("v_lshlrev_b32 v16, 10, v16")
    a("v_and_b32 v17, 1, v13")
    a("v_lshl_add_u32 v16, v17, 9, v16")
    a("s_and_b32 s45, s2, 1")
    a("s_lshl_b32 s46, s45, 4")
    a("v_add_u32 v18, s46, v14")
    a("v_lshl_add_u32 v16, v18, 4, v16")
    a("s_lshr_b32 s47, s2, 1")
    a("s_mul_i32 s48, s47, 40960")
    a("s_lshl_b32 s49, s3, 11")
    a("s_add_u32 s48, s48, s49")
    assert XN == 0
    lk = [a.uid("k0_st") for _ in range(4)]
    lst_done = a.uid("k0_stdone")
    for w in range(4):
        if w < 3:
            a(f"s_cmp_lg_u32 s3, {w}")
            a(f"s_cbranch_scc1 {lk[w]}")
        for j in range(5):
            ks = w + 4*j
            a(f"s_add_u32 s50, s48, {j*8192}")
            a(f"buffer_store_dwordx4 v[{XF+4*ks}:{XF+4*ks+3}], v16, s[36:39], s50 offen")
        if w < 3:
            a(f"s_branch {lst_done}")
            a.label(lk[w])
    a.label(lst_done)
    lv = a.uid("k0_vpath"); ld = a.uid("k0_mdone")
    D = 192
    a("s_cmp_ge_u32 s3, 2")
    a(f"s_cbranch_scc1 {lv}")
    for ks in range(20):
        c = "0" if ks == 0 else f"v[{D}:{D+3}]"
        a(f"v_mfma_f32_16x16x32_bf16 v[{D}:{D+3}], v[{WF+4*ks}:{WF+4*ks+3}], v[{XF+4*ks}:{XF+4*ks+3}], {c}")
    a(f"s_branch {ld}")
    a.label(lv)
    for ks in range(20):
        c = "0" if ks == 0 else f"v[{D}:{D+3}]"
        a(f"v_mfma_f32_16x16x32_bf16 v[{D}:{D+3}], v[{XF+4*ks}:{XF+4*ks+3}], v[{WF+4*ks}:{WF+4*ks+3}], {c}")
    a.label(ld)
    a("s_lshl_b32 s51, s47, 12")
    a(f"s_add_u32 s51, s51, {KV}")
    a("v_and_b32 v17, 1, v13")
    a("v_lshrrev_b32 v19, 1, v13")
    a("s_nop 7")
    a(f"v_cvt_pk_bf16_f32 v20, v{D}, v{D+1}")
    a(f"v_cvt_pk_bf16_f32 v21, v{D+2}, v{D+3}")
    l0, l1, l2, l3 = (a.uid("k0_ep") for _ in range(4))
    lend = f"{name}_end"
    a("s_cmp_eq_u32 s3, 0"); a(f"s_cbranch_scc1 {l0}")
    a("s_cmp_eq_u32 s3, 1"); a(f"s_cbranch_scc1 {l1}")
    a("s_cmp_eq_u32 s3, 2"); a(f"s_cbranch_scc1 {l2}")
    a(f"s_branch {l3}")
    def knorm(slot):
        a(f"v_mul_f32 v22, v{D}, v{D}")
        for r in range(1, 4): a(f"v_fmac_f32 v22, v{D+r}, v{D+r}")
        if slot == 1:
            a("v_cmp_eq_u32 vcc, 0, v13")
            a("s_nop 1")
            a("v_cndmask_b32 v22, 0, v22, vcc")
        a("v_mov_b32 v23, v22")
        a("s_nop 1")
        a("v_permlane32_swap_b32 v22, v23")
        a("s_nop 1")
        a("v_add_f32 v22, v22, v23")
        a("v_mov_b32 v23, v22")
        a("s_nop 1")
        a("v_permlane16_swap_b32 v22, v23")
        a("s_nop 1")
        a("v_add_f32 v22, v22, v23")
        for sh in (8, 4, 2, 1):
            a("s_nop 1")
            a(f"v_max_f32_dpp v22, v22, v22 row_ror:{sh} row_mask:0xf bank_mask:0xf")
        a("s_lshl_b32 s52, s2, 3")
        a(f"s_add_u32 s52, s52, {KMX + 4*slot}")
        a("v_mov_b32 v23, 0")
        a("v_cmp_eq_u32 vcc, 0, v0")
        a("s_and_saveexec_b64 s[54:55], vcc")
        a("buffer_store_dword v22, v23, s[36:39], s52 offen")
        a("s_mov_b64 exec, s[54:55]")
    a.label(l0)
    a("v_lshl_add_u32 v24, v17, 5, v18")
    a("v_lshlrev_b32 v24, 4, v24")
    a("v_lshl_add_u32 v24, v19, 3, v24")
    a("buffer_store_dwordx2 v[20:21], v24, s[36:39], s51 offen")
    knorm(0)
    a(f"s_branch {lend}")
    a.label(l1)
    a("v_cmp_eq_u32 vcc, 1, v13")
    a("v_mov_b32 v25, 0x3f803f80")
    a("v_mov_b32 v26, 0x00003f80")
    a("v_cndmask_b32 v20, v20, v25, vcc")
    a("v_cndmask_b32 v21, v21, v26, vcc")
    a("v_lshl_add_u32 v24, v13, 5, v18")
    a("v_lshlrev_b32 v24, 3, v24")
    a("v_add_u32 v24, 1024, v24")
    a("v_cmp_gt_u32 vcc, 2, v13")
    a("s_and_saveexec_b64 s[54:55], vcc")
    a("buffer_store_dwordx2 v[20:21], v24, s[36:39], s51 offen")
    a("s_mov_b64 exec, s[54:55]")
    knorm(1)
    a(f"s_branch {lend}")
    a.label(l3)
    a("v_cmp_gt_u32 vcc, 4, v14")
    a("s_nop 1")
    a("v_cndmask_b32 v20, 0, v20, vcc")
    a("v_cndmask_b32 v21, 0, v21, vcc")
    a("v_cmp_eq_u32 vcc, 4, v14")
    a("v_mov_b32 v25, 0x3f803f80")
    a("s_nop 0")
    a("v_cndmask_b32 v20, v20, v25, vcc")
    a("v_cndmask_b32 v21, v21, v25, vcc")
    a("v_add_u32 v14, 16, v14")
    a.label(l2)
    a("v_lshl_add_u32 v24, v17, 5, v14")
    a("v_lshlrev_b32 v24, 4, v24")
    a("v_lshl_add_u32 v24, v19, 3, v24")
    a("s_lshl_b32 s52, s45, 10")
    a("s_add_u32 s52, s52, s51")
    a("s_add_u32 s52, s52, 2048")
    a("buffer_store_dwordx2 v[20:21], v24, s[36:39], s52 offen")
    a(f"s_branch {lend}")

    a.label(f"{name}_relayout")
    a(f"s_sub_u32 s22, s2, {NLN}")
    a("s_lshl_b32 s22, s22, 2")
    a("s_add_u32 s22, s22, s3")
    a("s_mul_i32 s60, s3, 10240")
    a("s_waitcnt lgkmcnt(0)")
    lw2, lwo, lwq, lgo = (a.uid("k0_j") for _ in range(4))
    a("s_cmp_ge_u32 s22, 640"); a(f"s_cbranch_scc1 {lwq}")
    a("s_cmp_ge_u32 s22, 540"); a(f"s_cbranch_scc1 {lwo}")
    a("s_cmp_ge_u32 s22, 270"); a(f"s_cbranch_scc1 {lw2}")
    def div(dst, src, d):
        m = (1 << 32) // d + 1
        a(f"s_mul_hi_u32 s{dst}, s{src}, {m}")
    srd(a, 24, 16, 640*1728*2)
    div(46, 22, 27)
    a("s_mul_i32 s47, s46, 27"); a("s_sub_u32 s47, s22, s47")
    a("s_mov_b32 s40, 3456")
    a(f"s_mul_i32 s41, s46, {64*3456}"); a("s_lshl_b32 s48, s47, 7"); a("s_add_u32 s41, s41, s48")
    a(f"s_mul_i32 s42, s47, {2*40*1024}"); a("s_lshl_b32 s48, s46, 12"); a("s_add_u32 s42, s42, s48"); a(f"s_add_u32 s42, s42, {W1F}")
    a("s_mov_b32 s43, 40960"); a("s_mov_b32 s44, 8"); a("s_mov_b32 s45, 4")
    a(f"s_branch {lgo}")
    a.label(lw2)
    srd(a, 24, 18, 1728*640*2)
    a("s_sub_u32 s22, s22, 270")
    div(46, 22, 10)
    a("s_mul_i32 s47, s46, 10"); a("s_sub_u32 s47, s22, s47")
    a("s_mov_b32 s40, 1280")
    a(f"s_mul_i32 s41, s46, {64*1280}"); a("s_lshl_b32 s48, s47, 7"); a("s_add_u32 s41, s41, s48")
    a(f"s_mul_i32 s42, s47, {2*108*1024}"); a("s_lshl_b32 s48, s46, 12"); a("s_add_u32 s42, s42, s48"); a(f"s_add_u32 s42, s42, {W2F}")
    a(f"s_mov_b32 s43, {108*1024}"); a("s_mov_b32 s44, 4"); a("s_mov_b32 s45, 8")
    a(f"s_branch {lgo}")
    a.label(lwo)
    srd(a, 24, 12, 640*640*2)
    a("s_sub_u32 s22, s22, 540")
    div(46, 22, 10)
    a("s_mul_i32 s47, s46, 10"); a("s_sub_u32 s47, s22, s47")
    a("s_mov_b32 s40, 1280")
    a(f"s_mul_i32 s41, s46, {64*1280}"); a("s_lshl_b32 s48, s47, 7"); a("s_add_u32 s41, s41, s48")
    a(f"s_mul_i32 s42, s47, {2*40*1024}"); a("s_lshl_b32 s48, s46, 12"); a("s_add_u32 s42, s42, s48"); a(f"s_add_u32 s42, s42, {WOF}")
    a("s_mov_b32 s43, 40960"); a("s_mov_b32 s44, 8"); a("s_mov_b32 s45, 4")
    a.label(lgo)
    srd(a, 28, 20, OF)
    a("v_lshrrev_b32 v3, 3, v0")
    a("v_mul_lo_u32 v3, v3, s40")
    a("v_and_b32 v4, 7, v0")
    a("v_lshl_add_u32 v3, v4, 4, v3")
    a("s_lshl_b32 s49, s40, 3")
    a("s_mov_b32 s50, s60")
    for i in range(8):
        a("s_mov_b32 m0, s50")
        a("s_add_u32 s50, s50, 1024")
        a("buffer_load_dwordx4 v3, s[24:27], s41 offen lds")
        a("s_add_u32 s41, s41, s49")
    a("v_lshrrev_b32 v5, 5, v0")
    a("v_mul_lo_u32 v5, v5, s44")
    a("v_and_b32 v6, 15, v0")
    a("v_lshrrev_b32 v7, 2, v6")
    a("v_add_u32 v5, v5, v7")
    a("v_lshlrev_b32 v5, 7, v5")
    a("v_bfe_u32 v7, v0, 4, 1")
    a("v_lshl_add_u32 v5, v7, 5, v5")
    a("v_and_b32 v7, 3, v6")
    a("v_lshl_add_u32 v5, v7, 3, v5")
    a("v_add_u32 v5, s60, v5")
    a("s_lshl_b32 s45, s45, 7")
    a("v_add_u32 v6, s45, v5")
    a("s_waitcnt vmcnt(0)")
    for nt in range(2):
        for kk in range(4):
            r = 16 + 4*(nt*4+kk)
            a(f"ds_read_b64_tr_b16 v[{r}:{r+1}], v5 offset:{nt*64 + kk*2048}")
            a(f"ds_read_b64_tr_b16 v[{r+2}:{r+3}], v6 offset:{nt*64 + kk*2048}")
        a("s_waitcnt lgkmcnt(0)")
        for kk in range(4):
            r = 16 + 4*(nt*4+kk)
            a(f"s_add_u32 s50, s42, {kk*1024}")
            a(f"buffer_store_dwordx4 v[{r}:{r+3}], v2, s[28:31], s50 offen")
        if nt == 0: a("s_add_u32 s42, s42, s43")
    a(f"s_branch {name}_end")
    a.label(lwq)
    srd(a, 24, 6, 640*640*2)
    srd(a, 28, 20, OF)
    a("s_sub_u32 s22, s22, 640")
    a("s_lshr_b32 s46, s22, 3")
    a("s_and_b32 s47, s22, 7")
    a(f"s_mul_i32 s41, s46, {64*1280}"); a("s_mul_i32 s48, s47, 160"); a("s_add_u32 s41, s41, s48")
    a(f"s_mul_i32 s42, s47, {4*40*1024}"); a("s_lshl_b32 s48, s46, 12"); a("s_add_u32 s42, s42, s48"); a(f"s_add_u32 s42, s42, {WQF}")
    a("s_mov_b32 s50, s60")
    a("s_movk_i32 s51, 6554")
    for i in range(10):
        a(f"v_add_u32 v3, {64*i}, v0")
        a("v_mul_lo_u32 v4, v3, s51")
        a("v_lshrrev_b32 v4, 16, v4")
        a("v_mul_u32_u24 v5, 10, v4")
        a("v_sub_u32 v3, v3, v5")
        a("v_mul_u32_u24 v4, 1280, v4")
        a("v_lshl_add_u32 v3, v3, 4, v4")
        a("s_mov_b32 m0, s50")
        a("s_add_u32 s50, s50, 1024")
        a("buffer_load_dwordx4 v3, s[24:27], s41 offen lds")
    a("v_lshrrev_b32 v5, 5, v0")
    a("v_lshlrev_b32 v5, 3, v5")
    a("v_and_b32 v6, 15, v0")
    a("v_lshrrev_b32 v7, 2, v6")
    a("v_add_u32 v5, v5, v7")
    a("v_mul_u32_u24 v5, 160, v5")
    a("v_bfe_u32 v7, v0, 4, 1")
    a("v_lshl_add_u32 v5, v7, 5, v5")
    a("v_and_b32 v8, 3, v6")
    a("v_lshl_add_u32 v5, v8, 3, v5")
    a("v_add_u32 v5, s60, v5")
    a("v_lshl_add_u32 v8, v7, 4, v6")
    a("v_cmp_gt_u32 vcc, 20, v8")
    a("v_mov_b32 v9, 0")
    a("v_mov_b32 v10, -1")
    a("v_cndmask_b32 v9, v9, v10, vcc")
    a("s_waitcnt vmcnt(0)")
    for hh in range(4):
        for kk in range(4):
            r = 16 + 4*(hh*4+kk)
            a(f"ds_read_b64_tr_b16 v[{r}:{r+1}], v5 offset:{hh*40 + kk*16*160}")
            a(f"ds_read_b64_tr_b16 v[{r+2}:{r+3}], v5 offset:{hh*40 + kk*16*160 + 4*160}")
        a("s_waitcnt lgkmcnt(0)")
        for kk in range(4):
            r = 16 + 4*(hh*4+kk)
            for x in range(4): a(f"v_and_b32 v{r+x}, v{r+x}, v9")
            a(f"s_add_u32 s50, s42, {hh*40960 + kk*1024}")
            a(f"buffer_store_dwordx4 v[{r}:{r+3}], v2, s[28:31], s50 offen")
    a.label(f"{name}_end")
    a("s_endpgm")
    errs = check_hazards(a.lines, name)
    desc = kd(name, 200, 64)
    return a.text(), desc, errs

def kd(name, nv, ns=96, accum=None):
    acc = accum or ((nv + 3)//4*4)
    return f""".section .rodata,"a"
.p2align 6
.amdhsa_kernel {name}
  .amdhsa_next_free_vgpr {nv}
  .amdhsa_next_free_sgpr {ns}
  .amdhsa_accum_offset {acc}
  .amdhsa_group_segment_fixed_size 0
  .amdhsa_kernarg_size 88
  .amdhsa_user_sgpr_count 2
  .amdhsa_user_sgpr_kernarg_segment_ptr 1
  .amdhsa_system_sgpr_workgroup_id_x 1
  .amdhsa_float_denorm_mode_32 3
.end_amdhsa_kernel
.text
"""
if __name__ == "__main__":
    t, d, e = gen_k0()
    for x in e: print(x)
    open("k0.s", "w").write('.amdgcn_target "amdgcn-amd-amdhsa--gfx950"\n.text\n' + t + d)
```

```python
from asmlib import *
from layout import *
from k0 import srd, kd

XNL = 0
KVL = 81920
LDS_K2 = KVL + 65536
PROF = False
PROFOFF = 0x8000000
def stamp(a, i):
    if PROF: a(f"s_memtime s[{60+2*i}:{61+2*i}]")
def stamp_rt(a, i):
    if PROF: a(f"s_memrealtime s[{60+2*i}:{61+2*i}]")
def stamp_store(a, n):
    if not PROF: return
    a("s_waitcnt lgkmcnt(0)")
    a("s_lshl_b32 s58, s2, 4"); a("s_add_u32 s58, s58, s3"); a("s_lshl_b32 s58, s58, 6")
    a(f"s_add_u32 s56, s20, {PROFOFF}"); a("s_addc_u32 s57, s21, 0")
    a("v_mov_b32 v160, s58")
    for i in range(n):
        a(f"v_mov_b32 v161, s{60+2*i}")
        a(f"global_store_dword v160, v161, s[56:57] offset:{4*i}")
        a("s_nop 1")
THR = 80.0

def mfma32(d, x, y, c): return f"v_mfma_f32_32x32x16_bf16 v[{d}:{d+15}], v[{x}:{x+3}], v[{y}:{y+3}], " + ("0" if c is None else f"v[{c}:{c+15}]")
def mfma8(d, x, y, c): return f"v_mfma_f32_32x32x8bf16_1k v[{d}:{d+15}], v[{x}:{x+1}], v[{y}:{y+1}], " + ("0" if c is None else f"v[{c}:{c+15}]")

Q1, Q2 = 4, 8
K2r, K1r = 10, 12
V0r, V1r = 16, 20
P = 24
S = (32, 48)
O = 64
E = 80
AQ = 88
BQ = 128

def attn_tile(a, t, first=False):
    off = lambda tt: (tt % 16) * 4096
    Sc, Sn = S[t & 1], S[(t + 1) & 1]
    ex = lambda i: f"v_exp_f32 v{E + i % 8}, v{Sc + i}"
    cv = lambda p, e: f"v_cvt_pk_bf16_f32 v{P + p}, v{E + e}, v{E + e + 1}"
    a("s_waitcnt lgkmcnt(3)")
    a(mfma32(Sn, K1r, Q1, None))
    a(f"ds_read_b128 v[{K1r}:{K1r+3}], v1 offset:{off(t+2)}")
    a(cv(6, 4)); a(cv(7, 6))
    for i in range(0, 4): a(ex(i))
    a("s_waitcnt lgkmcnt(3)")
    a(mfma32(O, V1r, P + 4, O))
    a(f"ds_read_b128 v[{V1r}:{V1r+3}], v1 offset:{off(t) + 3072}")
    a(cv(0, 0)); a(cv(1, 2))
    for i in range(4, 8): a(ex(i))
    a("s_waitcnt lgkmcnt(3)")
    a(mfma8(Sn, K2r, Q2, Sn))
    a(f"ds_read_b64 v[{K2r}:{K2r+1}], v2 offset:{off(t+2) + 1024}")
    a(cv(2, 4)); a(cv(3, 6))
    for i in range(8, 12): a(ex(i))
    a("s_waitcnt lgkmcnt(3)")
    a(mfma32(O, V0r, P, O))
    a(f"ds_read_b128 v[{V0r}:{V0r+3}], v1 offset:{off(t+1) + 2048}")
    a(cv(4, 0)); a(cv(5, 2))
    for i in range(12, 16): a(ex(i))

def kv_dma(a, slot):
    a(f"s_add_u32 m0, s41, {slot*16384}")
    a("s_nop 0")
    a("buffer_load_dwordx4 v3, s[28:31], s40 offen lds")
    a("buffer_load_dwordx4 v3, s[28:31], s40 offen offset:1024 lds")
    a("s_add_u32 s40, s40, 16384")

def gen_attn_wave(a, name, prio):
    a("s_lshr_b32 s6, s3, 1")
    a("s_lshl_b32 s7, s4, 2")
    a("s_add_u32 s6, s6, s7")
    a("s_and_b32 s7, s3, 1")
    a("s_mul_i32 s42, s6, 40960")
    for i in range(10):
        a(f"buffer_load_dwordx4 v[{AQ+4*i}:{AQ+4*i+3}], v3, s[32:35], s42 offen offset:{(i%4)*1024}")
        if i % 4 == 3: a("s_add_u32 s42, s42, 4096")
    a(f"s_mov_b32 s43, {KMX}")
    a(f"buffer_load_dwordx4 v[144:147], v3, s[36:39], s43 offen")
    a("s_lshl_b32 s40, s3, 11")
    a(f"s_add_u32 s41, s40, {KVL}")
    for c in range(3): kv_dma(a, c)
    a(f"v_add_u32 v1, {KVL}, v3")
    a("v_lshlrev_b32 v2, 3, v0")
    a(f"v_add_u32 v2, {KVL}, v2")
    a("s_mul_i32 s44, s7, 40960")
    a("v_add_u32 v148, s44, v3")
    a("s_waitcnt vmcnt(17)")
    a("s_barrier")
    stamp(a, 2)
    if prio is not None: a(f"s_setprio {prio}")
    D = S[0]
    for i in range(3): a(f"ds_read_b128 v[{BQ+4*i}:{BQ+4*i+3}], v148 offset:{i*1024}")
    for ks in range(40):
        if ks + 3 < 40: a(f"ds_read_b128 v[{BQ+4*((ks+3)%4)}:{BQ+4*((ks+3)%4)+3}], v148 offset:{(ks+3)*1024}")
        if ks < 10: n = (9 - ks) + 7 + min(ks, 30)
        else: n = min(ks + 9, 39) - ks
        nl = min(3, 39 - ks)
        a(f"s_waitcnt vmcnt({n}) lgkmcnt({nl})")
        a(mfma32(D, AQ + 4*(ks % 10), BQ + 4*(ks % 4), None if ks == 0 else D))
        if ks + 10 < 40:
            idx = ks + 10
            rel = idx * 1024 - 8192
            if rel >= 4096 and rel % 4096 == 0: a("s_add_u32 s42, s42, 4096")
            a(f"buffer_load_dwordx4 v[{AQ+4*(ks%10)}:{AQ+4*(ks%10)+3}], v3, s[32:35], s42 offen offset:{rel % 4096}")
    a("v_max_f32 v144, v144, v146")
    a("v_max_f32 v145, v145, v147")
    for sh in (8, 4, 2, 1):
        a("s_nop 1")
        a(f"v_max_f32_dpp v144, v144, v144 row_ror:{sh} row_mask:0xf bank_mask:0xf")
        a(f"v_max_f32_dpp v145, v145, v145 row_ror:{sh} row_mask:0xf bank_mask:0xf")
    for sw in ("16", "32"):
        a("v_mov_b32 v146, v144"); a("v_mov_b32 v147, v145"); a("s_nop 1")
        a(f"v_permlane{sw}_swap_b32 v144, v146"); a(f"v_permlane{sw}_swap_b32 v145, v147"); a("s_nop 1")
        a("v_max_f32 v144, v144, v146"); a("v_max_f32 v145, v145, v147")
    a("v_add_f32 v144, v144, v145")
    a(f"s_mov_b32 s45, {f2u(QSCALE):#x}")
    for r in range(12): a(f"v_mul_f32 v{D+r}, s45, v{D+r}")
    a(f"v_mul_f32 v145, v{D}, v{D}")
    for r in range(1, 12): a(f"v_fmac_f32 v145, v{D+r}, v{D+r}")
    for r in range(4): a(f"v_cvt_pk_bf16_f32 v{Q1+r}, v{D+2*r}, v{D+2*r+1}")
    for r in range(2): a(f"v_cvt_pk_bf16_f32 v{Q2+r}, v{D+8+2*r}, v{D+8+2*r+1}")
    a("v_mov_b32 v146, v145"); a("s_nop 1")
    a("v_permlane32_swap_b32 v145, v146"); a("s_nop 1")
    a("v_add_f32 v145, v145, v146")
    a("v_mul_f32 v145, v145, v144")
    a(f"s_mov_b32 s45, {f2u(THR*THR):#x}")
    a("v_cmp_nle_f32 vcc, v145, s45")
    lfast = a.uid("attn_fast")
    a("s_nop 4")
    a(f"s_cbranch_vccz {lfast}")
    lm = a.uid("attn_maxloop")
    M = 144
    a(f"v_mov_b32 v{M}, 0xff800000")
    a("s_mov_b32 s46, 0")
    a("v_lshlrev_b32 v149, 3, v0")
    a.label(lm)
    a(f"buffer_load_dwordx4 v[{AQ}:{AQ+3}], v3, s[28:31], s46 offen")
    a(f"buffer_load_dwordx2 v[{AQ+4}:{AQ+5}], v149, s[28:31], s46 offen offset:1024")
    a("s_waitcnt vmcnt(0)")
    a(mfma32(S[1], AQ, Q1, None))
    a(mfma8(S[1], AQ+4, Q2, S[1]))
    a("s_add_u32 s46, s46, 4096")
    a("s_nop 15")
    for r in range(0, 16, 2): a(f"v_max3_f32 v{M}, v{M}, v{S[1]+r}, v{S[1]+r+1}")
    a(f"s_cmp_lt_u32 s46, {64*4096}")
    a(f"s_cbranch_scc1 {lm}")
    a(f"v_mov_b32 v145, v{M}"); a("s_nop 1")
    a(f"v_permlane32_swap_b32 v{M}, v145"); a("s_nop 1")
    a(f"v_max_f32 v{M}, v{M}, v145")
    a(f"v_xor_b32 v{M}, 0x80000000, v{M}")
    a(f"v_and_b32 v145, 0xffff0000, v{M}")
    a(f"v_sub_f32 v146, v{M}, v145")
    a("v_and_b32 v147, 0xffff0000, v146")
    a("v_sub_f32 v146, v146, v147")
    a("v_lshrrev_b32 v146, 16, v146")
    a("v_lshrrev_b32 v145, 16, v145")
    a("v_or_b32 v145, v145, v147")
    a("v_cmp_lt_u32 vcc, 31, v0")
    a("s_nop 1")
    a(f"v_cndmask_b32 v{Q2}, v{Q2}, v145, vcc")
    a(f"v_cndmask_b32 v{Q2+1}, v{Q2+1}, v146, vcc")
    a.label(lfast)
    stamp(a, 3)
    for r in range(16): a(f"v_mov_b32 v{O+r}, 0")
    for r in range(8): a(f"v_mov_b32 v{P+r}, 0")
    for r in range(8): a(f"v_mov_b32 v{E+r}, 0")
    a("s_waitcnt vmcnt(2)")
    a("s_barrier")
    kv_dma(a, 3)
    a(f"ds_read_b128 v[{K1r}:{K1r+3}], v1 offset:0")
    a(f"ds_read_b64 v[{K2r}:{K2r+1}], v2 offset:1024")
    a(f"ds_read_b128 v[{V1r}:{V1r+3}], v1 offset:3072")
    a("s_waitcnt lgkmcnt(0)")
    a(mfma32(S[0], K1r, Q1, None))
    a(mfma8(S[0], K2r, Q2, S[0]))
    a(f"ds_read_b128 v[{K1r}:{K1r+3}], v1 offset:{4096}")
    a(f"ds_read_b128 v[{V1r}:{V1r+3}], v1 offset:3072")
    a(f"ds_read_b64 v[{K2r}:{K2r+1}], v2 offset:{4096+1024}")
    a(f"ds_read_b128 v[{V0r}:{V0r+3}], v1 offset:2048")
    a("s_nop 7")
    stamp(a, 4)
    a("s_mov_b32 s47, 4")
    lp = a.uid("attn_loop")
    body = Asm()
    for t in range(16):
        if t % 4 == 0 and t > 0:
            body("s_waitcnt vmcnt(2) lgkmcnt(2)")
            body("s_barrier")
            kv_dma(body, (t // 4 + 3) % 4)
        attn_tile(body, t)
    a.label(lp)
    a.lines += body.lines
    a("s_sub_u32 s47, s47, 1")
    a("s_cmp_eq_u32 s47, 0")
    lout = a.uid("attn_out")
    a(f"s_cbranch_scc1 {lout}")
    a("s_waitcnt vmcnt(2) lgkmcnt(2)")
    a("s_barrier")
    kv_dma(a, 3)
    a(f"s_branch {lp}")
    a.label(lout)
    stamp(a, 5)
    a(f"v_cvt_pk_bf16_f32 v{P+6}, v{E+4}, v{E+5}")
    a(f"v_cvt_pk_bf16_f32 v{P+7}, v{E+6}, v{E+7}")
    a("s_waitcnt lgkmcnt(0)")
    a("s_nop 0")
    a(mfma32(O, V1r, P + 4, O))
    a("v_lshrrev_b32 v100, 5, v0")
    a("s_mul_i32 s48, s6, 5")
    a("v_add_u32 v101, s48, v100")
    a("v_and_b32 v102, 31, v0")
    a("v_lshlrev_b32 v102, 4, v102")
    def qoff(dst, q):
        a(f"v_lshrrev_b32 v103, 2, v{q}")
        a(f"v_lshlrev_b32 v{dst}, 10, v103")
        a(f"v_bfe_u32 v103, v{q}, 1, 1")
        a(f"v_lshl_add_u32 v{dst}, v103, 9, v{dst}")
        a(f"v_and_b32 v103, 1, v{q}")
        a(f"v_lshl_add_u32 v{dst}, v103, 3, v{dst}")
        a(f"v_add_u32 v{dst}, v{dst}, v102")
    qoff(104, 101)
    a("v_add_u32 v101, 2, v101")
    qoff(105, 101)
    a("s_add_u32 s48, s48, 4")
    a("v_mov_b32 v101, s48")
    qoff(106, 101)
    a("s_lshl_b32 s49, s5, 1")
    a("s_add_u32 s49, s49, s7")
    a("s_mul_i32 s49, s49, 40960")
    a(f"s_add_u32 s49, s49, {OF}")
    a(f"v_mov_b32 v108, v{O+8}")
    a(f"v_mov_b32 v109, v{O+8}")
    a("s_nop 1")
    a("v_permlane32_swap_b32 v108, v109")
    a("s_nop 1")
    a("v_rcp_f32 v109, v109")
    a("s_nop 0")
    for r in range(12): a(f"v_mul_f32 v{O+r}, v{O+r}, v109")
    for r in range(6): a(f"v_cvt_pk_bf16_f32 v{110+r}, v{O+2*r}, v{O+2*r+1}")
    a("buffer_store_dwordx2 v[110:111], v104, s[36:39], s49 offen")
    a("buffer_store_dwordx2 v[112:113], v105, s[36:39], s49 offen")
    a("v_cmp_gt_u32 vcc, 32, v0")
    a("s_and_saveexec_b64 s[50:51], vcc")
    a("buffer_store_dwordx2 v[114:115], v106, s[36:39], s49 offen")
    a("s_mov_b64 exec, s[50:51]")
    dbg_mark(a, 1, 2, vt=160)
    stamp(a, 6); stamp_rt(a, 7)
    stamp_store(a, 8)
    a("s_endpgm")
    return check_hazards(body.lines + body.lines, name + ":loop")

def gen_k2(name="main_kernel", ffn=True, prio_attn=None, prio_ffn=None):
    a = Asm()
    a(f".globl {name}\n.p2align 8\n.type {name},@function")
    a.label(name)
    a("s_cmp_ge_u32 s2, 256")
    a(f"s_cbranch_scc1 {name}_end")
    stamp_rt(a, 0); stamp(a, 1)
    dbg_mark(a, 1, 0, vt=160)
    a("s_load_dwordx2 s[20:21], s[0:1], 80")
    a("v_lshrrev_b32 v1, 6, v0")
    a("v_and_b32 v0, 63, v0")
    a("v_readfirstlane_b32 s3, v1")
    a("v_lshlrev_b32 v3, 4, v0")
    a("s_and_b32 s4, s2, 7")
    a("s_lshr_b32 s5, s2, 3")
    a("s_waitcnt lgkmcnt(0)")
    srd(a, 24, 20, XN_SZ, XN)
    srd(a, 28, 20, KV_SZ, KV)
    srd(a, 32, 20, WQF_SZ, WQF)
    srd(a, 36, 20, PART + NPART*PART1)
    a("s_mul_i32 s8, s5, 81920")
    a("s_lshl_b32 s9, s3, 10")
    a("s_add_u32 s8, s8, s9")
    for j in range(7):
        if j == 6:
            l6 = a.uid("k2_no7")
            a("s_cmp_ge_u32 s3, 8"); a(f"s_cbranch_scc1 {l6}")
        a(f"s_add_u32 m0, s9, {j*12288}")
        a("s_nop 0")
        a("buffer_load_dwordx4 v3, s[24:27], s8 offen lds")
        a("s_add_u32 s8, s8, 12288")
    a.label(l6)
    lffn = f"{name}_ffn"
    a("s_cmp_ge_u32 s3, 8")
    a(f"s_cbranch_scc1 {lffn}")
    errs = gen_attn_wave(a, name, prio_attn)
    a.label(lffn)
    if ffn:
        import k2ffn
        errs += k2ffn.gen_ffn_wave(a, name, prio_ffn)
    else:
        a("s_waitcnt vmcnt(0)")
        for i in range(17): a("s_barrier")
    a.label(f"{name}_end")
    a("s_endpgm")
    errs += check_hazards(a.lines, name)
    return a.text(), kd(name, 168, 100), errs

def kernels(which):
    global PROF
    import os
    PROF = bool(os.environ.get("PROF"))
    t, d, e = gen_k2("main_kernel", ffn=(which != "attn"))
    return [("main_kernel", t, d, e, 256, 768, LDS_K2)]
```

```python
from asmlib import *
from layout import *
from k0 import srd
import k2
from k2 import mfma32, stamp, stamp_rt, stamp_store

ACC = 4
AR = 100
BR = 148
VX0, VX1 = 164, 165

class VM:
    def __init__(self, a): self.a = a; self.q = []
    def issue(self, tag): self.q.append(tag)
    def wait(self, tag, extra=""):
        idx = max(i for i, t in enumerate(self.q) if t == tag)
        n = len(self.q) - 1 - idx
        assert n <= 63
        self.a(f"s_waitcnt vmcnt({n}){extra}")
        self.q = self.q[idx + 1:]
        return n

def gen_ffn_wave(a, name, prio, sched=None):
    ldummy = f"{name}_ffn_dummy"; lend = f"{name}_end"
    a("s_cmp_eq_u32 s4, 7")
    a(f"s_cbranch_scc1 {ldummy}")
    vm = VM(a)
    for i in range(6): vm.issue("xn")
    srd(a, 40, 20, W1F_SZ, W1F)
    srd(a, 44, 20, W2F_SZ, W2F)
    a("s_sub_u32 s6, s3, 8")
    a("s_lshl_b32 s7, s4, 3")
    a("s_lshl_b32 s8, s6, 1")
    a("s_add_u32 s7, s7, s8")
    a("s_mul_i32 s48, s7, 40960")
    a("s_add_u32 s49, s48, 40960")
    a(f"v_mov_b32 v{VX0}, v3")
    a(f"v_add_u32 v{VX1}, 40960, v3")
    items = []
    D1 = 6
    def a1_load(ks):
        if ks >= 40: return
        r = AR + 8*(ks % D1)
        if ks % 4 == 0 and ks > 0:
            a("s_add_u32 s48, s48, 4096"); a("s_add_u32 s49, s49, 4096")
        a(f"buffer_load_dwordx4 v[{r}:{r+3}], v3, s[40:43], s48 offen offset:{(ks%4)*1024}"); vm.issue(("a1", ks))
        a(f"buffer_load_dwordx4 v[{r+4}:{r+7}], v3, s[40:43], s49 offen offset:{(ks%4)*1024}"); vm.issue(("a1", ks))
    def b1_load(ks):
        if ks >= 40: return
        r = BR + 8*(ks % 2)
        a(f"ds_read_b128 v[{r}:{r+3}], v{VX0} offset:{ks*1024}")
        a(f"ds_read_b128 v[{r+4}:{r+7}], v{VX1} offset:{ks*1024}")
    for ks in range(D1 - 1): a1_load(ks)
    vm.wait("xn")
    a("s_barrier")
    if prio is not None: a(f"s_setprio {prio}")
    stamp(a, 2)
    b1_load(0)
    def f1(ks):
        def fn():
            a1_load(ks + D1 - 1)
            b1_load(ks + 1)
            vm.wait(("a1", ks), f" lgkmcnt({2 if ks + 1 < 40 else 0})")
            ra = AR + 8*(ks % D1); rb = BR + 8*(ks % 2)
            c = lambda i: None if ks == 0 else ACC + 16*i
            a(mfma32(ACC + 0,  ra,     rb,     c(0)))
            a(mfma32(ACC + 16, ra,     rb + 4, c(1)))
            a(mfma32(ACC + 48, ra + 4, rb + 4, c(3)))
            a(mfma32(ACC + 32, ra + 4, rb,     c(2)))
        return fn
    def silu(tile, half):
        def fn():
            base = ACC + 16*tile + 8*half
            T = AR
            for p in range(4):
                a(f"v_pk_mul_f32 v[{T+2*p}:{T+2*p+1}], v[{base+2*p}:{base+2*p+1}], s[50:51]")
            for i in range(8): a(f"v_exp_f32 v{T+i}, v{T+i}")
            for p in range(4):
                a(f"v_pk_add_f32 v[{T+2*p}:{T+2*p+1}], v[{T+2*p}:{T+2*p+1}], s[52:53]")
            for i in range(8): a(f"v_rcp_f32 v{T+i}, v{T+i}")
            for p in range(4):
                a(f"v_pk_mul_f32 v[{base+2*p}:{base+2*p+1}], v[{base+2*p}:{base+2*p+1}], v[{T+2*p}:{T+2*p+1}]")
            for p in range(4):
                a(f"v_cvt_pk_bf16_f32 v{base+p}, v{base+2*p}, v{base+2*p+1}")
        return fn
    def hwrite():
        a("s_lshl_b32 s9, s6, 12")
        a(f"v_add_u32 v{VX1}, s9, v3")
        for ui in range(2):
            for tt in range(2):
                for half in range(2):
                    base = ACC + 16*(2*ui + tt) + 8*half
                    a(f"ds_write_b128 v{VX1}, v[{base}:{base+3}] offset:{tt*16384 + (2*ui+half)*1024}")
        a("s_waitcnt lgkmcnt(0)")
    def a2_setup():
        a("s_mul_i32 s10, s6, 5")
        a("s_mul_i32 s11, s10, 110592")
        a("s_lshl_b32 s12, s4, 14")
        a("s_add_u32 s11, s11, s12")
        for j in range(5):
            a(f"s_add_u32 s{54+j}, s11, {j*110592}")
    def a2_load(js, kk, depth):
        if kk >= 16: return
        n = len(js)
        for x, j in enumerate(js):
            r = AR + 4*(n*(kk % depth) + x)
            a(f"s_add_u32 s59, s{54+j}, {(kk//4)*4096}")
            a(f"buffer_load_dwordx4 v[{r}:{r+3}], v3, s[44:47], s59 offen offset:{(kk%4)*1024}"); vm.issue(("a2", js[0], kk))
    def b2_load(kk):
        if kk >= 16: return
        r = BR + 8*(kk % 2)
        a(f"ds_read_b128 v[{r}:{r+3}], v{VX0} offset:{kk*1024}")
        a(f"ds_read_b128 v[{r+4}:{r+7}], v{VX0} offset:{16384 + kk*1024}")
    def f2(js, kk, depth):
        def fn():
            n = len(js)
            a2_load(js, kk + depth - 1, depth)
            b2_load(kk + 1)
            vm.wait(("a2", js[0], kk), f" lgkmcnt({2 if kk + 1 < 16 else 0})")
            rb = BR + 8*(kk % 2)
            for x in range(n):
                ra = AR + 4*(n*(kk % depth) + x)
                for tt in ((0, 1) if x % 2 == 0 else (1, 0)):
                    d = ACC + 16*(2*x + tt)
                    a(mfma32(d, ra, rb + 4*tt, None if kk == 0 else d))
        return fn
    def f2_pre(js, depth):
        def fn():
            for kk in range(depth - 1): a2_load(js, kk, depth)
        return fn
    def ep2(js, x):
        def fn():
            j = js[x]
            for tt in range(2):
                d = ACC + 16*(2*x + tt)
                for p in range(8): a(f"v_cvt_pk_bf16_f32 v{d+p}, v{d+2*p}, v{d+2*p+1}")
                a(f"s_add_u32 s59, s13, {tt*20*2048 + j*2048}")
                a(f"buffer_store_dwordx4 v[{d}:{d+3}], v3, s[36:39], s59 offen"); vm.issue("st")
                a(f"buffer_store_dwordx4 v[{d+4}:{d+7}], v3, s[36:39], s59 offen offset:1024"); vm.issue("st")
        return fn
    def ep_setup():
        a(f"s_mul_i32 s13, s4, {PART1}")
        a(f"s_mul_i32 s14, s5, {2*20*2048}")
        a("s_add_u32 s13, s13, s14")
        a("s_mul_i32 s14, s6, 10240")
        a("s_add_u32 s13, s13, s14")
        a(f"s_add_u32 s13, s13, {PART}")
    BAR = lambda: a("s_barrier")
    def consts():
        c1 = f2u(-1.4426950408889634)
        a(f"s_mov_b32 s50, {c1:#x}"); a(f"s_mov_b32 s51, {c1:#x}")
        a("s_mov_b32 s52, 1.0"); a("s_mov_b32 s53, 1.0")
    consts(); a2_setup(); ep_setup()
    P1, P2 = (0, 1, 2), (3, 4)
    seq = []
    F1 = [f1(k) for k in range(40)]
    segs = [[] for _ in range(17)]
    n1 = [8, 6, 6, 5, 5, 5, 5]
    k = 0
    for i, n in enumerate(n1):
        segs[i] += F1[k:k+n]; k += n
    assert k == 40
    nop16 = lambda: a("s_nop 15")
    segs[7] += [nop16] + [silu(t, h) for t in (0, 1) for h in (0, 1)]
    segs[8] += [silu(t, h) for t in (2, 3) for h in (0, 1)] + [f2_pre(P1, 4)]
    segs[9] += [hwrite]
    F21 = [f2(P1, kk, 4) for kk in range(16)]
    segs[10] += [lambda: b2_load(0)] + F21[0:5]
    segs[11] += F21[5:11]
    segs[12] += F21[11:16] + [f2_pre(P2, 6)]
    F22 = [f2(P2, kk, 6) for kk in range(16)]
    segs[13] += [nop16] + [ep2(P1, x) for x in range(3)] + [lambda: b2_load(0)] + F22[0:3]
    segs[14] += F22[3:10]
    segs[15] += F22[10:16]
    segs[16] += [nop16] + [ep2(P2, x) for x in range(2)]
    for i in range(17):
        if i > 0: BAR()
        if i in (7, 10, 16) : stamp(a, {7: 3, 10: 4, 16: 5}[i])
        for fn in segs[i]: fn()
    stamp(a, 6); stamp_rt(a, 7); stamp_store(a, 8)
    a(f"s_branch {lend}")
    a.label(ldummy)
    a("s_waitcnt vmcnt(0)")
    for i in range(17): BAR()
    return []
```

```python
from asmlib import *
from layout import *
from k0 import srd, kd

def gen_k3(name="out_kernel"):
    a = Asm()
    a(f".globl {name}\n.p2align 8\n.type {name},@function")
    a.label(name)
    a("s_cmp_ge_u32 s2, 256")
    a(f"s_cbranch_scc1 {name}_end")
    a("s_load_dwordx2 s[4:5], s[0:1], 0")
    a("s_load_dwordx2 s[6:7], s[0:1], 64")
    a("s_load_dwordx2 s[20:21], s[0:1], 80")
    a("v_lshrrev_b32 v1, 6, v0")
    a("v_and_b32 v0, 63, v0")
    a("v_readfirstlane_b32 s3, v1")
    a("v_lshlrev_b32 v3, 4, v0")
    a("s_lshr_b32 s8, s2, 5"); a("s_lshl_b32 s8, s8, 3"); a("s_and_b32 s9, s2, 7"); a("s_add_u32 s8, s8, s9")
    a("s_lshr_b32 s9, s2, 3"); a("s_and_b32 s9, s9, 3")
    a("s_waitcnt lgkmcnt(0)")
    srd(a, 24, 20, WOF_SZ, WOF)
    srd(a, 28, 20, OF_SZ, OF)
    srd(a, 32, 20, NPART*PART1, PART)
    srd(a, 36, 4, X_SZ)
    srd(a, 40, 6, X_SZ)
    a("s_mul_i32 s10, s9, 204800")
    a("s_mul_i32 s11, s3, 10240")
    a("s_add_u32 s10, s10, s11")
    a("s_mul_i32 s12, s8, 40960")
    a("s_add_u32 s12, s12, s11")
    BF = 16; AF = 56
    for k in range(10):
        a(f"s_add_u32 s13, s12, {(k//4)*4096}")
        a(f"buffer_load_dwordx4 v[{BF+4*k}:{BF+4*k+3}], v3, s[28:31], s13 offen offset:{(k%4)*1024}")
        for j in range(5):
            r = AF + 4*(5*k + j)
            a(f"s_add_u32 s13, s10, {j*40960 + (k//4)*4096}")
            a(f"buffer_load_dwordx4 v[{r}:{r+3}], v3, s[24:27], s13 offen offset:{(k%4)*1024}")
    a("s_and_b32 s14, s3, 1"); a("s_lshl_b32 s14, s14, 3")
    a("v_add_u32 v4, s14, v3")
    a("s_mul_i32 s15, s8, 20"); a("s_mul_i32 s16, s9, 5"); a("s_add_u32 s15, s15, s16")
    a("s_lshl_b32 s15, s15, 11")
    a("s_lshr_b32 s16, s3, 1"); a("s_lshl_b32 s16, s16, 10"); a("s_add_u32 s15, s15, s16")
    a("v_and_b32 v5, 31, v0"); a("s_lshl_b32 s17, s8, 5"); a("v_add_u32 v5, s17, v5")
    a("v_mul_u32_u24 v5, 1280, v5")
    a("v_lshrrev_b32 v6, 5, v0"); a("v_lshl_add_u32 v5, v6, 3, v5")
    a("s_mul_i32 s17, s9, 320"); a("s_lshl_b32 s18, s3, 4"); a("s_add_u32 s17, s17, s18")
    a("v_add_u32 v5, s17, v5")
    ACC = 0; PA = 80; XA = 150
    def mf(k):
        for j in range(5):
            r = AF + 4*(5*k + j)
            c = "0" if k == 0 else f"a[{ACC+16*j}:{ACC+16*j+15}]"
            a(f"v_mfma_f32_32x32x16_bf16 a[{ACC+16*j}:{ACC+16*j+15}], v[{r}:{r+3}], v[{BF+4*k}:{BF+4*k+3}], {c}")
    issued = 60
    extra = 0
    pl = [(g, j) for g in range(NPART) for j in range(5)]
    for k in range(10):
        a(f"s_waitcnt vmcnt({60 - 6*(k+1) + extra})")
        mf(k)
        for (g, j) in pl[4*k:4*k+4]:
            a(f"s_add_u32 s13, s15, {g*PART1 + j*2048}")
            a(f"buffer_load_dwordx2 a[{PA+2*(5*g+j)}:{PA+2*(5*g+j)+1}], v4, s[32:35], s13 offen")
            extra += 1
    for j in range(5):
        a(f"buffer_load_dwordx2 a[{XA+2*j}:{XA+2*j+1}], v5, s[36:39], 0 offen offset:{64*j}")
    a("s_mul_i32 s19, s3, 20480")
    a("v_add_u32 v7, s19, v3")
    a("s_nop 7")
    a("s_nop 7")
    for j in range(5):
        for i in range(4):
            a(f"ds_write_b128 v7, a[{ACC+16*j+4*i}:{ACC+16*j+4*i+3}] offset:{(j*4+i)*1024}")
    a("s_waitcnt lgkmcnt(0)")
    a("s_barrier")
    a("s_lshl_b32 s19, s3, 10")
    a("v_add_u32 v7, s19, v3")
    a("v_add_u32 v8, 40960, v7")
    R = 16
    for j in range(5):
        for src in range(4):
            r = R + 4*(4*j + src)
            a(f"ds_read_b128 v[{r}:{r+3}], v{7 + src//2} offset:{(src%2)*20480 + j*4096}")
        if j % 2 == 1 or j == 4: a("s_waitcnt lgkmcnt(0)")
    S = 100
    for j in range(5):
        for r in range(4):
            a(f"v_add_f32 v{S+4*j+r}, v{R+16*j+r}, v{R+16*j+4+r}")
            a(f"v_add_f32 v{R+16*j+8+r}, v{R+16*j+8+r}, v{R+16*j+12+r}")
        for r in range(4):
            a(f"v_add_f32 v{S+4*j+r}, v{S+4*j+r}, v{R+16*j+8+r}")
    a("s_waitcnt vmcnt(0)")
    T = 120
    def addq(j, areg):
        a(f"v_accvgpr_read_b32 v{T}, a{areg}")
        a(f"v_accvgpr_read_b32 v{T+1}, a{areg+1}")
        a(f"v_lshlrev_b32 v{T+2}, 16, v{T}")
        a(f"v_and_b32 v{T+3}, 0xffff0000, v{T}")
        a(f"v_lshlrev_b32 v{T+4}, 16, v{T+1}")
        a(f"v_and_b32 v{T+5}, 0xffff0000, v{T+1}")
        for r in range(4): a(f"v_add_f32 v{S+4*j+r}, v{S+4*j+r}, v{T+2+r}")
    for j in range(5):
        for g in range(NPART): addq(j, PA + 2*(5*g + j))
        addq(j, XA + 2*j)
        a(f"v_cvt_pk_bf16_f32 v{S+4*j}, v{S+4*j}, v{S+4*j+1}")
        a(f"v_cvt_pk_bf16_f32 v{S+4*j+1}, v{S+4*j+2}, v{S+4*j+3}")
        a(f"buffer_store_dwordx2 v[{S+4*j}:{S+4*j+1}], v5, s[40:43], 0 offen offset:{64*j}")
    a.label(f"{name}_end")
    a("s_endpgm")
    errs = check_hazards(a.lines, name)
    return a.text(), kd(name, 256 + 160, 64, accum=256), errs

def kernels(which):
    if which != "all": return []
    t, d, e = gen_k3()
    return [("out_kernel", t, d, e, 256, 256, 81920)]
```

```python
XN   = 0x0000000; XN_SZ  = 64*40*1024
KV   = 0x0300000; KV_SZ  = 64*4096
KMX  = 0x0380000; KMX_SZ = 1024
WQF  = 0x0400000; WQF_SZ = 32*40*1024
W1F  = 0x0600000; W1F_SZ = 54*40*1024
W2F  = 0x0900000; W2F_SZ = 20*108*1024
WOF  = 0x0C00000; WOF_SZ = 20*40*1024
OF   = 0x0D00000; OF_SZ  = 64*40*1024
PART = 0x1000000; PART1  = 64*20*2048
NPART = 7
WS_SZ = 268435456
X_SZ = 2048*640*2
QSCALE = (20.0 ** -0.5) * 1.4426950408889634
import struct
def f2u(f): return struct.unpack("<I", struct.pack("<f", f))[0]
```

```python
import sys, importlib
from layout import *
KNAME = "parallel_sum__grouped_kv_mqa__dense_activation_silu__prompt"
HDR = """; Kernarg layout (88 bytes, ptrs only): A_x, A_wq, A_wk, A_wv, A_wo, B_x, B_w1, B_w2, d_out, d_debug, d_ws
"""
def build(kernels, out):
    s = HDR
    for k in kernels:
        s += f"; @launch kernel={k[0]} grid=({k[4]},1,1) block=({k[5]},1,1) lds={k[6]}\n"
    s += '.amdgcn_target "amdgcn-amd-amdhsa--gfx950"\n.text\n'
    for k in kernels:
        s += k[1] + k[2]
        for e in k[3]: print("HAZARD", e)
    open(out, "w").write(s)
    return s
if __name__ == "__main__":
    import k0
    ks = []
    t, d, e = k0.gen_k0("prep_kernel"); ks.append(("prep_kernel", t, d, e, 308, 256, 71680))
    which = sys.argv[2] if len(sys.argv) > 2 else "all"
    if which != "k0":
        import k2, k3
        ks += k2.kernels(which) + k3.kernels(which)
    build(ks, sys.argv[1])
```

```python
import re

_GUID = [0]
class Asm:
    def __init__(self):
        self.lines = []
    def __call__(self, s, *a):
        for ln in s.split("\n"):
            ln = ln.strip()
            if ln: self.lines.append(ln)
    def label(self, name): self.lines.append(name + ":")
    def uid(self, p="L"):
        _GUID[0] += 1
        return f"{p}_{_GUID[0]}"
    def c(self, txt): self.lines.append("; " + txt)
    def text(self): return "\n".join(("" if l.endswith(":") or l.startswith(";") or l.startswith(".") else "    ") + l for l in self.lines) + "\n"

def vr(a, n=1): return f"v{a}" if n == 1 else f"v[{a}:{a+n-1}]"
def sr(a, n=1): return f"s{a}" if n == 1 else f"s[{a}:{a+n-1}]"
def ar(a, n=1): return f"a{a}" if n == 1 else f"a[{a}:{a+n-1}]"

_REG = re.compile(r"^(-|\|)?(abs\()?([vsa])(\d+|\[(\d+):(\d+)\])\)?\|?$")
def _regs(tok):
    tok = tok.strip()
    tok = tok.replace("neg(", "").replace("abs(", "").replace(")", "").lstrip("-").strip("|")
    m = re.match(r"^([vsa])(\d+)$", tok)
    if m: return [(m.group(1), int(m.group(2)))]
    m = re.match(r"^([vsa])\[(\d+):(\d+)\]$", tok)
    if m: return [(m.group(1), i) for i in range(int(m.group(2)), int(m.group(3)) + 1)]
    if tok == "vcc": return [("s", 106), ("s", 107)]
    if tok == "exec": return [("x", 0)]
    if tok == "m0": return [("m", 0)]
    return []

TRANS = ("v_exp_f32", "v_log_f32", "v_rcp_f32", "v_rsq_f32", "v_sqrt_f32", "v_sin_f32", "v_cos_f32", "v_exp_f16", "v_rcp_f16", "v_rcp_iflag_f32")
def passes(op):
    if "32x32" in op: return 8
    if "16x16" in op: return 4
    if "4x4" in op: return 2
    return 8

class Ins:
    def __init__(self, text):
        self.text = text
        t = text.split(";")[0].strip()
        parts = t.split(None, 1)
        self.op = parts[0]
        o = self.op
        for suf in ("_e32", "_e64", "_sdwa", "_dpp"):
            if o.endswith(suf): o = o[:-len(suf)]
        self.base = o
        rest = parts[1] if len(parts) > 1 else ""
        toks = [x.strip() for x in rest.split(",")] if rest else []
        ops = []
        for x in toks:
            ops.append(x.split()[0] if x else x)
        self.mods = rest
        self.ops = ops
        self.w = []; self.r = []
        self.kind = "other"
        R = lambda i: _regs(ops[i]) if i < len(ops) else []
        if o.startswith("v_mfma"):
            self.kind = "mfma"; self.w = R(0); self.a = R(1); self.b = R(2); self.cc = R(3); self.r = self.a + self.b + self.cc
            self.p = passes(o)
        elif o.startswith("v_cmp"):
            self.kind = "valu"; self.w = R(0); self.r = sum((R(i) for i in range(1, len(ops))), [])
            if o.startswith("v_cmpx"): self.w += [("x", 0)]
        elif o in ("v_readfirstlane_b32", "v_readlane_b32"):
            self.kind = "valu"; self.w = R(0); self.r = sum((R(i) for i in range(1, len(ops))), [])
        elif o.startswith("v_permlane") and "swap" in o:
            self.kind = "valu"; self.w = R(0) + R(1); self.r = R(0) + R(1)
        elif o.startswith("v_"):
            self.kind = "valu"; self.w = R(0)
            st = 1
            if o in ("v_add_co_u32", "v_addc_co_u32", "v_sub_co_u32", "v_subb_co_u32", "v_div_scale_f32", "v_mad_u64_u32"):
                self.w += R(1); st = 2
            self.r = sum((R(i) for i in range(st, len(ops))), [])
            if o in ("v_fmac_f32", "v_fmamk_f32x", "v_dot2c_f32_bf16", "v_pk_fmac_f16", "v_writelane_b32"): self.r += R(0)
            if "UNUSED_PRESERVE" in rest or (o in ("v_exp_f16",) and "op_sel" in rest): self.r += R(0)
            if o == "v_cndmask_b32" and len(ops) == 3: self.r += _regs("vcc")
            if o == "v_cndmask_b32" and len(ops) == 4 and self.op.endswith("_e32"): pass
        elif o.startswith("ds_"):
            self.kind = "ds"
            if o.startswith(("ds_read", "ds_bpermute", "ds_permute", "ds_swizzle")) or "_rtn" in o:
                self.w = R(0); self.r = sum((R(i) for i in range(1, len(ops))), [])
            else:
                self.r = sum((R(i) for i in range(0, len(ops))), [])
        elif o.startswith(("buffer_", "global_", "flat_")):
            self.kind = "vmem"
            lds = re.search(r"\blds\b", rest) is not None or "load_lds" in o
            self.lds = lds
            if "load" in o and not lds:
                self.w = R(0); self.r = sum((R(i) for i in range(1, len(ops))), [])
            elif "atomic" in o and "sc0" in rest and o.startswith("buffer_"):
                self.w = R(0); self.r = sum((R(i) for i in range(0, len(ops))), [])
            elif "atomic" in o and "sc0" in rest and o.startswith("global_"):
                self.w = R(0); self.r = sum((R(i) for i in range(1, len(ops))), [])
            else:
                self.r = sum((R(i) for i in range(0, len(ops))), [])
            if lds: self.r += [("m", 0)]
            self.store = "store" in o
            self.wide = ("x3" in o or "x4" in o)
            self.data = []
            if self.store:
                self.data = R(0) if o.startswith("buffer_") else R(1)
        elif o.startswith("s_"):
            self.kind = "salu"
            if o in ("s_waitcnt", "s_barrier", "s_nop", "s_endpgm", "s_branch", "s_setprio", "s_sleep") or o.startswith("s_cbranch"):
                pass
            elif o.startswith("s_cmp") or o.startswith("s_bitcmp"):
                self.r = sum((R(i) for i in range(len(ops))), [])
            else:
                self.w = R(0); self.r = sum((R(i) for i in range(1, len(ops))), [])
                if "saveexec" in o: self.w += [("x", 0)]
        self.states = 1
        if o == "s_nop": self.states = int(ops[0], 0) + 1
        self.trans = o in TRANS
        self.dpp = ("row_" in rest or "quad_perm" in rest or "wave_" in rest or "row_bcast" in rest)

def check_hazards(lines, name="", window=24):
    ins = []
    for l in lines:
        l = l.strip()
        if not l or l.startswith(";") or l.startswith(".") or l.endswith(":"): continue
        ins.append(Ins(l))
    errs = []
    def vset(x): return set(r for r in x if r[0] in "va")
    def sset(x): return set(r for r in x if r[0] == "s")
    for i, c in enumerate(ins):
        dist = 0
        for j in range(i - 1, max(-1, i - window), -1):
            p = ins[j]
            need = 0; why = ""
            pw, cr, cw = set(p.w), set(c.r), set(c.w)
            if p.kind == "mfma":
                D = vset(p.w)
                if c.kind == "mfma":
                    if D & (vset(c.a) | vset(c.b)): need, why = {2: 5, 4: 8, 8: 12}[p.p], "mfma D->mfma A/B"
                    elif D & vset(c.cc):
                        same = (p.w == c.cc and p.p == c.p)
                        if not same: need, why = {2: 4, 4: 6, 8: 10}[p.p], "mfma D->mfma C overlap"
                        elif p.p == 2: need, why = 2, "mfma 2pass chain"
                    elif D & vset(c.w) and not (p.w == c.w):
                        need, why = {2: 5, 4: 8, 8: 12}[p.p], "mfma D WAW mfma partial"
                elif c.kind in ("valu", "vmem", "ds"):
                    if D & (vset(c.r) | vset(c.w)): need, why = {2: 5, 4: 8, 8: 12}[p.p], "mfma D->valu/mem"
                if c.kind == "valu" and vset(p.cc) & vset(c.w):
                    n2 = {2: 1, 4: 3, 8: 7}[p.p]
                    if n2 > need: need, why = n2, "mfma C WAR valu"
            if p.kind == "valu":
                if c.kind == "mfma" and vset(p.w) & vset(c.r): need, why = max(need, 2), "valu->mfma"
                if c.kind == "mfma" and ("x", 0) in pw: need, why = max(need, 4), "valu exec->mfma"
                if c.kind == "valu":
                    if p.trans and not c.trans and vset(p.w) & (vset(c.r)): need, why = max(need, 1), "trans->valu"
                    if p.trans and c.trans and vset(p.w) & vset(c.r): need, why = max(need, 1), "trans->trans(conservative)"
                    if c.base.startswith("v_permlane") and vset(p.w) & vset(c.r): need, why = max(need, 2), "valu->permlane"
                    if c.dpp and vset(p.w) & vset(c.r): need, why = max(need, 2), "valu->dpp"
                    if c.dpp and ("x", 0) in pw: need, why = max(need, 5), "valu exec->dpp"
                    if c.base in ("v_readfirstlane_b32", "v_readlane_b32") and vset(p.w) & vset(c.r): need, why = max(need, 1), "valu->readlane"
                    if sset(p.w) & sset(c.r):
                        n = 4 if c.base in ("v_readlane_b32", "v_writelane_b32") else 2
                        need, why = max(need, n), "valu sgpr->valu"
                    if "sdwa" in p.op and vset(p.w) & vset(c.r): need, why = max(need, 1), "sdwa->valu"
                if c.kind == "vmem" and sset(p.w) & sset(c.r): need, why = max(need, 5), "valu sgpr->vmem"
            if p.kind == "vmem" and getattr(p, "store", False) and p.wide:
                if c.kind == "valu" and vset(p.data) & vset(c.w): need, why = max(need, 2), "store data WAR"
                elif c.kind in ("ds", "vmem", "mfma") and vset(p.data) & vset(c.w): need, why = max(need, 1), "store data WAR"
            if p.kind == "salu" and ("m", 0) in pw and c.kind == "vmem" and getattr(c, "lds", False): need, why = max(need, 1), "m0->ldsdma"
            if need > dist:
                errs.append(f"[{name}] {why}: need {need} have {dist}\n    P: {p.text}\n    C: {c.text}")
            dist += p.states
            if dist >= 20: break
    return errs

import os
def prof_on(): return bool(os.environ.get("PROF"))
def rt_begin(a, sreg=90):
    if prof_on(): a(f"s_memrealtime s[{sreg}:{sreg+1}]")
def rt_end(a, wsreg, off, vtmp, sreg=90):
    if not prof_on(): return
    a(f"s_memrealtime s[{sreg+2}:{sreg+3}]")
    a("s_waitcnt lgkmcnt(0)")
    a(f"s_add_u32 s{sreg+4}, s{wsreg}, {off}"); a(f"s_addc_u32 s{sreg+5}, s{wsreg+1}, 0")
    a(f"s_lshl_b32 s{sreg+1}, s2, 4"); a(f"s_add_u32 s{sreg+1}, s{sreg+1}, s3"); a(f"s_lshl_b32 s{sreg+1}, s{sreg+1}, 3")
    a(f"v_mov_b32 v{vtmp}, s{sreg+1}"); a(f"v_mov_b32 v{vtmp+2}, s{sreg}"); a(f"v_mov_b32 v{vtmp+3}, s{sreg+2}")
    a(f"global_store_dwordx2 v{vtmp}, v[{vtmp+2}:{vtmp+3}], s[{sreg+4}:{sreg+5}]")

def dbg_on(): return bool(os.environ.get("DBG"))
def dbg_mark(a, launch_idx, slot, first=False, vt=196, sreg=84):
    if not dbg_on(): return
    mode = os.environ.get("DBG")
    delta = {"own": 0, "first": -512*launch_idx, "last": 512*(2-launch_idx)}[mode]
    a(f"s_memrealtime s[{sreg}:{sreg+1}]")
    a(f"s_load_dwordx2 s[{sreg+2}:{sreg+3}], s[0:1], 72")
    a(f"s_load_dwordx2 s[{sreg+4}:{sreg+5}], s[0:1], 80")
    a("s_waitcnt lgkmcnt(0)")
    a(f"s_add_u32 s{sreg+4}, s{sreg+4}, 0x8300000"); a(f"s_addc_u32 s{sreg+5}, s{sreg+5}, 0")
    if delta < 0:
        a(f"s_sub_u32 s{sreg+2}, s{sreg+2}, {-delta}"); a(f"s_subb_u32 s{sreg+3}, s{sreg+3}, 0")
    elif delta > 0:
        a(f"s_add_u32 s{sreg+2}, s{sreg+2}, {delta}"); a(f"s_addc_u32 s{sreg+3}, s{sreg+3}, 0")
    l = a.uid("dbgf")
    a("v_cmp_eq_u32 vcc, 0, v0")
    a(f"s_and_saveexec_b64 s[{sreg+6}:{sreg+7}], vcc")
    a(f"s_cbranch_execz {l}")
    a(f"v_mov_b32 v{vt}, 0")
    if first:
        a("s_cmp_lg_u32 s2, 0"); a(f"s_cbranch_scc1 {l}")
        a(f"v_mov_b32 v{vt+1}, s{sreg}")
        a(f"global_store_dword v{vt}, v{vt+1}, s[{sreg+4}:{sreg+5}]")
        a(f"global_store_dword v{vt}, v{vt+1}, s[{sreg+2}:{sreg+3}] offset:60")
        a("s_waitcnt vmcnt(0)")
    else:
        a(f"global_load_dword v{vt+1}, v{vt}, s[{sreg+4}:{sreg+5}]")
        a("s_waitcnt vmcnt(0)")
        a(f"v_sub_u32 v{vt+1}, s{sreg}, v{vt+1}")
        a(f"global_atomic_umax v{vt}, v{vt+1}, s[{sreg+2}:{sreg+3}] offset:{4*slot}")
        a(f"v_not_b32 v{vt+1}, v{vt+1}")
        a(f"global_atomic_umax v{vt}, v{vt+1}, s[{sreg+2}:{sreg+3}] offset:{4*slot+4}")
        a("s_waitcnt vmcnt(0)")
    a.label(l)
    a(f"s_mov_b64 exec, s[{sreg+6}:{sreg+7}]")
```

```python
from asmlib import *
from layout import *

def srd(a, d, ptr, size, off=0):
    if off:
        a(f"s_add_u32 s{d}, s{ptr}, {off}")
        a(f"s_addc_u32 s{d+1}, s{ptr+1}, 0")
    else:
        a(f"s_mov_b32 s{d}, s{ptr}")
        a(f"s_mov_b32 s{d+1}, s{ptr+1}")
    a(f"s_mov_b32 s{d+2}, {size}")
    a(f"s_mov_b32 s{d+3}, 0x20000")

def gen_k0(name="prep_kernel"):
    a = Asm()
    NLN = 128; NJOB = 720
    a(f".globl {name}\n.p2align 8\n.type {name},@function")
    a.label(name)
    a(f"s_cmp_ge_u32 s2, {NLN + NJOB//4}")
    a(f"s_cbranch_scc1 {name}_end")
    rt_begin(a)
    dbg_mark(a, 0, 0, first=True)
    a("s_load_dwordx8 s[4:11], s[0:1], 0")
    a("s_load_dwordx2 s[12:13], s[0:1], 32")
    a("s_load_dwordx4 s[16:19], s[0:1], 48")
    a("s_load_dwordx2 s[20:21], s[0:1], 80")
    a("v_lshrrev_b32 v1, 6, v0")
    a("v_and_b32 v0, 63, v0")
    a("v_readfirstlane_b32 s3, v1")
    a("v_lshlrev_b32 v2, 4, v0")
    a(f"s_cmp_ge_u32 s2, {NLN}")
    a(f"s_cbranch_scc1 {name}_relayout")
    a("s_waitcnt lgkmcnt(0)")
    srd(a, 24, 4, X_SZ)
    srd(a, 28, 8, 25600)
    srd(a, 32, 10, 25600)
    srd(a, 36, 20, KMX + KMX_SZ)
    a("v_lshrrev_b32 v3, 4, v0")
    a("v_and_b32 v4, 15, v0")
    a("s_lshl_b32 s22, s2, 4")
    a("s_lshl_b32 s23, s3, 2")
    a("s_add_u32 s22, s22, s23")
    a("v_add_u32 v5, s22, v3")
    a("v_mul_u32_u24 v5, 1280, v5")
    a("v_lshl_add_u32 v5, v4, 4, v5")
    for j in range(5):
        a(f"buffer_load_dwordx4 v[{16+4*j}:{19+4*j}], v5, s[24:27], 0 offen offset:{256*j}")
    a("s_lshl_b32 s40, s3, 10")
    for j in range(6):
        a(f"s_add_u32 s41, s40, {j*4096}")
        a("s_mov_b32 m0, s41")
        a(f"s_add_u32 s42, s41, 25600")
        a("buffer_load_dwordx4 v2, s[28:31], s41 offen lds")
        a("s_mov_b32 m0, s42")
        a("s_nop 0")
        a("buffer_load_dwordx4 v2, s[32:35], s41 offen lds")
    l = a.uid("k0_nolast")
    a("s_cmp_lg_u32 s3, 0")
    a(f"s_cbranch_scc1 {l}")
    a("s_movk_i32 s41, 24576")
    a("s_mov_b32 m0, s41")
    a("s_mov_b32 s42, 50176")
    a("buffer_load_dwordx4 v2, s[28:31], s41 offen lds")
    a("s_mov_b32 m0, s42")
    a("s_nop 0")
    a("buffer_load_dwordx4 v2, s[32:35], s41 offen lds")
    a.label(l)
    a("v_mov_b32 v6, 0x3f803f80")
    a("v_mov_b32 v7, 0")
    a("v_mov_b32 v8, 0")
    a("s_waitcnt vmcnt(12)")
    for i in range(20):
        a(f"v_dot2_f32_bf16 v7, v{16+i}, v6, v7")
        a(f"v_dot2_f32_bf16 v8, v{16+i}, v{16+i}, v8")
    for sh in (8, 4, 2, 1):
        a("s_nop 1")
        a(f"v_add_f32_dpp v7, v7, v7 row_ror:{sh} row_mask:0xf bank_mask:0xf")
        a(f"v_add_f32_dpp v8, v8, v8 row_ror:{sh} row_mask:0xf bank_mask:0xf")
    a("s_nop 0")
    a(f"v_mul_f32 v7, {f2u(1/640.):#x}, v7")
    a(f"v_mul_f32 v8, {f2u(1/640.):#x}, v8")
    a("v_fma_f32 v8, -v7, v7, v8")
    a("v_max_f32 v8, 0, v8")
    a(f"v_add_f32 v8, {f2u(1e-5):#x}, v8")
    a("v_rsq_f32 v8, v8")
    a("s_nop 0")
    a("v_mul_f32 v9, v7, v8")
    for i in range(20):
        a(f"v_lshlrev_b32 v10, 16, v{16+i}")
        a(f"v_and_b32 v11, 0xffff0000, v{16+i}")
        a(f"v_fma_f32 v10, v10, v8, -v9")
        a(f"v_fma_f32 v11, v11, v8, -v9")
        a(f"v_cvt_pk_bf16_f32 v{16+i}, v10, v11")
    a("v_lshrrev_b32 v10, 2, v4")
    a("v_lshlrev_b32 v10, 10, v10")
    a("v_and_b32 v11, 3, v4")
    a("v_lshl_add_u32 v10, v11, 8, v10")
    a("v_add_u32 v11, s23, v3")
    a("v_lshl_add_u32 v10, v11, 4, v10")
    a("v_add_u32 v10, 51200, v10")
    for j in range(5):
        a(f"ds_write_b128 v10, v[{16+4*j}:{19+4*j}] offset:{j*4096}")
    a("s_waitcnt vmcnt(0) lgkmcnt(0)")
    a("s_barrier")
    XF = 32; WF = 112
    a("v_add_u32 v12, 51200, v2")
    a("v_lshrrev_b32 v13, 4, v0")
    a("v_and_b32 v14, 15, v0")
    a("v_lshrrev_b32 v15, 2, v14")
    a("v_lshl_add_u32 v15, v13, 3, v15")
    a("v_mul_u32_u24 v15, 40, v15")
    a("v_and_b32 v16, 3, v14")
    a("v_lshl_add_u32 v15, v16, 3, v15")
    a("s_and_b32 s43, s3, 1")
    a("s_lshl_b32 s43, s43, 5")
    a("s_lshr_b32 s44, s3, 1")
    a("s_mul_i32 s44, s44, 25600")
    a("s_add_u32 s43, s43, s44")
    a("v_add_u32 v15, s43, v15")
    for ks in range(20):
        a(f"ds_read_b128 v[{XF+4*ks}:{XF+4*ks+3}], v12 offset:{ks*1024}")
        a(f"ds_read_b64_tr_b16 v[{WF+4*ks}:{WF+4*ks+1}], v15 offset:{ks*1280}")
        a(f"ds_read_b64_tr_b16 v[{WF+4*ks+2}:{WF+4*ks+3}], v15 offset:{ks*1280+160}")
        if ks % 4 == 3: a("s_waitcnt lgkmcnt(0)")
    a("s_waitcnt lgkmcnt(0)")
    a("v_lshrrev_b32 v16, 1, v13")
    a("v_lshlrev_b32 v16, 10, v16")
    a("v_and_b32 v17, 1, v13")
    a("v_lshl_add_u32 v16, v17, 9, v16")
    a("s_and_b32 s45, s2, 1")
    a("s_lshl_b32 s46, s45, 4")
    a("v_add_u32 v18, s46, v14")
    a("v_lshl_add_u32 v16, v18, 4, v16")
    a("s_lshr_b32 s47, s2, 1")
    a("s_mul_i32 s48, s47, 40960")
    a("s_lshl_b32 s49, s3, 11")
    a("s_add_u32 s48, s48, s49")
    assert XN == 0
    lk = [a.uid("k0_st") for _ in range(4)]
    lst_done = a.uid("k0_stdone")
    for w in range(4):
        if w < 3:
            a(f"s_cmp_lg_u32 s3, {w}")
            a(f"s_cbranch_scc1 {lk[w]}")
        for j in range(5):
            ks = w + 4*j
            a(f"s_add_u32 s50, s48, {j*8192}")
            a(f"buffer_store_dwordx4 v[{XF+4*ks}:{XF+4*ks+3}], v16, s[36:39], s50 offen")
        if w < 3:
            a(f"s_branch {lst_done}")
            a.label(lk[w])
    a.label(lst_done)
    lv = a.uid("k0_vpath"); ld = a.uid("k0_mdone")
    D = 192
    a("s_cmp_ge_u32 s3, 2")
    a(f"s_cbranch_scc1 {lv}")
    for ks in range(20):
        c = "0" if ks == 0 else f"v[{D}:{D+3}]"
        a(f"v_mfma_f32_16x16x32_bf16 v[{D}:{D+3}], v[{WF+4*ks}:{WF+4*ks+3}], v[{XF+4*ks}:{XF+4*ks+3}], {c}")
    a(f"s_branch {ld}")
    a.label(lv)
    for ks in range(20):
        c = "0" if ks == 0 else f"v[{D}:{D+3}]"
        a(f"v_mfma_f32_16x16x32_bf16 v[{D}:{D+3}], v[{XF+4*ks}:{XF+4*ks+3}], v[{WF+4*ks}:{WF+4*ks+3}], {c}")
    a.label(ld)
    a("s_lshl_b32 s51, s47, 12")
    a(f"s_add_u32 s51, s51, {KV}")
    a("v_and_b32 v17, 1, v13")
    a("v_lshrrev_b32 v19, 1, v13")
    a("s_nop 7")
    a(f"v_cvt_pk_bf16_f32 v20, v{D}, v{D+1}")
    a(f"v_cvt_pk_bf16_f32 v21, v{D+2}, v{D+3}")
    l0, l1, l2, l3 = (a.uid("k0_ep") for _ in range(4))
    lend = f"{name}_fin"
    a("s_cmp_eq_u32 s3, 0"); a(f"s_cbranch_scc1 {l0}")
    a("s_cmp_eq_u32 s3, 1"); a(f"s_cbranch_scc1 {l1}")
    a("s_cmp_eq_u32 s3, 2"); a(f"s_cbranch_scc1 {l2}")
    a(f"s_branch {l3}")
    def knorm(slot):
        a(f"v_mul_f32 v22, v{D}, v{D}")
        for r in range(1, 4): a(f"v_fmac_f32 v22, v{D+r}, v{D+r}")
        if slot == 1:
            a("v_cmp_eq_u32 vcc, 0, v13")
            a("s_nop 1")
            a("v_cndmask_b32 v22, 0, v22, vcc")
        a("v_mov_b32 v23, v22")
        a("s_nop 1")
        a("v_permlane32_swap_b32 v22, v23")
        a("s_nop 1")
        a("v_add_f32 v22, v22, v23")
        a("v_mov_b32 v23, v22")
        a("s_nop 1")
        a("v_permlane16_swap_b32 v22, v23")
        a("s_nop 1")
        a("v_add_f32 v22, v22, v23")
        for sh in (8, 4, 2, 1):
            a("s_nop 1")
            a(f"v_max_f32_dpp v22, v22, v22 row_ror:{sh} row_mask:0xf bank_mask:0xf")
        a("s_lshl_b32 s52, s2, 3")
        a(f"s_add_u32 s52, s52, {KMX + 4*slot}")
        a("v_mov_b32 v23, 0")
        a("v_cmp_eq_u32 vcc, 0, v0")
        a("s_and_saveexec_b64 s[54:55], vcc")
        a("buffer_store_dword v22, v23, s[36:39], s52 offen")
        a("s_mov_b64 exec, s[54:55]")
    a.label(l0)
    a("v_lshl_add_u32 v24, v17, 5, v18")
    a("v_lshlrev_b32 v24, 4, v24")
    a("v_lshl_add_u32 v24, v19, 3, v24")
    a("buffer_store_dwordx2 v[20:21], v24, s[36:39], s51 offen")
    knorm(0)
    a(f"s_branch {lend}")
    a.label(l1)
    a("v_cmp_eq_u32 vcc, 1, v13")
    a("v_mov_b32 v25, 0x3f803f80")
    a("v_mov_b32 v26, 0x00003f80")
    a("v_cndmask_b32 v20, v20, v25, vcc")
    a("v_cndmask_b32 v21, v21, v26, vcc")
    a("v_lshl_add_u32 v24, v13, 5, v18")
    a("v_lshlrev_b32 v24, 3, v24")
    a("v_add_u32 v24, 1024, v24")
    a("v_cmp_gt_u32 vcc, 2, v13")
    a("s_and_saveexec_b64 s[54:55], vcc")
    a("buffer_store_dwordx2 v[20:21], v24, s[36:39], s51 offen")
    a("s_mov_b64 exec, s[54:55]")
    knorm(1)
    a(f"s_branch {lend}")
    a.label(l3)
    a("v_cmp_gt_u32 vcc, 4, v14")
    a("s_nop 1")
    a("v_cndmask_b32 v20, 0, v20, vcc")
    a("v_cndmask_b32 v21, 0, v21, vcc")
    a("v_cmp_eq_u32 vcc, 4, v14")
    a("v_mov_b32 v25, 0x3f803f80")
    a("s_nop 0")
    a("v_cndmask_b32 v20, v20, v25, vcc")
    a("v_cndmask_b32 v21, v21, v25, vcc")
    a("v_add_u32 v14, 16, v14")
    a.label(l2)
    a("v_lshl_add_u32 v24, v17, 5, v14")
    a("v_lshlrev_b32 v24, 4, v24")
    a("v_lshl_add_u32 v24, v19, 3, v24")
    a("s_lshl_b32 s52, s45, 10")
    a("s_add_u32 s52, s52, s51")
    a("s_add_u32 s52, s52, 2048")
    a("buffer_store_dwordx2 v[20:21], v24, s[36:39], s52 offen")
    a(f"s_branch {lend}")

    a.label(f"{name}_relayout")
    a(f"s_sub_u32 s22, s2, {NLN}")
    a("s_lshl_b32 s22, s22, 2")
    a("s_add_u32 s22, s22, s3")
    a("s_mul_i32 s60, s3, 10240")
    a("s_waitcnt lgkmcnt(0)")
    lw2, lwo, lwq, lgo = (a.uid("k0_j") for _ in range(4))
    a("s_cmp_ge_u32 s22, 640"); a(f"s_cbranch_scc1 {lwq}")
    a("s_cmp_ge_u32 s22, 540"); a(f"s_cbranch_scc1 {lwo}")
    a("s_cmp_ge_u32 s22, 270"); a(f"s_cbranch_scc1 {lw2}")
    def div(dst, src, d):
        m = (1 << 32) // d + 1
        a(f"s_mul_hi_u32 s{dst}, s{src}, {m}")
    srd(a, 24, 16, 640*1728*2)
    div(46, 22, 27)
    a("s_mul_i32 s47, s46, 27"); a("s_sub_u32 s47, s22, s47")
    a("s_mov_b32 s40, 3456")
    a(f"s_mul_i32 s41, s46, {64*3456}"); a("s_lshl_b32 s48, s47, 7"); a("s_add_u32 s41, s41, s48")
    a(f"s_mul_i32 s42, s47, {2*40*1024}"); a("s_lshl_b32 s48, s46, 12"); a("s_add_u32 s42, s42, s48"); a(f"s_add_u32 s42, s42, {W1F}")
    a("s_mov_b32 s43, 40960"); a("s_mov_b32 s44, 8"); a("s_mov_b32 s45, 4")
    a(f"s_branch {lgo}")
    a.label(lw2)
    srd(a, 24, 18, 1728*640*2)
    a("s_sub_u32 s22, s22, 270")
    div(46, 22, 10)
    a("s_mul_i32 s47, s46, 10"); a("s_sub_u32 s47, s22, s47")
    a("s_mov_b32 s40, 1280")
    a(f"s_mul_i32 s41, s46, {64*1280}"); a("s_lshl_b32 s48, s47, 7"); a("s_add_u32 s41, s41, s48")
    a(f"s_mul_i32 s42, s47, {2*108*1024}"); a("s_lshl_b32 s48, s46, 12"); a("s_add_u32 s42, s42, s48"); a(f"s_add_u32 s42, s42, {W2F}")
    a(f"s_mov_b32 s43, {108*1024}"); a("s_mov_b32 s44, 4"); a("s_mov_b32 s45, 8")
    a(f"s_branch {lgo}")
    a.label(lwo)
    srd(a, 24, 12, 640*640*2)
    a("s_sub_u32 s22, s22, 540")
    div(46, 22, 10)
    a("s_mul_i32 s47, s46, 10"); a("s_sub_u32 s47, s22, s47")
    a("s_mov_b32 s40, 1280")
    a(f"s_mul_i32 s41, s46, {64*1280}"); a("s_lshl_b32 s48, s47, 7"); a("s_add_u32 s41, s41, s48")
    a(f"s_mul_i32 s42, s47, {2*40*1024}"); a("s_lshl_b32 s48, s46, 12"); a("s_add_u32 s42, s42, s48"); a(f"s_add_u32 s42, s42, {WOF}")
    a("s_mov_b32 s43, 40960"); a("s_mov_b32 s44, 8"); a("s_mov_b32 s45, 4")
    a.label(lgo)
    srd(a, 28, 20, OF)
    a("v_lshrrev_b32 v3, 3, v0")
    a("v_mul_lo_u32 v3, v3, s40")
    a("v_and_b32 v4, 7, v0")
    a("v_lshl_add_u32 v3, v4, 4, v3")
    a("s_lshl_b32 s49, s40, 3")
    a("s_mov_b32 s50, s60")
    for i in range(8):
        a("s_mov_b32 m0, s50")
        a("s_add_u32 s50, s50, 1024")
        a("buffer_load_dwordx4 v3, s[24:27], s41 offen lds")
        a("s_add_u32 s41, s41, s49")
    a("v_lshrrev_b32 v5, 5, v0")
    a("v_mul_lo_u32 v5, v5, s44")
    a("v_and_b32 v6, 15, v0")
    a("v_lshrrev_b32 v7, 2, v6")
    a("v_add_u32 v5, v5, v7")
    a("v_lshlrev_b32 v5, 7, v5")
    a("v_bfe_u32 v7, v0, 4, 1")
    a("v_lshl_add_u32 v5, v7, 5, v5")
    a("v_and_b32 v7, 3, v6")
    a("v_lshl_add_u32 v5, v7, 3, v5")
    a("v_add_u32 v5, s60, v5")
    a("s_lshl_b32 s45, s45, 7")
    a("v_add_u32 v6, s45, v5")
    a("s_waitcnt vmcnt(0)")
    for nt in range(2):
        for kk in range(4):
            r = 16 + 4*(nt*4+kk)
            a(f"ds_read_b64_tr_b16 v[{r}:{r+1}], v5 offset:{nt*64 + kk*2048}")
            a(f"ds_read_b64_tr_b16 v[{r+2}:{r+3}], v6 offset:{nt*64 + kk*2048}")
        a("s_waitcnt lgkmcnt(0)")
        for kk in range(4):
            r = 16 + 4*(nt*4+kk)
            a(f"s_add_u32 s50, s42, {kk*1024}")
            a(f"buffer_store_dwordx4 v[{r}:{r+3}], v2, s[28:31], s50 offen")
        if nt == 0: a("s_add_u32 s42, s42, s43")
    a(f"s_branch {name}_fin")
    a.label(lwq)
    srd(a, 24, 6, 640*640*2)
    srd(a, 28, 20, OF)
    a("s_sub_u32 s22, s22, 640")
    a("s_lshr_b32 s46, s22, 3")
    a("s_and_b32 s47, s22, 7")
    a(f"s_mul_i32 s41, s46, {64*1280}"); a("s_mul_i32 s48, s47, 160"); a("s_add_u32 s41, s41, s48")
    a(f"s_mul_i32 s42, s47, {4*40*1024}"); a("s_lshl_b32 s48, s46, 12"); a("s_add_u32 s42, s42, s48"); a(f"s_add_u32 s42, s42, {WQF}")
    a("s_mov_b32 s50, s60")
    a("s_movk_i32 s51, 6554")
    for i in range(10):
        a(f"v_add_u32 v3, {64*i}, v0")
        a("v_mul_lo_u32 v4, v3, s51")
        a("v_lshrrev_b32 v4, 16, v4")
        a("v_mul_u32_u24 v5, 10, v4")
        a("v_sub_u32 v3, v3, v5")
        a("v_mul_u32_u24 v4, 1280, v4")
        a("v_lshl_add_u32 v3, v3, 4, v4")
        a("s_mov_b32 m0, s50")
        a("s_add_u32 s50, s50, 1024")
        a("buffer_load_dwordx4 v3, s[24:27], s41 offen lds")
    a("v_lshrrev_b32 v5, 5, v0")
    a("v_lshlrev_b32 v5, 3, v5")
    a("v_and_b32 v6, 15, v0")
    a("v_lshrrev_b32 v7, 2, v6")
    a("v_add_u32 v5, v5, v7")
    a("v_mul_u32_u24 v5, 160, v5")
    a("v_bfe_u32 v7, v0, 4, 1")
    a("v_lshl_add_u32 v5, v7, 5, v5")
    a("v_and_b32 v8, 3, v6")
    a("v_lshl_add_u32 v5, v8, 3, v5")
    a("v_add_u32 v5, s60, v5")
    a("v_lshl_add_u32 v8, v7, 4, v6")
    a("v_cmp_gt_u32 vcc, 20, v8")
    a("v_mov_b32 v9, 0")
    a("v_mov_b32 v10, -1")
    a("v_cndmask_b32 v9, v9, v10, vcc")
    a("s_waitcnt vmcnt(0)")
    for hh in range(4):
        for kk in range(4):
            r = 16 + 4*(hh*4+kk)
            a(f"ds_read_b64_tr_b16 v[{r}:{r+1}], v5 offset:{hh*40 + kk*16*160}")
            a(f"ds_read_b64_tr_b16 v[{r+2}:{r+3}], v5 offset:{hh*40 + kk*16*160 + 4*160}")
        a("s_waitcnt lgkmcnt(0)")
        for kk in range(4):
            r = 16 + 4*(hh*4+kk)
            for x in range(4): a(f"v_and_b32 v{r+x}, v{r+x}, v9")
            a(f"s_add_u32 s50, s42, {hh*40960 + kk*1024}")
            a(f"buffer_store_dwordx4 v[{r}:{r+3}], v2, s[28:31], s50 offen")
    a.label(f"{name}_fin")
    dbg_mark(a, 0, 1, vt=196)
    rt_end(a, 20, 0x8100000, 196)
    a.label(f"{name}_end")
    a("s_endpgm")
    errs = check_hazards(a.lines, name)
    desc = kd(name, 200, 100)
    return a.text(), desc, errs

def kd(name, nv, ns=96, accum=None):
    acc = accum or ((nv + 3)//4*4)
    return f""".section .rodata,"a"
.p2align 6
.amdhsa_kernel {name}
  .amdhsa_next_free_vgpr {nv}
  .amdhsa_next_free_sgpr {ns}
  .amdhsa_accum_offset {acc}
  .amdhsa_group_segment_fixed_size 0
  .amdhsa_kernarg_size 88
  .amdhsa_user_sgpr_count 2
  .amdhsa_user_sgpr_kernarg_segment_ptr 1
  .amdhsa_system_sgpr_workgroup_id_x 1
  .amdhsa_float_denorm_mode_32 3
.end_amdhsa_kernel
.text
"""
if __name__ == "__main__":
    t, d, e = gen_k0()
    for x in e: print(x)
    open("k0.s", "w").write('.amdgcn_target "amdgcn-amd-amdhsa--gfx950"\n.text\n' + t + d)
```

```python
from asmlib import *
from layout import *
from k0 import srd, kd

def gen_k3(name="out_kernel"):
    a = Asm()
    a(f".globl {name}\n.p2align 8\n.type {name},@function")
    a.label(name)
    a("s_cmp_ge_u32 s2, 256")
    a(f"s_cbranch_scc1 {name}_end")
    rt_begin(a)
    dbg_mark(a, 2, 7, first=True, vt=8)
    a("s_load_dwordx2 s[4:5], s[0:1], 0")
    a("s_load_dwordx2 s[6:7], s[0:1], 64")
    a("s_load_dwordx2 s[20:21], s[0:1], 80")
    a("v_lshrrev_b32 v1, 6, v0")
    a("v_and_b32 v0, 63, v0")
    a("v_readfirstlane_b32 s3, v1")
    a("v_lshlrev_b32 v3, 4, v0")
    a("s_lshr_b32 s8, s2, 5"); a("s_lshl_b32 s8, s8, 3"); a("s_and_b32 s9, s2, 7"); a("s_add_u32 s8, s8, s9")
    a("s_lshr_b32 s9, s2, 3"); a("s_and_b32 s9, s9, 3")
    a("s_waitcnt lgkmcnt(0)")
    srd(a, 24, 20, WOF_SZ, WOF)
    srd(a, 28, 20, OF_SZ, OF)
    srd(a, 32, 20, NPART*PART1, PART)
    srd(a, 36, 4, X_SZ)
    srd(a, 40, 6, X_SZ)
    a("s_mul_i32 s10, s9, 204800")
    a("s_mul_i32 s11, s3, 10240")
    a("s_add_u32 s10, s10, s11")
    a("s_mul_i32 s12, s8, 40960")
    a("s_add_u32 s12, s12, s11")
    BF = 16; AF = 56
    for k in range(10):
        a(f"s_add_u32 s13, s12, {(k//4)*4096}")
        a(f"buffer_load_dwordx4 v[{BF+4*k}:{BF+4*k+3}], v3, s[28:31], s13 offen offset:{(k%4)*1024}")
        for j in range(5):
            r = AF + 4*(5*k + j)
            a(f"s_add_u32 s13, s10, {j*40960 + (k//4)*4096}")
            a(f"buffer_load_dwordx4 v[{r}:{r+3}], v3, s[24:27], s13 offen offset:{(k%4)*1024}")
    a("s_and_b32 s14, s3, 1"); a("s_lshl_b32 s14, s14, 3")
    a("v_add_u32 v4, s14, v3")
    a("s_mul_i32 s15, s8, 20"); a("s_mul_i32 s16, s9, 5"); a("s_add_u32 s15, s15, s16")
    a("s_lshl_b32 s15, s15, 11")
    a("s_lshr_b32 s16, s3, 1"); a("s_lshl_b32 s16, s16, 10"); a("s_add_u32 s15, s15, s16")
    a("v_and_b32 v5, 31, v0"); a("s_lshl_b32 s17, s8, 5"); a("v_add_u32 v5, s17, v5")
    a("v_mul_u32_u24 v5, 1280, v5")
    a("v_lshrrev_b32 v6, 5, v0"); a("v_lshl_add_u32 v5, v6, 3, v5")
    a("s_mul_i32 s17, s9, 320"); a("s_lshl_b32 s18, s3, 4"); a("s_add_u32 s17, s17, s18")
    a("v_add_u32 v5, s17, v5")
    ACC = 0; PA = 80; XA = 150
    def mf(k):
        for j in range(5):
            r = AF + 4*(5*k + j)
            c = "0" if k == 0 else f"a[{ACC+16*j}:{ACC+16*j+15}]"
            a(f"v_mfma_f32_32x32x16_bf16 a[{ACC+16*j}:{ACC+16*j+15}], v[{r}:{r+3}], v[{BF+4*k}:{BF+4*k+3}], {c}")
    issued = 60
    extra = 0
    pl = [(g, j) for g in range(NPART) for j in range(5)]
    for k in range(10):
        a(f"s_waitcnt vmcnt({60 - 6*(k+1) + extra})")
        mf(k)
        for (g, j) in pl[4*k:4*k+4]:
            a(f"s_add_u32 s13, s15, {g*PART1 + j*2048}")
            a(f"buffer_load_dwordx2 a[{PA+2*(5*g+j)}:{PA+2*(5*g+j)+1}], v4, s[32:35], s13 offen")
            extra += 1
    for j in range(5):
        a(f"buffer_load_dwordx2 a[{XA+2*j}:{XA+2*j+1}], v5, s[36:39], 0 offen offset:{64*j}")
    a("s_mul_i32 s19, s3, 20480")
    a("v_add_u32 v7, s19, v3")
    a("s_nop 7")
    a("s_nop 7")
    for j in range(5):
        for i in range(4):
            a(f"ds_write_b128 v7, a[{ACC+16*j+4*i}:{ACC+16*j+4*i+3}] offset:{(j*4+i)*1024}")
    a("s_waitcnt lgkmcnt(0)")
    a("s_barrier")
    a("s_lshl_b32 s19, s3, 10")
    a("v_add_u32 v7, s19, v3")
    a("v_add_u32 v8, 40960, v7")
    R = 16
    for j in range(5):
        for src in range(4):
            r = R + 4*(4*j + src)
            a(f"ds_read_b128 v[{r}:{r+3}], v{7 + src//2} offset:{(src%2)*20480 + j*4096}")
        if j % 2 == 1 or j == 4: a("s_waitcnt lgkmcnt(0)")
    S = 100
    for j in range(5):
        for r in range(4):
            a(f"v_add_f32 v{S+4*j+r}, v{R+16*j+r}, v{R+16*j+4+r}")
            a(f"v_add_f32 v{R+16*j+8+r}, v{R+16*j+8+r}, v{R+16*j+12+r}")
        for r in range(4):
            a(f"v_add_f32 v{S+4*j+r}, v{S+4*j+r}, v{R+16*j+8+r}")
    a("s_waitcnt vmcnt(0)")
    T = 120
    def addq(j, areg):
        a(f"v_accvgpr_read_b32 v{T}, a{areg}")
        a(f"v_accvgpr_read_b32 v{T+1}, a{areg+1}")
        a(f"v_lshlrev_b32 v{T+2}, 16, v{T}")
        a(f"v_and_b32 v{T+3}, 0xffff0000, v{T}")
        a(f"v_lshlrev_b32 v{T+4}, 16, v{T+1}")
        a(f"v_and_b32 v{T+5}, 0xffff0000, v{T+1}")
        for r in range(4): a(f"v_add_f32 v{S+4*j+r}, v{S+4*j+r}, v{T+2+r}")
    for j in range(5):
        for g in range(NPART): addq(j, PA + 2*(5*g + j))
        addq(j, XA + 2*j)
        a(f"v_cvt_pk_bf16_f32 v{S+4*j}, v{S+4*j}, v{S+4*j+1}")
        a(f"v_cvt_pk_bf16_f32 v{S+4*j+1}, v{S+4*j+2}, v{S+4*j+3}")
        a(f"buffer_store_dwordx2 v[{S+4*j}:{S+4*j+1}], v5, s[40:43], 0 offen offset:{64*j}")
    dbg_mark(a, 2, 8, vt=8)
    rt_end(a, 20, 0x8200000, 124)
    a.label(f"{name}_end")
    a("s_endpgm")
    errs = check_hazards(a.lines, name)
    return a.text(), kd(name, 256 + 160, 100, accum=256), errs

def kernels(which):
    if which != "all": return []
    t, d, e = gen_k3()
    return [("out_kernel", t, d, e, 256, 256, 81920)]
```

```python
import re

_GUID = [0]
class Asm:
    def __init__(self):
        self.lines = []
    def __call__(self, s, *a):
        for ln in s.split("\n"):
            ln = ln.strip()
            if ln: self.lines.append(ln)
    def label(self, name): self.lines.append(name + ":")
    def uid(self, p="L"):
        _GUID[0] += 1
        return f"{p}_{_GUID[0]}"
    def c(self, txt): self.lines.append("; " + txt)
    def text(self): return "\n".join(("" if l.endswith(":") or l.startswith(";") or l.startswith(".") else "    ") + l for l in self.lines) + "\n"

def vr(a, n=1): return f"v{a}" if n == 1 else f"v[{a}:{a+n-1}]"
def sr(a, n=1): return f"s{a}" if n == 1 else f"s[{a}:{a+n-1}]"
def ar(a, n=1): return f"a{a}" if n == 1 else f"a[{a}:{a+n-1}]"

_REG = re.compile(r"^(-|\|)?(abs\()?([vsa])(\d+|\[(\d+):(\d+)\])\)?\|?$")
def _regs(tok):
    tok = tok.strip()
    tok = tok.replace("neg(", "").replace("abs(", "").replace(")", "").lstrip("-").strip("|")
    m = re.match(r"^([vsa])(\d+)$", tok)
    if m: return [(m.group(1), int(m.group(2)))]
    m = re.match(r"^([vsa])\[(\d+):(\d+)\]$", tok)
    if m: return [(m.group(1), i) for i in range(int(m.group(2)), int(m.group(3)) + 1)]
    if tok == "vcc": return [("s", 106), ("s", 107)]
    if tok == "exec": return [("x", 0)]
    if tok == "m0": return [("m", 0)]
    return []

TRANS = ("v_exp_f32", "v_log_f32", "v_rcp_f32", "v_rsq_f32", "v_sqrt_f32", "v_sin_f32", "v_cos_f32", "v_exp_f16", "v_rcp_f16", "v_rcp_iflag_f32")
def passes(op):
    if "32x32" in op: return 8
    if "16x16" in op: return 4
    if "4x4" in op: return 2
    return 8

class Ins:
    def __init__(self, text):
        self.text = text
        t = text.split(";")[0].strip()
        parts = t.split(None, 1)
        self.op = parts[0]
        o = self.op
        for suf in ("_e32", "_e64", "_sdwa", "_dpp"):
            if o.endswith(suf): o = o[:-len(suf)]
        self.base = o
        rest = parts[1] if len(parts) > 1 else ""
        toks = [x.strip() for x in rest.split(",")] if rest else []
        ops = []
        for x in toks:
            ops.append(x.split()[0] if x else x)
        self.mods = rest
        self.ops = ops
        self.w = []; self.r = []
        self.kind = "other"
        R = lambda i: _regs(ops[i]) if i < len(ops) else []
        if o.startswith("v_mfma"):
            self.kind = "mfma"; self.w = R(0); self.a = R(1); self.b = R(2); self.cc = R(3); self.r = self.a + self.b + self.cc
            self.p = passes(o)
        elif o.startswith("v_cmp"):
            self.kind = "valu"; self.w = R(0); self.r = sum((R(i) for i in range(1, len(ops))), [])
            if o.startswith("v_cmpx"): self.w += [("x", 0)]
        elif o in ("v_readfirstlane_b32", "v_readlane_b32"):
            self.kind = "valu"; self.w = R(0); self.r = sum((R(i) for i in range(1, len(ops))), [])
        elif o.startswith("v_permlane") and "swap" in o:
            self.kind = "valu"; self.w = R(0) + R(1); self.r = R(0) + R(1)
        elif o.startswith("v_"):
            self.kind = "valu"; self.w = R(0)
            st = 1
            if o in ("v_add_co_u32", "v_addc_co_u32", "v_sub_co_u32", "v_subb_co_u32", "v_div_scale_f32", "v_mad_u64_u32"):
                self.w += R(1); st = 2
            self.r = sum((R(i) for i in range(st, len(ops))), [])
            if o in ("v_fmac_f32", "v_fmamk_f32x", "v_dot2c_f32_bf16", "v_pk_fmac_f16", "v_writelane_b32"): self.r += R(0)
            if "UNUSED_PRESERVE" in rest or (o in ("v_exp_f16",) and "op_sel" in rest): self.r += R(0)
            if o == "v_cndmask_b32" and len(ops) == 3: self.r += _regs("vcc")
            if o == "v_cndmask_b32" and len(ops) == 4 and self.op.endswith("_e32"): pass
        elif o.startswith("ds_"):
            self.kind = "ds"
            if o.startswith(("ds_read", "ds_bpermute", "ds_permute", "ds_swizzle")) or "_rtn" in o:
                self.w = R(0); self.r = sum((R(i) for i in range(1, len(ops))), [])
            else:
                self.r = sum((R(i) for i in range(0, len(ops))), [])
        elif o.startswith(("buffer_", "global_", "flat_")):
            self.kind = "vmem"
            lds = re.search(r"\blds\b", rest) is not None or "load_lds" in o
            self.lds = lds
            if "load" in o and not lds:
                self.w = R(0); self.r = sum((R(i) for i in range(1, len(ops))), [])
            elif "atomic" in o and "sc0" in rest and o.startswith("buffer_"):
                self.w = R(0); self.r = sum((R(i) for i in range(0, len(ops))), [])
            elif "atomic" in o and "sc0" in rest and o.startswith("global_"):
                self.w = R(0); self.r = sum((R(i) for i in range(1, len(ops))), [])
            else:
                self.r = sum((R(i) for i in range(0, len(ops))), [])
            if lds: self.r += [("m", 0)]
            self.store = "store" in o
            self.wide = ("x3" in o or "x4" in o)
            self.data = []
            if self.store:
                self.data = R(0) if o.startswith("buffer_") else R(1)
        elif o.startswith("s_"):
            self.kind = "salu"
            if o in ("s_waitcnt", "s_barrier", "s_nop", "s_endpgm", "s_branch", "s_setprio", "s_sleep") or o.startswith("s_cbranch"):
                pass
            elif o.startswith("s_cmp") or o.startswith("s_bitcmp"):
                self.r = sum((R(i) for i in range(len(ops))), [])
            else:
                self.w = R(0); self.r = sum((R(i) for i in range(1, len(ops))), [])
                if "saveexec" in o: self.w += [("x", 0)]
        self.states = 1
        if o == "s_nop": self.states = int(ops[0], 0) + 1
        self.trans = o in TRANS
        self.dpp = ("row_" in rest or "quad_perm" in rest or "wave_" in rest or "row_bcast" in rest)

def check_hazards(lines, name="", window=24):
    ins = []
    for l in lines:
        l = l.strip()
        if not l or l.startswith(";") or l.startswith(".") or l.endswith(":"): continue
        ins.append(Ins(l))
    errs = []
    def vset(x): return set(r for r in x if r[0] in "va")
    def sset(x): return set(r for r in x if r[0] == "s")
    for i, c in enumerate(ins):
        dist = 0
        for j in range(i - 1, max(-1, i - window), -1):
            p = ins[j]
            need = 0; why = ""
            pw, cr, cw = set(p.w), set(c.r), set(c.w)
            if p.kind == "mfma":
                D = vset(p.w)
                if c.kind == "mfma":
                    if D & (vset(c.a) | vset(c.b)): need, why = {2: 5, 4: 8, 8: 12}[p.p], "mfma D->mfma A/B"
                    elif D & vset(c.cc):
                        same = (p.w == c.cc and p.p == c.p)
                        if not same: need, why = {2: 4, 4: 6, 8: 10}[p.p], "mfma D->mfma C overlap"
                        elif p.p == 2: need, why = 2, "mfma 2pass chain"
                    elif D & vset(c.w) and not (p.w == c.w):
                        need, why = {2: 5, 4: 8, 8: 12}[p.p], "mfma D WAW mfma partial"
                elif c.kind in ("valu", "vmem", "ds"):
                    if D & (vset(c.r) | vset(c.w)): need, why = {2: 5, 4: 8, 8: 12}[p.p], "mfma D->valu/mem"
                if c.kind == "valu" and vset(p.cc) & vset(c.w):
                    n2 = {2: 1, 4: 3, 8: 7}[p.p]
                    if n2 > need: need, why = n2, "mfma C WAR valu"
            if p.kind == "valu":
                if c.kind == "mfma" and vset(p.w) & vset(c.r): need, why = max(need, 2), "valu->mfma"
                if c.kind == "mfma" and ("x", 0) in pw: need, why = max(need, 4), "valu exec->mfma"
                if c.kind == "valu":
                    if p.trans and not c.trans and vset(p.w) & (vset(c.r)): need, why = max(need, 1), "trans->valu"
                    if p.trans and c.trans and vset(p.w) & vset(c.r): need, why = max(need, 1), "trans->trans(conservative)"
                    if c.base.startswith("v_permlane") and vset(p.w) & vset(c.r): need, why = max(need, 2), "valu->permlane"
                    if c.dpp and vset(p.w) & vset(c.r): need, why = max(need, 2), "valu->dpp"
                    if c.dpp and ("x", 0) in pw: need, why = max(need, 5), "valu exec->dpp"
                    if c.base in ("v_readfirstlane_b32", "v_readlane_b32") and vset(p.w) & vset(c.r): need, why = max(need, 1), "valu->readlane"
                    if sset(p.w) & sset(c.r):
                        n = 4 if c.base in ("v_readlane_b32", "v_writelane_b32") else 2
                        need, why = max(need, n), "valu sgpr->valu"
                    if "sdwa" in p.op and vset(p.w) & vset(c.r): need, why = max(need, 1), "sdwa->valu"
                if c.kind == "vmem" and sset(p.w) & sset(c.r): need, why = max(need, 5), "valu sgpr->vmem"
            if p.kind == "vmem" and getattr(p, "store", False) and p.wide:
                if c.kind == "valu" and vset(p.data) & vset(c.w): need, why = max(need, 2), "store data WAR"
                elif c.kind in ("ds", "vmem", "mfma") and vset(p.data) & vset(c.w): need, why = max(need, 1), "store data WAR"
            if p.kind == "salu" and ("m", 0) in pw and c.kind == "vmem" and getattr(c, "lds", False): need, why = max(need, 1), "m0->ldsdma"
            if need > dist:
                errs.append(f"[{name}] {why}: need {need} have {dist}\n    P: {p.text}\n    C: {c.text}")
            dist += p.states
            if dist >= 20: break
    return errs

import os
def prof_on(): return bool(os.environ.get("PROF"))
def rt_begin(a, sreg=90):
    if prof_on(): a(f"s_memrealtime s[{sreg}:{sreg+1}]")
def rt_end(a, wsreg, off, vtmp, sreg=90):
    if not prof_on(): return
    a(f"s_memrealtime s[{sreg+2}:{sreg+3}]")
    a("s_waitcnt lgkmcnt(0)")
    a(f"s_add_u32 s{sreg+4}, s{wsreg}, {off}"); a(f"s_addc_u32 s{sreg+5}, s{wsreg+1}, 0")
    a(f"s_lshl_b32 s{sreg+1}, s2, 4"); a(f"s_add_u32 s{sreg+1}, s{sreg+1}, s3"); a(f"s_lshl_b32 s{sreg+1}, s{sreg+1}, 3")
    a(f"v_mov_b32 v{vtmp}, s{sreg+1}"); a(f"v_mov_b32 v{vtmp+2}, s{sreg}"); a(f"v_mov_b32 v{vtmp+3}, s{sreg+2}")
    a(f"global_store_dwordx2 v{vtmp}, v[{vtmp+2}:{vtmp+3}], s[{sreg+4}:{sreg+5}]")

def dbg_on(): return bool(os.environ.get("DBG"))
def dbg_mark(a, launch_idx, slot, first=False, vt=196, sreg=84, wg=None, wave=0, nl=3):
    if not dbg_on(): return
    wg = int(os.environ.get("DBGWG", "0")) if wg is None else wg
    delta = 512*(nl-1-launch_idx)
    l = a.uid("dbgf")
    a(f"s_cmp_lg_u32 s2, {wg}"); a(f"s_cbranch_scc1 {l}")
    if not first:
        a(f"s_cmp_lg_u32 s3, {wave}"); a(f"s_cbranch_scc1 {l}")
    a(f"s_memrealtime s[{sreg}:{sreg+1}]")
    a(f"s_load_dwordx2 s[{sreg+2}:{sreg+3}], s[0:1], 72")
    a("s_waitcnt lgkmcnt(0)")
    if delta > 0:
        a(f"s_add_u32 s{sreg+2}, s{sreg+2}, {delta}"); a(f"s_addc_u32 s{sreg+3}, s{sreg+3}, 0")
    a(f"v_mov_b32 v{vt}, 0")
    a(f"v_mov_b32 v{vt+1}, s{sreg}")
    a(f"global_store_dword v{vt}, v{vt+1}, s[{sreg+2}:{sreg+3}] offset:{4*slot}")
    a.label(l)
```

```python
from asmlib import *
from layout import *
from k0 import srd, kd

XNL = 0
KVL = 81920
LDS_K2 = KVL + 65536
PROF = False
PROFOFF = 0x8000000
def stamp(a, i):
    if PROF: a(f"s_memtime s[{60+2*i}:{61+2*i}]")
def stamp_rt(a, i):
    if PROF: a(f"s_memrealtime s[{60+2*i}:{61+2*i}]")
def stamp_store(a, n):
    if not PROF: return
    a("s_waitcnt lgkmcnt(0)")
    a("s_lshl_b32 s58, s2, 4"); a("s_add_u32 s58, s58, s3"); a("s_lshl_b32 s58, s58, 6")
    a(f"s_add_u32 s56, s20, {PROFOFF}"); a("s_addc_u32 s57, s21, 0")
    a("v_mov_b32 v160, s58")
    for i in range(n):
        a(f"v_mov_b32 v161, s{60+2*i}")
        a(f"global_store_dword v160, v161, s[56:57] offset:{4*i}")
        a("s_nop 1")
THR = 80.0

def mfma32(d, x, y, c): return f"v_mfma_f32_32x32x16_bf16 v[{d}:{d+15}], v[{x}:{x+3}], v[{y}:{y+3}], " + ("0" if c is None else f"v[{c}:{c+15}]")
def mfma8(d, x, y, c): return f"v_mfma_f32_32x32x8bf16_1k v[{d}:{d+15}], v[{x}:{x+1}], v[{y}:{y+1}], " + ("0" if c is None else f"v[{c}:{c+15}]")

Q1, Q2 = 4, 8
K2r, K1r = 10, 12
V0r, V1r = 16, 20
P = 24
S = (32, 48)
O = 64
E = 80
AQ = 88
BQ = 128

def attn_tile(a, t, first=False):
    off = lambda tt: (tt % 16) * 4096
    Sc, Sn = S[t & 1], S[(t + 1) & 1]
    ex = lambda i: f"v_exp_f32 v{E + i % 8}, v{Sc + i}"
    cv = lambda p, e: f"v_cvt_pk_bf16_f32 v{P + p}, v{E + e}, v{E + e + 1}"
    a("s_waitcnt lgkmcnt(3)")
    a(mfma32(Sn, K1r, Q1, None))
    a(f"ds_read_b128 v[{K1r}:{K1r+3}], v1 offset:{off(t+2)}")
    a(cv(6, 4)); a(cv(7, 6))
    for i in range(0, 4): a(ex(i))
    a("s_waitcnt lgkmcnt(3)")
    a(mfma32(O, V1r, P + 4, O))
    a(f"ds_read_b128 v[{V1r}:{V1r+3}], v1 offset:{off(t) + 3072}")
    a(cv(0, 0)); a(cv(1, 2))
    for i in range(4, 8): a(ex(i))
    a("s_waitcnt lgkmcnt(3)")
    a(mfma8(Sn, K2r, Q2, Sn))
    a(f"ds_read_b64 v[{K2r}:{K2r+1}], v2 offset:{off(t+2) + 1024}")
    a(cv(2, 4)); a(cv(3, 6))
    for i in range(8, 12): a(ex(i))
    a("s_waitcnt lgkmcnt(3)")
    a(mfma32(O, V0r, P, O))
    a(f"ds_read_b128 v[{V0r}:{V0r+3}], v1 offset:{off(t+1) + 2048}")
    a(cv(4, 0)); a(cv(5, 2))
    for i in range(12, 16): a(ex(i))

def kv_dma(a, slot):
    a(f"s_add_u32 m0, s41, {slot*16384}")
    a("s_nop 0")
    a("buffer_load_dwordx4 v3, s[28:31], s40 offen lds")
    a("buffer_load_dwordx4 v3, s[28:31], s40 offen offset:1024 lds")
    a("s_add_u32 s40, s40, 16384")

def gen_attn_wave(a, name, prio):
    a("s_lshr_b32 s6, s3, 1")
    a("s_lshl_b32 s7, s4, 2")
    a("s_add_u32 s6, s6, s7")
    a("s_and_b32 s7, s3, 1")
    a("s_mul_i32 s42, s6, 40960")
    for i in range(10):
        a(f"buffer_load_dwordx4 v[{AQ+4*i}:{AQ+4*i+3}], v3, s[32:35], s42 offen offset:{(i%4)*1024}")
        if i % 4 == 3: a("s_add_u32 s42, s42, 4096")
    a(f"s_mov_b32 s43, {KMX}")
    a(f"buffer_load_dwordx4 v[144:147], v3, s[36:39], s43 offen")
    a("s_lshl_b32 s40, s3, 11")
    a(f"s_add_u32 s41, s40, {KVL}")
    for c in range(3): kv_dma(a, c)
    a(f"v_add_u32 v1, {KVL}, v3")
    a("v_lshlrev_b32 v2, 3, v0")
    a(f"v_add_u32 v2, {KVL}, v2")
    a("s_mul_i32 s44, s7, 40960")
    a("v_add_u32 v148, s44, v3")
    a("s_waitcnt vmcnt(17)")
    a("s_barrier")
    stamp(a, 2)
    dbg_mark(a, 1, 3, vt=160)
    if prio is not None: a(f"s_setprio {prio}")
    D = S[0]
    for i in range(3): a(f"ds_read_b128 v[{BQ+4*i}:{BQ+4*i+3}], v148 offset:{i*1024}")
    for ks in range(40):
        if ks + 3 < 40: a(f"ds_read_b128 v[{BQ+4*((ks+3)%4)}:{BQ+4*((ks+3)%4)+3}], v148 offset:{(ks+3)*1024}")
        if ks < 10: n = (9 - ks) + 7 + min(ks, 30)
        else: n = min(ks + 9, 39) - ks
        nl = min(3, 39 - ks)
        a(f"s_waitcnt vmcnt({n}) lgkmcnt({nl})")
        a(mfma32(D, AQ + 4*(ks % 10), BQ + 4*(ks % 4), None if ks == 0 else D))
        if ks + 10 < 40:
            idx = ks + 10
            rel = idx * 1024 - 8192
            if rel >= 4096 and rel % 4096 == 0: a("s_add_u32 s42, s42, 4096")
            a(f"buffer_load_dwordx4 v[{AQ+4*(ks%10)}:{AQ+4*(ks%10)+3}], v3, s[32:35], s42 offen offset:{rel % 4096}")
    a("v_max_f32 v144, v144, v146")
    a("v_max_f32 v145, v145, v147")
    for sh in (8, 4, 2, 1):
        a("s_nop 1")
        a(f"v_max_f32_dpp v144, v144, v144 row_ror:{sh} row_mask:0xf bank_mask:0xf")
        a(f"v_max_f32_dpp v145, v145, v145 row_ror:{sh} row_mask:0xf bank_mask:0xf")
    for sw in ("16", "32"):
        a("v_mov_b32 v146, v144"); a("v_mov_b32 v147, v145"); a("s_nop 1")
        a(f"v_permlane{sw}_swap_b32 v144, v146"); a(f"v_permlane{sw}_swap_b32 v145, v147"); a("s_nop 1")
        a("v_max_f32 v144, v144, v146"); a("v_max_f32 v145, v145, v147")
    a("v_add_f32 v144, v144, v145")
    a(f"s_mov_b32 s45, {f2u(QSCALE):#x}")
    for r in range(12): a(f"v_mul_f32 v{D+r}, s45, v{D+r}")
    a(f"v_mul_f32 v145, v{D}, v{D}")
    for r in range(1, 12): a(f"v_fmac_f32 v145, v{D+r}, v{D+r}")
    for r in range(4): a(f"v_cvt_pk_bf16_f32 v{Q1+r}, v{D+2*r}, v{D+2*r+1}")
    for r in range(2): a(f"v_cvt_pk_bf16_f32 v{Q2+r}, v{D+8+2*r}, v{D+8+2*r+1}")
    a("v_mov_b32 v146, v145"); a("s_nop 1")
    a("v_permlane32_swap_b32 v145, v146"); a("s_nop 1")
    a("v_add_f32 v145, v145, v146")
    a("v_mul_f32 v145, v145, v144")
    a(f"s_mov_b32 s45, {f2u(THR*THR):#x}")
    a("v_cmp_nle_f32 vcc, v145, s45")
    lfast = a.uid("attn_fast")
    a("s_nop 4")
    a(f"s_cbranch_vccz {lfast}")
    lm = a.uid("attn_maxloop")
    M = 144
    a(f"v_mov_b32 v{M}, 0xff800000")
    a("s_mov_b32 s46, 0")
    a("v_lshlrev_b32 v149, 3, v0")
    a.label(lm)
    a(f"buffer_load_dwordx4 v[{AQ}:{AQ+3}], v3, s[28:31], s46 offen")
    a(f"buffer_load_dwordx2 v[{AQ+4}:{AQ+5}], v149, s[28:31], s46 offen offset:1024")
    a("s_waitcnt vmcnt(0)")
    a(mfma32(S[1], AQ, Q1, None))
    a(mfma8(S[1], AQ+4, Q2, S[1]))
    a("s_add_u32 s46, s46, 4096")
    a("s_nop 15")
    for r in range(0, 16, 2): a(f"v_max3_f32 v{M}, v{M}, v{S[1]+r}, v{S[1]+r+1}")
    a(f"s_cmp_lt_u32 s46, {64*4096}")
    a(f"s_cbranch_scc1 {lm}")
    a(f"v_mov_b32 v145, v{M}"); a("s_nop 1")
    a(f"v_permlane32_swap_b32 v{M}, v145"); a("s_nop 1")
    a(f"v_max_f32 v{M}, v{M}, v145")
    a(f"v_xor_b32 v{M}, 0x80000000, v{M}")
    a(f"v_and_b32 v145, 0xffff0000, v{M}")
    a(f"v_sub_f32 v146, v{M}, v145")
    a("v_and_b32 v147, 0xffff0000, v146")
    a("v_sub_f32 v146, v146, v147")
    a("v_lshrrev_b32 v146, 16, v146")
    a("v_lshrrev_b32 v145, 16, v145")
    a("v_or_b32 v145, v145, v147")
    a("v_cmp_lt_u32 vcc, 31, v0")
    a("s_nop 1")
    a(f"v_cndmask_b32 v{Q2}, v{Q2}, v145, vcc")
    a(f"v_cndmask_b32 v{Q2+1}, v{Q2+1}, v146, vcc")
    a.label(lfast)
    stamp(a, 3)
    for r in range(16): a(f"v_mov_b32 v{O+r}, 0")
    for r in range(8): a(f"v_mov_b32 v{P+r}, 0")
    for r in range(8): a(f"v_mov_b32 v{E+r}, 0")
    a("s_waitcnt vmcnt(2)")
    a("s_barrier")
    kv_dma(a, 3)
    a(f"ds_read_b128 v[{K1r}:{K1r+3}], v1 offset:0")
    a(f"ds_read_b64 v[{K2r}:{K2r+1}], v2 offset:1024")
    a(f"ds_read_b128 v[{V1r}:{V1r+3}], v1 offset:3072")
    a("s_waitcnt lgkmcnt(0)")
    a(mfma32(S[0], K1r, Q1, None))
    a(mfma8(S[0], K2r, Q2, S[0]))
    a(f"ds_read_b128 v[{K1r}:{K1r+3}], v1 offset:{4096}")
    a(f"ds_read_b128 v[{V1r}:{V1r+3}], v1 offset:3072")
    a(f"ds_read_b64 v[{K2r}:{K2r+1}], v2 offset:{4096+1024}")
    a(f"ds_read_b128 v[{V0r}:{V0r+3}], v1 offset:2048")
    a("s_nop 7")
    stamp(a, 4)
    dbg_mark(a, 1, 4, vt=160)
    a("s_mov_b32 s47, 4")
    lp = a.uid("attn_loop")
    body = Asm()
    for t in range(16):
        if t % 4 == 0 and t > 0:
            body("s_waitcnt vmcnt(2) lgkmcnt(2)")
            body("s_barrier")
            kv_dma(body, (t // 4 + 3) % 4)
        attn_tile(body, t)
    a.label(lp)
    a.lines += body.lines
    a("s_sub_u32 s47, s47, 1")
    a("s_cmp_eq_u32 s47, 0")
    lout = a.uid("attn_out")
    a(f"s_cbranch_scc1 {lout}")
    a("s_waitcnt vmcnt(2) lgkmcnt(2)")
    a("s_barrier")
    kv_dma(a, 3)
    a(f"s_branch {lp}")
    a.label(lout)
    stamp(a, 5)
    dbg_mark(a, 1, 5, vt=160)
    a(f"v_cvt_pk_bf16_f32 v{P+6}, v{E+4}, v{E+5}")
    a(f"v_cvt_pk_bf16_f32 v{P+7}, v{E+6}, v{E+7}")
    a("s_waitcnt lgkmcnt(0)")
    a("s_nop 0")
    a(mfma32(O, V1r, P + 4, O))
    a("v_lshrrev_b32 v100, 5, v0")
    a("s_mul_i32 s48, s6, 5")
    a("v_add_u32 v101, s48, v100")
    a("v_and_b32 v102, 31, v0")
    a("v_lshlrev_b32 v102, 4, v102")
    def qoff(dst, q):
        a(f"v_lshrrev_b32 v103, 2, v{q}")
        a(f"v_lshlrev_b32 v{dst}, 10, v103")
        a(f"v_bfe_u32 v103, v{q}, 1, 1")
        a(f"v_lshl_add_u32 v{dst}, v103, 9, v{dst}")
        a(f"v_and_b32 v103, 1, v{q}")
        a(f"v_lshl_add_u32 v{dst}, v103, 3, v{dst}")
        a(f"v_add_u32 v{dst}, v{dst}, v102")
    qoff(104, 101)
    a("v_add_u32 v101, 2, v101")
    qoff(105, 101)
    a("s_add_u32 s48, s48, 4")
    a("v_mov_b32 v101, s48")
    qoff(106, 101)
    a("s_lshl_b32 s49, s5, 1")
    a("s_add_u32 s49, s49, s7")
    a("s_mul_i32 s49, s49, 40960")
    a(f"s_add_u32 s49, s49, {OF}")
    a(f"v_mov_b32 v108, v{O+8}")
    a(f"v_mov_b32 v109, v{O+8}")
    a("s_nop 1")
    a("v_permlane32_swap_b32 v108, v109")
    a("s_nop 1")
    a("v_rcp_f32 v109, v109")
    a("s_nop 0")
    for r in range(12): a(f"v_mul_f32 v{O+r}, v{O+r}, v109")
    for r in range(6): a(f"v_cvt_pk_bf16_f32 v{110+r}, v{O+2*r}, v{O+2*r+1}")
    a("buffer_store_dwordx2 v[110:111], v104, s[36:39], s49 offen")
    a("buffer_store_dwordx2 v[112:113], v105, s[36:39], s49 offen")
    a("v_cmp_gt_u32 vcc, 32, v0")
    a("s_and_saveexec_b64 s[50:51], vcc")
    a("buffer_store_dwordx2 v[114:115], v106, s[36:39], s49 offen")
    a("s_mov_b64 exec, s[50:51]")
    dbg_mark(a, 1, 6, vt=160)
    stamp(a, 6); stamp_rt(a, 7)
    stamp_store(a, 8)
    a("s_endpgm")
    return check_hazards(body.lines + body.lines, name + ":loop")

def gen_k2(name="main_kernel", ffn=True, prio_attn=None, prio_ffn=None):
    a = Asm()
    a(f".globl {name}\n.p2align 8\n.type {name},@function")
    a.label(name)
    a("s_cmp_ge_u32 s2, 256")
    a(f"s_cbranch_scc1 {name}_end")
    stamp_rt(a, 0); stamp(a, 1)
    dbg_mark(a, 1, 2, first=True, vt=160)
    a("s_load_dwordx2 s[20:21], s[0:1], 80")
    a("v_lshrrev_b32 v1, 6, v0")
    a("v_and_b32 v0, 63, v0")
    a("v_readfirstlane_b32 s3, v1")
    a("v_lshlrev_b32 v3, 4, v0")
    a("s_and_b32 s4, s2, 7")
    a("s_lshr_b32 s5, s2, 3")
    a("s_waitcnt lgkmcnt(0)")
    srd(a, 24, 20, XN_SZ, XN)
    srd(a, 28, 20, KV_SZ, KV)
    srd(a, 32, 20, WQF_SZ, WQF)
    srd(a, 36, 20, PART + NPART*PART1)
    a("s_mul_i32 s8, s5, 81920")
    a("s_lshl_b32 s9, s3, 10")
    a("s_add_u32 s8, s8, s9")
    for j in range(7):
        if j == 6:
            l6 = a.uid("k2_no7")
            a("s_cmp_ge_u32 s3, 8"); a(f"s_cbranch_scc1 {l6}")
        a(f"s_add_u32 m0, s9, {j*12288}")
        a("s_nop 0")
        a("buffer_load_dwordx4 v3, s[24:27], s8 offen lds")
        a("s_add_u32 s8, s8, 12288")
    a.label(l6)
    lffn = f"{name}_ffn"
    a("s_cmp_ge_u32 s3, 8")
    a(f"s_cbranch_scc1 {lffn}")
    errs = gen_attn_wave(a, name, prio_attn)
    a.label(lffn)
    if ffn:
        import k2ffn
        errs += k2ffn.gen_ffn_wave(a, name, prio_ffn)
    else:
        a("s_waitcnt vmcnt(0)")
        for i in range(17): a("s_barrier")
    a.label(f"{name}_end")
    a("s_endpgm")
    errs += check_hazards(a.lines, name)
    return a.text(), kd(name, 168, 100), errs

def kernels(which):
    global PROF
    import os
    PROF = bool(os.environ.get("PROF"))
    t, d, e = gen_k2("main_kernel", ffn=(which != "attn"))
    return [("main_kernel", t, d, e, 256, 768, LDS_K2)]
```

```python
from asmlib import *
from layout import *

def srd(a, d, ptr, size, off=0):
    if off:
        a(f"s_add_u32 s{d}, s{ptr}, {off}")
        a(f"s_addc_u32 s{d+1}, s{ptr+1}, 0")
    else:
        a(f"s_mov_b32 s{d}, s{ptr}")
        a(f"s_mov_b32 s{d+1}, s{ptr+1}")
    a(f"s_mov_b32 s{d+2}, {size}")
    a(f"s_mov_b32 s{d+3}, 0x20000")

import os
ST = os.environ.get("X_ST", " sc1")
def gen_k0(name="prep_kernel"):
    a = Asm()
    NLN = 128; NJOB = 720
    a(f".globl {name}\n.p2align 8\n.type {name},@function")
    a.label(name)
    a(f"s_cmp_ge_u32 s2, {NLN + NJOB//4}")
    a(f"s_cbranch_scc1 {name}_end")
    rt_begin(a)
    dbg_mark(a, 0, 0, first=True)
    a("s_load_dwordx8 s[4:11], s[0:1], 0")
    a("s_load_dwordx2 s[12:13], s[0:1], 32")
    a("s_load_dwordx4 s[16:19], s[0:1], 48")
    a("s_load_dwordx2 s[20:21], s[0:1], 80")
    a("v_lshrrev_b32 v1, 6, v0")
    a("v_and_b32 v0, 63, v0")
    a("v_readfirstlane_b32 s3, v1")
    a("v_lshlrev_b32 v2, 4, v0")
    a(f"s_cmp_ge_u32 s2, {NLN}")
    a(f"s_cbranch_scc1 {name}_relayout")
    a("s_waitcnt lgkmcnt(0)")
    srd(a, 24, 4, X_SZ)
    srd(a, 28, 8, 25600)
    srd(a, 32, 10, 25600)
    srd(a, 36, 20, FLG + FLG_SZ)
    a("v_lshrrev_b32 v3, 4, v0")
    a("v_and_b32 v4, 15, v0")
    a("s_lshl_b32 s22, s2, 4")
    a("s_lshl_b32 s23, s3, 2")
    a("s_add_u32 s22, s22, s23")
    a("v_add_u32 v5, s22, v3")
    a("v_mul_u32_u24 v5, 1280, v5")
    a("v_lshl_add_u32 v5, v4, 4, v5")
    for j in range(5):
        a(f"buffer_load_dwordx4 v[{16+4*j}:{19+4*j}], v5, s[24:27], 0 offen offset:{256*j}")
    a("s_lshl_b32 s40, s3, 10")
    for j in range(6):
        a(f"s_add_u32 s41, s40, {j*4096}")
        a("s_mov_b32 m0, s41")
        a(f"s_add_u32 s42, s41, 25600")
        a("buffer_load_dwordx4 v2, s[28:31], s41 offen lds")
        a("s_mov_b32 m0, s42")
        a("s_nop 0")
        a("buffer_load_dwordx4 v2, s[32:35], s41 offen lds")
    l = a.uid("k0_nolast")
    a("s_cmp_lg_u32 s3, 0")
    a(f"s_cbranch_scc1 {l}")
    a("s_movk_i32 s41, 24576")
    a("s_mov_b32 m0, s41")
    a("s_mov_b32 s42, 50176")
    a("buffer_load_dwordx4 v2, s[28:31], s41 offen lds")
    a("s_mov_b32 m0, s42")
    a("s_nop 0")
    a("buffer_load_dwordx4 v2, s[32:35], s41 offen lds")
    a.label(l)
    a("v_mov_b32 v6, 0x3f803f80")
    a("v_mov_b32 v7, 0")
    a("v_mov_b32 v8, 0")
    a("s_waitcnt vmcnt(12)")
    lz = a.uid("k0_noz")
    a("s_cmp_ge_u32 s2, 32"); a(f"s_cbranch_scc1 {lz}")
    a("s_cmp_lg_u32 s3, 0"); a(f"s_cbranch_scc1 {lz}")
    a("s_lshl_b32 s56, s2, 8"); a(f"s_add_u32 s56, s56, {FLG}")
    a("v_lshlrev_b32 v196, 2, v0"); a("v_mov_b32 v192, 0")
    a("buffer_store_dword v192, v196, s[36:39], s56 offen" + ST)
    a.label(lz)
    lz2 = a.uid("k0_noz2")
    a("s_sub_u32 s56, s2, 32"); a("s_cmp_ge_u32 s56, 20"); a(f"s_cbranch_scc1 {lz2}")
    srd(a, 40, 20, W2F + W2F_SZ)
    a(f"s_mul_i32 s56, s56, {W2K*1024}"); a("s_lshl_b32 s57, s3, 10"); a("s_add_u32 s56, s56, s57"); a(f"s_add_u32 s56, s56, {W2F + 108*1024}")
    for r in range(4): a(f"v_mov_b32 v{192+r}, 0")
    a("buffer_store_dwordx4 v[192:195], v2, s[40:43], s56 offen" + ST)
    a("s_nop 1")
    a.label(lz2)
    for i in range(20):
        a(f"v_dot2_f32_bf16 v7, v{16+i}, v6, v7")
        a(f"v_dot2_f32_bf16 v8, v{16+i}, v{16+i}, v8")
    for sh in (8, 4, 2, 1):
        a("s_nop 1")
        a(f"v_add_f32_dpp v7, v7, v7 row_ror:{sh} row_mask:0xf bank_mask:0xf")
        a(f"v_add_f32_dpp v8, v8, v8 row_ror:{sh} row_mask:0xf bank_mask:0xf")
    a("s_nop 0")
    a(f"v_mul_f32 v7, {f2u(1/640.):#x}, v7")
    a(f"v_mul_f32 v8, {f2u(1/640.):#x}, v8")
    a("v_fma_f32 v8, -v7, v7, v8")
    a("v_max_f32 v8, 0, v8")
    a(f"v_add_f32 v8, {f2u(1e-5):#x}, v8")
    a("v_rsq_f32 v8, v8")
    a("s_nop 0")
    a(f"v_mul_f32 v8, {f2u(LOG2E):#x}, v8")
    a("v_mul_f32 v9, v7, v8")
    for i in range(20):
        a(f"v_lshlrev_b32 v10, 16, v{16+i}")
        a(f"v_and_b32 v11, 0xffff0000, v{16+i}")
        a(f"v_fma_f32 v10, v10, v8, -v9")
        a(f"v_fma_f32 v11, v11, v8, -v9")
        a(f"v_cvt_pk_bf16_f32 v{16+i}, v10, v11")
    a("v_lshrrev_b32 v10, 2, v4")
    a("v_lshlrev_b32 v10, 10, v10")
    a("v_and_b32 v11, 3, v4")
    a("v_lshl_add_u32 v10, v11, 8, v10")
    a("v_add_u32 v11, s23, v3")
    a("v_lshl_add_u32 v10, v11, 4, v10")
    a("v_add_u32 v10, 51200, v10")
    for j in range(5):
        a(f"ds_write_b128 v10, v[{16+4*j}:{19+4*j}] offset:{j*4096}")
    a("s_waitcnt vmcnt(0) lgkmcnt(0)")
    a("s_barrier")
    XF = 32; WF = 112
    a("v_add_u32 v12, 51200, v2")
    a("v_lshrrev_b32 v13, 4, v0")
    a("v_and_b32 v14, 15, v0")
    a("v_lshrrev_b32 v15, 2, v14")
    a("v_lshl_add_u32 v15, v13, 3, v15")
    a("v_mul_u32_u24 v15, 40, v15")
    a("v_and_b32 v16, 3, v14")
    a("v_lshl_add_u32 v15, v16, 3, v15")
    a("s_and_b32 s43, s3, 1")
    a("s_lshl_b32 s43, s43, 5")
    a("s_lshr_b32 s44, s3, 1")
    a("s_mul_i32 s44, s44, 25600")
    a("s_add_u32 s43, s43, s44")
    a("v_add_u32 v15, s43, v15")
    for ks in range(20):
        a(f"ds_read_b128 v[{XF+4*ks}:{XF+4*ks+3}], v12 offset:{ks*1024}")
        a(f"ds_read_b64_tr_b16 v[{WF+4*ks}:{WF+4*ks+1}], v15 offset:{ks*1280}")
        a(f"ds_read_b64_tr_b16 v[{WF+4*ks+2}:{WF+4*ks+3}], v15 offset:{ks*1280+160}")
        if ks % 4 == 3: a("s_waitcnt lgkmcnt(0)")
    a("s_waitcnt lgkmcnt(0)")
    a("v_lshrrev_b32 v16, 1, v13")
    a("v_lshlrev_b32 v16, 10, v16")
    a("v_and_b32 v17, 1, v13")
    a("v_lshl_add_u32 v16, v17, 9, v16")
    a("s_and_b32 s45, s2, 1")
    a("s_lshl_b32 s46, s45, 4")
    a("v_add_u32 v18, s46, v14")
    a("v_lshl_add_u32 v16, v18, 4, v16")
    a("s_lshr_b32 s47, s2, 1")
    a("s_mul_i32 s48, s47, 40960")
    a("s_lshl_b32 s49, s3, 11")
    a("s_add_u32 s48, s48, s49")
    assert XN == 0
    lk = [a.uid("k0_st") for _ in range(4)]
    lst_done = a.uid("k0_stdone")
    for w in range(4):
        if w < 3:
            a(f"s_cmp_lg_u32 s3, {w}")
            a(f"s_cbranch_scc1 {lk[w]}")
        for j in range(5):
            ks = w + 4*j
            a(f"s_add_u32 s50, s48, {j*8192}")
            a(f"buffer_store_dwordx4 v[{XF+4*ks}:{XF+4*ks+3}], v16, s[36:39], s50 offen" + ST)
        if w < 3:
            a(f"s_branch {lst_done}")
            a.label(lk[w])
    a.label(lst_done)
    lv = a.uid("k0_vpath"); ld = a.uid("k0_mdone")
    D = 192
    a("s_cmp_ge_u32 s3, 2")
    a(f"s_cbranch_scc1 {lv}")
    for ks in range(20):
        c = "0" if ks == 0 else f"v[{D}:{D+3}]"
        a(f"v_mfma_f32_16x16x32_bf16 v[{D}:{D+3}], v[{WF+4*ks}:{WF+4*ks+3}], v[{XF+4*ks}:{XF+4*ks+3}], {c}")
    a(f"s_branch {ld}")
    a.label(lv)
    for ks in range(20):
        c = "0" if ks == 0 else f"v[{D}:{D+3}]"
        a(f"v_mfma_f32_16x16x32_bf16 v[{D}:{D+3}], v[{XF+4*ks}:{XF+4*ks+3}], v[{WF+4*ks}:{WF+4*ks+3}], {c}")
    a.label(ld)
    a("s_lshl_b32 s51, s47, 12")
    a(f"s_add_u32 s51, s51, {KV}")
    a("v_and_b32 v17, 1, v13")
    a("v_lshrrev_b32 v19, 1, v13")
    a("s_nop 7")
    for r in range(4): a(f"v_mul_f32 v{D+r}, {f2u(LN2):#x}, v{D+r}")
    a(f"v_cvt_pk_bf16_f32 v20, v{D}, v{D+1}")
    a(f"v_cvt_pk_bf16_f32 v21, v{D+2}, v{D+3}")
    l0, l1, l2, l3 = (a.uid("k0_ep") for _ in range(4))
    lend = f"{name}_fin"
    a("s_cmp_eq_u32 s3, 0"); a(f"s_cbranch_scc1 {l0}")
    a("s_cmp_eq_u32 s3, 1"); a(f"s_cbranch_scc1 {l1}")
    a("s_cmp_eq_u32 s3, 2"); a(f"s_cbranch_scc1 {l2}")
    a(f"s_branch {l3}")
    def knorm(slot):
        a(f"v_mul_f32 v22, v{D}, v{D}")
        for r in range(1, 4): a(f"v_fmac_f32 v22, v{D+r}, v{D+r}")
        if slot == 1:
            a("v_cmp_eq_u32 vcc, 0, v13")
            a("s_nop 1")
            a("v_cndmask_b32 v22, 0, v22, vcc")
        a("v_mov_b32 v23, v22")
        a("s_nop 1")
        a("v_permlane32_swap_b32 v22, v23")
        a("s_nop 1")
        a("v_add_f32 v22, v22, v23")
        a("v_mov_b32 v23, v22")
        a("s_nop 1")
        a("v_permlane16_swap_b32 v22, v23")
        a("s_nop 1")
        a("v_add_f32 v22, v22, v23")
        for sh in (8, 4, 2, 1):
            a("s_nop 1")
            a(f"v_max_f32_dpp v22, v22, v22 row_ror:{sh} row_mask:0xf bank_mask:0xf")
        a("s_lshl_b32 s52, s2, 3")
        a(f"s_add_u32 s52, s52, {KMX + 4*slot}")
        a("v_mov_b32 v23, 0")
        a("v_cmp_eq_u32 vcc, 0, v0")
        a("s_and_saveexec_b64 s[54:55], vcc")
        a("buffer_store_dword v22, v23, s[36:39], s52 offen" + ST)
        a("s_mov_b64 exec, s[54:55]")
    a.label(l0)
    a("v_lshl_add_u32 v24, v17, 5, v18")
    a("v_lshlrev_b32 v24, 4, v24")
    a("v_lshl_add_u32 v24, v19, 3, v24")
    a("buffer_store_dwordx2 v[20:21], v24, s[36:39], s51 offen" + ST)
    knorm(0)
    a(f"s_branch {lend}")
    a.label(l1)
    a("v_cmp_eq_u32 vcc, 1, v13")
    a("v_mov_b32 v25, 0x3f803f80")
    a("v_mov_b32 v26, 0x00003f80")
    a("v_cndmask_b32 v20, v20, v25, vcc")
    a("v_cndmask_b32 v21, v21, v26, vcc")
    a("v_lshl_add_u32 v24, v13, 5, v18")
    a("v_lshlrev_b32 v24, 3, v24")
    a("v_add_u32 v24, 1024, v24")
    a("v_cmp_gt_u32 vcc, 2, v13")
    a("s_and_saveexec_b64 s[54:55], vcc")
    a("buffer_store_dwordx2 v[20:21], v24, s[36:39], s51 offen" + ST)
    a("s_mov_b64 exec, s[54:55]")
    knorm(1)
    a(f"s_branch {lend}")
    a.label(l3)
    a("v_cmp_gt_u32 vcc, 4, v14")
    a("s_nop 1")
    a("v_cndmask_b32 v20, 0, v20, vcc")
    a("v_cndmask_b32 v21, 0, v21, vcc")
    a("v_cmp_eq_u32 vcc, 4, v14")
    a("v_mov_b32 v25, 0x3f803f80")
    a("s_nop 0")
    a("v_cndmask_b32 v20, v20, v25, vcc")
    a("v_cndmask_b32 v21, v21, v25, vcc")
    a("v_add_u32 v14, 16, v14")
    a.label(l2)
    a("v_lshl_add_u32 v24, v17, 5, v14")
    a("v_lshlrev_b32 v24, 4, v24")
    a("v_lshl_add_u32 v24, v19, 3, v24")
    a("s_lshl_b32 s52, s45, 10")
    a("s_add_u32 s52, s52, s51")
    a("s_add_u32 s52, s52, 2048")
    a("buffer_store_dwordx2 v[20:21], v24, s[36:39], s52 offen" + ST)
    a(f"s_branch {lend}")

    a.label(f"{name}_relayout")
    a(f"s_sub_u32 s22, s2, {NLN}")
    a("s_lshl_b32 s22, s22, 2")
    a("s_add_u32 s22, s22, s3")
    a("s_mul_i32 s60, s3, 10240")
    a("s_waitcnt lgkmcnt(0)")
    lw2, lwo, lwq, lgo = (a.uid("k0_j") for _ in range(4))
    a("s_cmp_ge_u32 s22, 640"); a(f"s_cbranch_scc1 {lwq}")
    a("s_cmp_ge_u32 s22, 540"); a(f"s_cbranch_scc1 {lwo}")
    a("s_cmp_ge_u32 s22, 270"); a(f"s_cbranch_scc1 {lw2}")
    def div(dst, src, d):
        m = (1 << 32) // d + 1
        a(f"s_mul_hi_u32 s{dst}, s{src}, {m}")
    srd(a, 24, 16, 640*1728*2)
    div(46, 22, 27)
    a("s_mul_i32 s47, s46, 27"); a("s_sub_u32 s47, s22, s47")
    a("s_mov_b32 s40, 3456")
    a(f"s_mul_i32 s41, s46, {64*3456}"); a("s_lshl_b32 s48, s47, 7"); a("s_add_u32 s41, s41, s48")
    a(f"s_mul_i32 s42, s47, {2*40*1024}"); a("s_lshl_b32 s48, s46, 12"); a("s_add_u32 s42, s42, s48"); a(f"s_add_u32 s42, s42, {W1F}")
    a("s_mov_b32 s43, 40960"); a("s_mov_b32 s44, 8"); a("s_mov_b32 s45, 4")
    a(f"s_branch {lgo}")
    a.label(lw2)
    srd(a, 24, 18, 1728*640*2)
    a("s_sub_u32 s22, s22, 270")
    div(46, 22, 10)
    a("s_mul_i32 s47, s46, 10"); a("s_sub_u32 s47, s22, s47")
    a("s_mov_b32 s40, 1280")
    a(f"s_mul_i32 s41, s46, {64*1280}"); a("s_lshl_b32 s48, s47, 7"); a("s_add_u32 s41, s41, s48")
    a(f"s_mul_i32 s42, s47, {2*W2K*1024}"); a("s_lshl_b32 s48, s46, 12"); a("s_add_u32 s42, s42, s48"); a(f"s_add_u32 s42, s42, {W2F}")
    a(f"s_mov_b32 s43, {W2K*1024}"); a("s_mov_b32 s44, 4"); a("s_mov_b32 s45, 8")
    a(f"s_branch {lgo}")
    a.label(lwo)
    srd(a, 24, 12, 640*640*2)
    a("s_sub_u32 s22, s22, 540")
    div(46, 22, 10)
    a("s_mul_i32 s47, s46, 10"); a("s_sub_u32 s47, s22, s47")
    a("s_mov_b32 s40, 1280")
    a(f"s_mul_i32 s41, s46, {64*1280}"); a("s_lshl_b32 s48, s47, 7"); a("s_add_u32 s41, s41, s48")
    a(f"s_mul_i32 s42, s47, {2*40*1024}"); a("s_lshl_b32 s48, s46, 12"); a("s_add_u32 s42, s42, s48"); a(f"s_add_u32 s42, s42, {WOF}")
    a("s_mov_b32 s43, 40960"); a("s_mov_b32 s44, 8"); a("s_mov_b32 s45, 4")
    a.label(lgo)
    srd(a, 28, 20, OF)
    a("v_lshrrev_b32 v3, 3, v0")
    a("v_mul_lo_u32 v3, v3, s40")
    a("v_and_b32 v4, 7, v0")
    a("v_lshl_add_u32 v3, v4, 4, v3")
    a("s_lshl_b32 s49, s40, 3")
    a("s_mov_b32 s50, s60")
    for i in range(8):
        a("s_mov_b32 m0, s50")
        a("s_add_u32 s50, s50, 1024")
        a("buffer_load_dwordx4 v3, s[24:27], s41 offen lds")
        a("s_add_u32 s41, s41, s49")
    a("v_lshrrev_b32 v5, 5, v0")
    a("v_mul_lo_u32 v5, v5, s44")
    a("v_and_b32 v6, 15, v0")
    a("v_lshrrev_b32 v7, 2, v6")
    a("v_add_u32 v5, v5, v7")
    a("v_lshlrev_b32 v5, 7, v5")
    a("v_bfe_u32 v7, v0, 4, 1")
    a("v_lshl_add_u32 v5, v7, 5, v5")
    a("v_and_b32 v7, 3, v6")
    a("v_lshl_add_u32 v5, v7, 3, v5")
    a("v_add_u32 v5, s60, v5")
    a("s_lshl_b32 s45, s45, 7")
    a("v_add_u32 v6, s45, v5")
    a("s_waitcnt vmcnt(0)")
    for nt in range(2):
        for kk in range(4):
            r = 16 + 4*(nt*4+kk)
            a(f"ds_read_b64_tr_b16 v[{r}:{r+1}], v5 offset:{nt*64 + kk*2048}")
            a(f"ds_read_b64_tr_b16 v[{r+2}:{r+3}], v6 offset:{nt*64 + kk*2048}")
        a("s_waitcnt lgkmcnt(0)")
        for kk in range(4):
            r = 16 + 4*(nt*4+kk)
            a(f"s_add_u32 s50, s42, {kk*1024}")
            a(f"buffer_store_dwordx4 v[{r}:{r+3}], v2, s[28:31], s50 offen" + ST)
        if nt == 0: a("s_add_u32 s42, s42, s43")
    a(f"s_branch {name}_fin")
    a.label(lwq)
    srd(a, 24, 6, 640*640*2)
    srd(a, 28, 20, OF)
    a("s_sub_u32 s22, s22, 640")
    a("s_lshr_b32 s46, s22, 3")
    a("s_and_b32 s47, s22, 7")
    a(f"s_mul_i32 s41, s46, {64*1280}"); a("s_mul_i32 s48, s47, 160"); a("s_add_u32 s41, s41, s48")
    a(f"s_mul_i32 s42, s47, {4*40*768}"); a("s_mul_i32 s48, s46, 3072"); a("s_add_u32 s42, s42, s48"); a(f"s_add_u32 s42, s42, {WQF}")
    a("s_mov_b32 s50, s60")
    a("s_movk_i32 s51, 6554")
    for i in range(10):
        a(f"v_add_u32 v3, {64*i}, v0")
        a("v_mul_lo_u32 v4, v3, s51")
        a("v_lshrrev_b32 v4, 16, v4")
        a("v_mul_u32_u24 v5, 10, v4")
        a("v_sub_u32 v3, v3, v5")
        a("v_mul_u32_u24 v4, 1280, v4")
        a("v_lshl_add_u32 v3, v3, 4, v4")
        a("s_mov_b32 m0, s50")
        a("s_add_u32 s50, s50, 1024")
        a("buffer_load_dwordx4 v3, s[24:27], s41 offen lds")
    a("v_lshrrev_b32 v5, 5, v0")
    a("v_lshlrev_b32 v5, 3, v5")
    a("v_and_b32 v6, 15, v0")
    a("v_lshrrev_b32 v7, 2, v6")
    a("v_add_u32 v5, v5, v7")
    a("v_mul_u32_u24 v5, 160, v5")
    a("v_bfe_u32 v7, v0, 4, 1")
    a("v_lshl_add_u32 v5, v7, 5, v5")
    a("v_and_b32 v8, 3, v6")
    a("v_lshl_add_u32 v5, v8, 3, v5")
    a("v_add_u32 v5, s60, v5")
    a("v_lshl_add_u32 v8, v7, 4, v6")
    a("v_cmp_gt_u32 vcc, 20, v8")
    a("v_mov_b32 v9, 0")
    a("v_mov_b32 v10, -1")
    a("v_cndmask_b32 v9, v9, v10, vcc")
    a("v_lshrrev_b32 v11, 5, v0"); a("v_mul_u32_u24 v11, 384, v11")
    a("v_and_b32 v12, 31, v0"); a("v_lshl_add_u32 v11, v12, 4, v11")
    a("v_cmp_gt_u32 s[56:57], 24, v12")
    a("s_waitcnt vmcnt(0)")
    for hh in range(4):
        for kk in range(4):
            r = 16 + 4*(hh*4+kk)
            a(f"ds_read_b64_tr_b16 v[{r}:{r+1}], v5 offset:{hh*40 + kk*16*160}")
            a(f"ds_read_b64_tr_b16 v[{r+2}:{r+3}], v5 offset:{hh*40 + kk*16*160 + 4*160}")
        a("s_waitcnt lgkmcnt(0)")
        for kk in range(4):
            r = 16 + 4*(hh*4+kk)
            for x in range(4): a(f"v_and_b32 v{r+x}, v{r+x}, v9")
            a(f"s_add_u32 s50, s42, {hh*40*768 + kk*768}")
            a("s_mov_b64 exec, s[56:57]")
            a(f"buffer_store_dwordx4 v[{r}:{r+3}], v11, s[28:31], s50 offen" + ST)
            a("s_mov_b64 exec, -1")
    a.label(f"{name}_fin")
    dbg_mark(a, 0, 1, vt=196)
    rt_end(a, 20, 0x8100000, 196)
    a.label(f"{name}_end")
    a("s_endpgm")
    errs = check_hazards(a.lines, name)
    desc = kd(name, 200, 100)
    return a.text(), desc, errs

def kd(name, nv, ns=96, accum=None):
    acc = accum or ((nv + 3)//4*4)
    return f""".section .rodata,"a"
.p2align 6
.amdhsa_kernel {name}
  .amdhsa_next_free_vgpr {nv}
  .amdhsa_next_free_sgpr {ns}
  .amdhsa_accum_offset {acc}
  .amdhsa_group_segment_fixed_size 0
  .amdhsa_kernarg_size 88
  .amdhsa_user_sgpr_count 2
  .amdhsa_user_sgpr_kernarg_segment_ptr 1
  .amdhsa_system_sgpr_workgroup_id_x 1
  .amdhsa_float_denorm_mode_32 3
.end_amdhsa_kernel
.text
"""
if __name__ == "__main__":
    t, d, e = gen_k0()
    for x in e: print(x)
    open("k0.s", "w").write('.amdgcn_target "amdgcn-amd-amdhsa--gfx950"\n.text\n' + t + d)
```

```python
from asmlib import *
from layout import *
from k0 import srd, kd
import os
def X(name, d=None): return os.environ.get("X_" + name, d)
ST = os.environ.get("X_ST", " sc1")

XNL = 0
KVL = 81920
QXL = 131072
LDS_K2 = 163840

PROF = False
PROFOFF = 0x8000000
def stamp(a, i):
    if PROF: a(f"s_memtime s[{60+2*i}:{61+2*i}]")
def stamp_rt(a, i):
    if PROF: a(f"s_memrealtime s[{60+2*i}:{61+2*i}]")
def stamp_store(a, n):
    if not PROF: return
    a("s_waitcnt lgkmcnt(0)")
    a("s_lshl_b32 s58, s2, 4"); a("s_add_u32 s58, s58, s3"); a("s_lshl_b32 s58, s58, 6")
    a(f"s_add_u32 s56, s20, {PROFOFF}"); a("s_addc_u32 s57, s21, 0")
    a("v_mov_b32 v160, s58")
    for i in range(n):
        a(f"v_mov_b32 v161, s{60+2*i}")
        a(f"global_store_dword v160, v161, s[56:57] offset:{4*i}")
        a("s_nop 1")
THR = 80.0

def mfma32(d, x, y, c): return f"v_mfma_f32_32x32x16_bf16 v[{d}:{d+15}], v[{x}:{x+3}], v[{y}:{y+3}], " + ("0" if c is None else f"v[{c}:{c+15}]")
def mfma8(d, x, y, c): return f"v_mfma_f32_32x32x8bf16_1k v[{d}:{d+15}], v[{x}:{x+1}], v[{y}:{y+1}], " + ("0" if c is None else f"v[{c}:{c+15}]")

Q1, Q2 = 4, 8
KB = ((12, 10), (88, 92))
VB = ((16, 20), (96, 100))
P = 24
S = (32, 48)
O = 64
E = 80
AQ = 88
BQ = 64

def attn_tile(a, t):
    off = lambda tt: (tt % 16) * 4096
    Sc, Sn = S[t & 1], S[(t + 1) & 1]
    Kn = KB[(t + 1) & 1]; Kl = KB[t & 1]
    Vc = VB[t & 1]; Vp = VB[(t + 1) & 1]
    ex = lambda i: f"v_exp_f32 v{E + i % 8}, v{Sc + i}"
    cv = lambda p, e: f"v_cvt_pk_bf16_f32 v{P + p}, v{E + e}, v{E + e + 1}"
    a("s_waitcnt lgkmcnt(0)")
    a(mfma32(Sn, Kn[0], Q1, None))
    a(f"ds_read_b128 v[{Vp[0]}:{Vp[0]+3}], v1 offset:{off(t+1) + 2048}")
    a(cv(6, 4)); a(cv(7, 6))
    for i in range(0, 4): a(ex(i))
    a(mfma32(O, Vp[1], P + 4, O))
    a(f"ds_read_b128 v[{Kl[0]}:{Kl[0]+3}], v1 offset:{off(t+2)}")
    a(f"ds_read_b64 v[{Kl[1]}:{Kl[1]+1}], v2 offset:{off(t+2) + 1024}")
    a(f"ds_read_b128 v[{Vp[1]}:{Vp[1]+3}], v1 offset:{off(t+1) + 3072}")
    a(cv(0, 0)); a(cv(1, 2))
    for i in range(4, 8): a(ex(i))
    a(mfma8(Sn, Kn[1], Q2, Sn))
    a(cv(2, 4)); a(cv(3, 6))
    for i in range(8, 12): a(ex(i))
    a(mfma32(O, Vc[0], P, O))
    a(cv(4, 0)); a(cv(5, 2))
    for i in range(12, 16): a(ex(i))

def xn_piece(a, st, idx):
    a(f"s_add_u32 m0, s{10+idx}, {st*5120}")
    a(f"s_add_u32 s15, s{8+idx}, {st*5120}")
    a("buffer_load_dwordx4 v3, s[24:27], s15 offen lds")

def gen_attn_wave(a, name, prio):
    a("s_lshr_b32 s6, s3, 1")
    a("s_lshl_b32 s7, s4, 2")
    a("s_add_u32 s6, s6, s7")
    a("s_and_b32 s7, s3, 1")
    a(f"s_mul_i32 s42, s6, {40*768}")
    a(f"s_mul_i32 s43, s7, {20*768}")
    a("s_add_u32 s42, s42, s43")
    a("v_lshrrev_b32 v16, 5, v0"); a("v_mul_u32_u24 v16, 384, v16")
    a("v_and_b32 v17, 31, v0"); a("v_lshl_add_u32 v16, v17, 4, v16")
    a("s_mov_b32 s46, 0x00ffffff"); a("s_mov_b32 s47, 0x00ffffff")
    a(f"s_mov_b32 s43, {KMX}")
    a(f"buffer_load_dwordx4 v[24:27], v3, s[36:39], s43 offen")
    def issue_stage(st):
        xn_piece(a, st, 0); xn_piece(a, st, 1)
        a("s_mov_b64 exec, s[46:47]")
        for i in range(5):
            k = 5*st + i
            a(f"buffer_load_dwordx4 v[{AQ+4*k}:{AQ+4*k+3}], v16, s[32:35], s42 offen offset:{i*768}")
        a("s_mov_b64 exec, -1")
        if st < 3: a("s_add_u32 s42, s42, 3840")
    issue_stage(0); issue_stage(1)
    a(f"v_add_u32 v1, {KVL}, v3")
    a("v_lshlrev_b32 v2, 3, v0")
    a(f"v_add_u32 v2, {KVL}, v2")
    a("s_mul_i32 s44, s7, 20480")
    a("v_add_u32 v10, s44, v3")
    a("v_add_u32 v11, 40960, v10")
    if X("STARTUP"): stamp(a, 3)
    a("s_waitcnt vmcnt(14)")
    if X("STARTUP"): stamp(a, 4)
    a("v_max_f32 v24, v24, v26")
    a("v_max_f32 v25, v25, v27")
    for sh in (8, 4, 2, 1):
        a("s_nop 1")
        a(f"v_max_f32_dpp v24, v24, v24 row_ror:{sh} row_mask:0xf bank_mask:0xf")
        a(f"v_max_f32_dpp v25, v25, v25 row_ror:{sh} row_mask:0xf bank_mask:0xf")
    for sw in ("16", "32"):
        a("v_mov_b32 v26, v24"); a("v_mov_b32 v27, v25"); a("s_nop 1")
        a(f"v_permlane{sw}_swap_b32 v24, v26"); a(f"v_permlane{sw}_swap_b32 v25, v27"); a("s_nop 1")
        a("v_max_f32 v24, v24, v26"); a("v_max_f32 v25, v25, v27")
    a("v_add_f32 v24, v24, v25")
    if prio is not None: a(f"s_setprio {prio}")
    D0, D1 = S
    def bl(k):
        r = BQ + 8*(k % 3)
        a(f"ds_read_b128 v[{r}:{r+3}], v10 offset:{k*1024}")
        a(f"ds_read_b128 v[{r+4}:{r+7}], v11 offset:{k*1024}")
    for st in range(4):
        later = 7 if st < 3 else 0
        a(f"s_waitcnt vmcnt({5 + later})")
        a("s_barrier")
        if st == 0:
            stamp(a, 5 if X("STARTUP") else 2)
            dbg_mark(a, 1, 3, vt=160)
        if st == 3 and X("STARTUP"): stamp(a, 6)
        k0 = 5*st
        bl(k0); bl(k0 + 1)
        for k in range(k0, k0 + 5):
            if k + 2 < k0 + 5: bl(k + 2)
            nl = 2*min(2, k0 + 4 - k)
            a(f"s_waitcnt vmcnt({(k0 + 4 - k) + later}) lgkmcnt({nl})")
            r = BQ + 8*(k % 3)
            a(mfma32(D0, AQ + 4*k, r, None if k == 0 else D0))
            a(mfma32(D1, AQ + 4*k, r + 4, None if k == 0 else D1))
        if st + 2 < 4: issue_stage(st + 2)
    a("s_mul_i32 s44, s3, 3072")
    a(f"s_add_u32 s44, s44, {QXL}")
    a("v_add_u32 v12, s44, v3")
    a("s_xor_b32 s45, s3, 1"); a("s_mul_i32 s45, s45, 3072"); a(f"s_add_u32 s45, s45, {QXL}")
    a("v_add_u32 v13, s45, v3")
    lp1, lpd = a.uid("qx1"), a.uid("qxd")
    a("s_nop 7")
    a("s_cmp_eq_u32 s7, 1"); a(f"s_cbranch_scc1 {lp1}")
    for i in range(3): a(f"ds_write_b128 v12, v[{D1+4*i}:{D1+4*i+3}] offset:{i*1024}")
    a(f"s_branch {lpd}")
    a.label(lp1)
    for i in range(3): a(f"ds_write_b128 v12, v[{D0+4*i}:{D0+4*i+3}] offset:{i*1024}")
    a("s_waitcnt lgkmcnt(0)")
    for r in range(12): a(f"v_mov_b32 v{D0+r}, v{D1+r}")
    a.label(lpd)
    a("s_waitcnt lgkmcnt(0)")
    a("s_barrier")
    for i in range(3): a(f"ds_read_b128 v[{D1+4*i}:{D1+4*i+3}], v13 offset:{i*1024}")
    a("s_waitcnt lgkmcnt(0)")
    D = D0
    for r in range(12): a(f"v_add_f32 v{D+r}, v{D+r}, v{D1+r}")
    a(f"s_mov_b32 s45, {f2u(QSCALE):#x}")
    for r in range(12): a(f"v_mul_f32 v{D+r}, s45, v{D+r}")
    a(f"v_mul_f32 v25, v{D}, v{D}")
    for r in range(1, 12): a(f"v_fmac_f32 v25, v{D+r}, v{D+r}")
    for r in range(4): a(f"v_cvt_pk_bf16_f32 v{Q1+r}, v{D+2*r}, v{D+2*r+1}")
    for r in range(2): a(f"v_cvt_pk_bf16_f32 v{Q2+r}, v{D+8+2*r}, v{D+8+2*r+1}")
    a("v_mov_b32 v26, v25"); a("s_nop 1")
    a("v_permlane32_swap_b32 v25, v26"); a("s_nop 1")
    a("v_add_f32 v25, v25, v26")
    a("v_mul_f32 v25, v25, v24")
    a(f"s_mov_b32 s45, {f2u(THR*THR):#x}")
    a("v_cmp_nle_f32 vcc, v25, s45")
    lfast = a.uid("attn_fast")
    a("s_nop 4")
    a(f"s_cbranch_vccz {lfast}")
    lm = a.uid("attn_maxloop")
    M = 24
    a(f"v_mov_b32 v{M}, 0xff800000")
    a("s_mov_b32 s46, 0")
    a("v_lshlrev_b32 v28, 3, v0")
    a.label(lm)
    a(f"buffer_load_dwordx4 v[{AQ}:{AQ+3}], v3, s[28:31], s46 offen")
    a(f"buffer_load_dwordx2 v[{AQ+4}:{AQ+5}], v28, s[28:31], s46 offen offset:1024")
    a("s_waitcnt vmcnt(0)")
    a(mfma32(S[1], AQ, Q1, None))
    a(mfma8(S[1], AQ+4, Q2, S[1]))
    a("s_add_u32 s46, s46, 4096")
    a("s_nop 15")
    for r in range(0, 16, 2): a(f"v_max3_f32 v{M}, v{M}, v{S[1]+r}, v{S[1]+r+1}")
    a(f"s_cmp_lt_u32 s46, {64*4096}")
    a(f"s_cbranch_scc1 {lm}")
    a(f"v_mov_b32 v25, v{M}"); a("s_nop 1")
    a(f"v_permlane32_swap_b32 v{M}, v25"); a("s_nop 1")
    a(f"v_max_f32 v{M}, v{M}, v25")
    a(f"v_xor_b32 v{M}, 0x80000000, v{M}")
    a(f"v_and_b32 v25, 0xffff0000, v{M}")
    a(f"v_sub_f32 v26, v{M}, v25")
    a("v_and_b32 v27, 0xffff0000, v26")
    a("v_sub_f32 v26, v26, v27")
    a("v_lshrrev_b32 v26, 16, v26")
    a("v_lshrrev_b32 v25, 16, v25")
    a("v_or_b32 v25, v25, v27")
    a("v_cmp_lt_u32 vcc, 31, v0")
    a("s_nop 1")
    a(f"v_cndmask_b32 v{Q2}, v{Q2}, v25, vcc")
    a(f"v_cndmask_b32 v{Q2+1}, v{Q2+1}, v26, vcc")
    a.label(lfast)
    if not X("STARTUP"): stamp(a, 3)
    for r in range(16): a(f"v_mov_b32 v{O+r}, 0")
    for r in range(8): a(f"v_mov_b32 v{P+r}, 0")
    for r in range(8): a(f"v_mov_b32 v{E+r}, 0")
    for r in range(4): a(f"v_mov_b32 v{VB[1][1]+r}, 0")
    a("s_barrier")
    a(f"ds_read_b128 v[{KB[0][0]}:{KB[0][0]+3}], v1 offset:0")
    a(f"ds_read_b64 v[{KB[0][1]}:{KB[0][1]+1}], v2 offset:1024")
    a("s_waitcnt lgkmcnt(0)")
    a(mfma32(S[0], KB[0][0], Q1, None))
    a(mfma8(S[0], KB[0][1], Q2, S[0]))
    a(f"ds_read_b128 v[{KB[1][0]}:{KB[1][0]+3}], v1 offset:{4096}")
    a(f"ds_read_b64 v[{KB[1][1]}:{KB[1][1]+1}], v2 offset:{4096+1024}")
    a(f"ds_read_b128 v[{VB[0][0]}:{VB[0][0]+3}], v1 offset:2048")
    a(f"ds_read_b128 v[{VB[0][1]}:{VB[0][1]+3}], v1 offset:3072")
    a("s_nop 7")
    if not X("STARTUP"): stamp(a, 4)
    dbg_mark(a, 1, 4, vt=160)
    a("s_mov_b32 s47, 4")
    lp = a.uid("attn_loop")
    body = Asm()
    for t in range(16):
        if t % 4 == 0 and t > 0: body("s_barrier")
        attn_tile(body, t)
    a.label(lp)
    a.lines += body.lines
    a("s_sub_u32 s47, s47, 1")
    a("s_cmp_eq_u32 s47, 0")
    lout = a.uid("attn_out")
    a(f"s_cbranch_scc1 {lout}")
    a("s_barrier")
    a(f"s_branch {lp}")
    a.label(lout)
    if not X("STARTUP"): stamp(a, 5)
    dbg_mark(a, 1, 5, vt=160)
    a(f"v_cvt_pk_bf16_f32 v{P+6}, v{E+4}, v{E+5}")
    a(f"v_cvt_pk_bf16_f32 v{P+7}, v{E+6}, v{E+7}")
    a("s_waitcnt lgkmcnt(0)")
    a("s_nop 0")
    a(mfma32(O, VB[1][1], P + 4, O))
    a("v_lshrrev_b32 v110, 5, v0")
    a("s_mul_i32 s48, s6, 5")
    a("v_add_u32 v111, s48, v110")
    a("v_and_b32 v112, 31, v0")
    a("v_lshlrev_b32 v112, 4, v112")
    def qoff(dst, q):
        a(f"v_lshrrev_b32 v113, 2, v{q}")
        a(f"v_lshlrev_b32 v{dst}, 10, v113")
        a(f"v_bfe_u32 v113, v{q}, 1, 1")
        a(f"v_lshl_add_u32 v{dst}, v113, 9, v{dst}")
        a(f"v_and_b32 v113, 1, v{q}")
        a(f"v_lshl_add_u32 v{dst}, v113, 3, v{dst}")
        a(f"v_add_u32 v{dst}, v{dst}, v112")
    qoff(114, 111)
    a("v_add_u32 v111, 2, v111")
    qoff(115, 111)
    a("s_add_u32 s48, s48, 4")
    a("v_mov_b32 v111, s48")
    qoff(116, 111)
    a("s_lshl_b32 s49, s5, 1")
    a("s_add_u32 s49, s49, s7")
    a("s_mul_i32 s49, s49, 40960")
    a(f"s_add_u32 s49, s49, {OF}")
    a(f"v_mov_b32 v118, v{O+8}")
    a(f"v_mov_b32 v119, v{O+8}")
    a("s_nop 1")
    a("v_permlane32_swap_b32 v118, v119")
    a("s_nop 1")
    a("v_rcp_f32 v119, v119")
    a("s_nop 0")
    for r in range(12): a(f"v_mul_f32 v{O+r}, v{O+r}, v119")
    for r in range(6): a(f"v_cvt_pk_bf16_f32 v{120+r}, v{O+2*r}, v{O+2*r+1}")
    a("buffer_store_dwordx2 v[120:121], v114, s[36:39], s49 offen" + ST)
    a("buffer_store_dwordx2 v[122:123], v115, s[36:39], s49 offen" + ST)
    a("v_cmp_gt_u32 vcc, 32, v0")
    a("s_and_saveexec_b64 s[50:51], vcc")
    a("buffer_store_dwordx2 v[124:125], v116, s[36:39], s49 offen" + ST)
    a("s_mov_b64 exec, s[50:51]")
    dbg_mark(a, 1, 6, vt=160)
    if not X("STARTUP"): stamp(a, 6)
    stamp_rt(a, 7)
    stamp_store(a, 8)
    a("s_endpgm")
    return check_hazards([l for l in body.lines + body.lines], name + ":loop")

def gen_k2(name="main_kernel", ffn=True, prio_attn=None, prio_ffn=None):
    a = Asm()
    a(f".globl {name}\n.p2align 8\n.type {name},@function")
    a.label(name)
    a("s_cmp_ge_u32 s2, 256")
    a(f"s_cbranch_scc1 {name}_end")
    stamp_rt(a, 0); stamp(a, 1)
    dbg_mark(a, 1, 2, first=True, vt=160)
    a("s_load_dwordx2 s[20:21], s[0:1], 80")
    a("s_load_dwordx2 s[22:23], s[0:1], 0")
    a("v_lshrrev_b32 v1, 6, v0")
    a("v_and_b32 v0, 63, v0")
    a("v_readfirstlane_b32 s3, v1")
    a("v_lshlrev_b32 v3, 4, v0")
    a("s_lshr_b32 s4, s2, 3"); a("s_and_b32 s4, s4, 7")
    a("s_lshr_b32 s5, s2, 6"); a("s_lshl_b32 s5, s5, 3"); a("s_and_b32 s8, s2, 7"); a("s_add_u32 s5, s5, s8")
    a("s_waitcnt lgkmcnt(0)")
    if X("STARTUP"): stamp(a, 2)
    srd(a, 24, 20, XN_SZ, XN)
    srd(a, 28, 20, KV_SZ, KV)
    srd(a, 32, 20, WQF_SZ, WQF)
    srd(a, 36, 20, YF + YF_SZ)
    a("s_lshl_b32 s12, s3, 1"); a("s_add_u32 s13, s3, 8")
    a("s_cmp_ge_u32 s3, 8"); a("s_cselect_b32 s12, s13, s12")
    a("s_mul_i32 s14, s5, 81920")
    for idx in range(2):
        if idx == 1: a("s_add_u32 s12, s12, 1")
        a("s_mul_i32 s13, s12, 52429"); a("s_lshr_b32 s13, s13, 18")
        a("s_mul_i32 s15, s13, 5"); a("s_sub_u32 s15, s12, s15")
        a("s_mul_i32 s13, s13, 20480"); a("s_lshl_b32 s15, s15, 10")
        a(f"s_add_u32 s{10+idx}, s13, s15")
        a(f"s_add_u32 s{8+idx}, s{10+idx}, s14")
    lffn = f"{name}_ffn"
    a("s_cmp_ge_u32 s3, 8")
    a(f"s_cbranch_scc1 {lffn}")
    errs = gen_attn_wave(a, name, prio_attn)
    a.label(lffn)
    import k2ffn
    errs += k2ffn.gen_ffn_wave(a, name, prio_ffn, ffn)
    a.label(f"{name}_end")
    a("s_endpgm")
    errs += check_hazards(a.lines, name)
    return a.text(), kd(name, 168, 100), errs

def kernels(which):
    global PROF
    PROF = bool(os.environ.get("PROF"))
    pa = X("PRIOA"); pf = X("PRIOF")
    t, d, e = gen_k2("main_kernel", ffn=(which != "attn"), prio_attn=pa, prio_ffn=pf)
    return [("main_kernel", t, d, e, 256, 768, LDS_K2)]
```

```python
from asmlib import *
from layout import *
from k0 import srd
import k2
from k2 import mfma32, stamp, stamp_rt, stamp_store, KVL, X, ST, xn_piece

VX0, VX1 = 164, 165
VT = 160

class VM:
    def __init__(self, a): self.a = a; self.q = []
    def issue(self, tag): self.q.append(tag)
    def wait(self, tag, extra=""):
        hits = [i for i, t in enumerate(self.q) if t == tag]
        if not hits:
            if extra: self.a("s_waitcnt" + extra)
            return
        idx = max(hits)
        n = len(self.q) - 1 - idx
        assert n <= 63
        self.a(f"s_waitcnt vmcnt({n}){extra}")
        self.q = self.q[idx + 1:]
    def clone(self, a):
        v = VM(a); v.q = list(self.q); return v

def kv_dma(a, vm, c):
    if c > 15: return
    a(f"s_add_u32 m0, s41, {(c % 4)*16384}")
    a(f"s_add_u32 s15, s40, {c*16384}")
    for i in range(4):
        a(f"buffer_load_dwordx4 v3, s[28:31], s15 offen offset:{i*1024} lds"); vm.issue(("kv", c))

BARS = ["H0", "H1", "H2", "H3", "HQ"] + [f"C{i}" for i in range(16)]
def bstamp(a, name):
    if not X("BSTAMP"): return
    i = BARS.index(name)
    a("s_memtime s[96:97]"); a("s_waitcnt lgkmcnt(0)"); a(f"s_mov_b32 s{64+i}, s96")
def bstamp_store(a):
    if not X("BSTAMP"): return
    a("s_memtime s[96:97]"); a("s_waitcnt lgkmcnt(0)"); a("s_mov_b32 s85, s96")
    a("s_lshl_b32 s58, s2, 2"); a("s_add_u32 s58, s58, s6"); a("s_lshl_b32 s58, s58, 7")
    a(f"s_add_u32 s56, s20, 0x8400000"); a("s_addc_u32 s57, s21, 0")
    a("v_mov_b32 v160, s58")
    for i in range(22):
        a(f"v_mov_b32 v161, s{64+i}")
        a(f"global_store_dword v160, v161, s[56:57] offset:{4*i}")
        a("s_nop 1")
def barrier(a, vm, name):
    barrier_(a, vm, name)
    bstamp(a, name)
def barrier_(a, vm, name):
    if name[0] == "H" and name != "HQ":
        vm.wait(("xn", int(name[1]))); a("s_barrier")
        if name == "H3":
            for c in range(3): kv_dma(a, vm, c)
    elif name == "HQ":
        a("s_barrier")
    else:
        c = int(name[1:])
        vm.wait(("kv", c + 1))
        a("s_barrier")
        kv_dma(a, vm, c + 3)

def interleave(a, steps, fill):
    nslots = sum(len(s) for s in steps)
    out = []; done = 0; used = 0
    for s in steps:
        grp = []
        for slot in s:
            done += 1
            tgt = (len(fill)*done + nslots - 1)//nslots if nslots else 0
            mine = fill[used:tgt]; used = max(used, tgt)
            grp.append((slot, mine))
        def emit(grp=grp):
            for slot, mine in grp:
                slot()
                for f in mine:
                    f() if callable(f) else a(f)
        out.append(emit)
    return out

def gen_ffn_wave(a, name, prio, ffn=True):
    lend = f"{name}_end"
    vm = VM(a)
    for st in range(4):
        xn_piece(a, st, 0); vm.issue(("xn", st))
    a("s_sub_u32 s6, s3, 8")
    a("s_lshl_b32 s40, s6, 12")
    a(f"s_add_u32 s41, s40, {KVL}")
    if not ffn:
        for b in BARS: barrier(a, vm, b)
        a(f"s_branch {lend}")
        return []
    srd(a, 44, 20, W1F_SZ, W1F)
    srd(a, 48, 20, W2F_SZ, W2F)
    srd(a, 52, 22, X_SZ)
    a("s_lshr_b32 s8, s4, 1"); a("s_and_b32 s9, s4, 1")
    a("s_lshl_b32 s10, s8, 3")
    a("s_mul_i32 s11, s8, 6"); a("s_add_u32 s11, s11, 32")
    a("s_cmp_eq_u32 s9, 1"); a("s_cselect_b32 s7, s10, s11")
    a("s_cselect_b32 s10, 8, 6")
    a("s_cmp_eq_u32 s4, 6"); a("s_cselect_b32 s10, 4, s10")
    a("s_lshl_b32 s11, s6, 1")
    a("s_add_u32 s7, s7, s11")
    a("s_mul_i32 s12, s8, 5"); a("s_mul_i32 s13, s9, 3"); a("s_add_u32 s12, s12, s13")
    a("s_lshl_b32 s14, s5, 8"); a(f"s_add_u32 s14, s14, {FLG}")
    a("s_lshl_b32 s13, s4, 2"); a("s_add_u32 s13, s13, s6"); a("s_lshl_b32 s13, s13, 2")
    a("s_add_u32 s16, s14, s13")
    a(f"v_mov_b32 v{VX0}, v3")
    a(f"v_add_u32 v{VX1}, 40960, v3")
    if prio is not None: a(f"s_setprio {prio}")
    def set_flag(a, vm, stage):
        a(f"v_mov_b32 v{VT}, 0"); a(f"v_mov_b32 v{VT+1}, 1")
        a("s_mov_b64 exec, 1")
        a(f"buffer_store_dword v{VT+1}, v{VT}, s[36:39], s16 offen offset:{128*stage} sc1"); vm.issue("flag")
        a("s_mov_b64 exec, -1")
    LAST1 = "C7"
    PH1 = BARS[:BARS.index(LAST1) + 1]
    lno1, lph2 = f"{name}_ffn_no1", f"{name}_ffn_ph2"
    a("s_cmp_ge_u32 s11, s10")
    a(f"s_cbranch_scc1 {lno1}")
    vm_idle = vm.clone(None)
    T0 = 4; AR = 68; BR = 100; DA = 8
    a("s_mul_i32 s18, s7, 40960")
    a(f"s_mul_i32 s17, s5, {2*108*1024}"); a("s_lshl_b32 s13, s7, 11"); a("s_add_u32 s17, s17, s13"); a(f"s_add_u32 s17, s17, {HF}")
    def a1_load(i):
        if i >= 80: return
        if X("NOLD1") and i >= DA: return
        r = AR + 4*(i % DA)
        if i % 4 == 0 and i > 0: a("s_add_u32 s18, s18, 4096")
        a(f"buffer_load_dwordx4 v[{r}:{r+3}], v3, s[44:47], s18 offen offset:{(i%4)*1024}"); vm.issue(("a1", i))
    def b1_load(i):
        if i >= 80: return
        ks = i % 40; r = BR + 8*(i % 2)
        a(f"ds_read_b128 v[{r}:{r+3}], v{VX0} offset:{ks*1024}")
        a(f"ds_read_b128 v[{r+4}:{r+7}], v{VX1} offset:{ks*1024}")
    def f1(i):
        ui, ks = divmod(i, 40)
        ra = AR + 4*(i % DA); rb = BR + 8*(i % 2)
        d0 = T0 + 32*ui; d1 = d0 + 16
        def s0():
            vm.wait(("a1", i), " lgkmcnt(0)")
            a(mfma32(d0, ra, rb, None if ks == 0 else d0))
            b1_load(i + 1)
        def s1():
            a(mfma32(d1, ra, rb + 4, None if ks == 0 else d1))
            a1_load(i + DA)
        return [s0, s1]
    def silu(ui, T):
        L = []
        for tt in range(2):
            for half in range(2):
                base = T0 + 32*ui + 16*tt + 8*half
                L += [f"v_exp_f32 v{T+i}, -v{base+i}" for i in range(8)]
                L += [f"v_add_f32 v{T+i}, 1.0, v{T+i}" for i in range(8)]
                L += [f"v_rcp_f32 v{T+i}, v{T+i}" for i in range(8)]
                L += [f"v_mul_f32 v{base+i}, v{base+i}, v{T+i}" for i in range(8)]
                L += [f"v_cvt_pk_bf16_f32 v{base+p}, v{base+2*p}, v{base+2*p+1}" for p in range(4)]
                def st(base=base, tt=tt, half=half):
                    a(f"s_add_u32 s15, s17, {(tt*108 + 2*ui + half)*1024}")
                    a(f"buffer_store_dwordx4 v[{base}:{base+3}], v3, s[36:39], s15 offen sc1"); vm.issue(("hst", ui))
                L.append(st)
        def pub():
            vm.wait(("hst", ui)); set_flag(a, vm, ui)
        return L, pub
    P1 = [f1(i) for i in range(40)]
    P2 = [f1(i) for i in range(40, 80)]
    sl0, pub0 = silu(0, 116)
    nfill = int(X("FILLSTEPS", "30"))
    E1 = interleave(a, P1, [])
    E2 = interleave(a, P2[:2], []) + interleave(a, P2[2:nfill], sl0) + interleave(a, P2[nfill:], [])
    sl1, pub1 = silu(1, 68)
    segs = {b: [] for b in BARS}
    segs["H3"] += [lambda: [a1_load(i) for i in range(DA)]]
    segs["HQ"] += [lambda: b1_load(0)]
    steps = E1 + E2
    n1 = [int(x) for x in X("F1SCHED", "4,11,11,11,11,11,11,10").split(",")]
    k = 0
    for b, n in zip(BARS[BARS.index("HQ"):], n1):
        for e in steps[k:k + n]:
            segs[b].append(e)
            k += 1
            if k == 80: segs[b].append(pub0)
    assert k == 80
    segs["C7"] += [lambda: a("s_nop 15")] + [(lambda f=f: f() if callable(f) else a(f)) for f in sl1]
    for b in PH1:
        barrier(a, vm, b)
        if b == "HQ": stamp(a, 2)
        if b == "C7": stamp(a, 3)
        for fn in segs[b]: fn()
    a(f"s_branch {lph2}")
    a.label(lno1)
    vi = vm_idle; vi.a = a
    set_flag(a, vi, 0); set_flag(a, vi, 1)
    for b in PH1: barrier(a, vi, b)
    a.label(lph2)
    q_end = [t for t in vi.q if isinstance(t, tuple) and t[0] == "kv"]
    PH2 = BARS[BARS.index(LAST1) + 1:]
    ACC = 4; AR2 = 100
    def phase2(n, vm):
        NF = n + 2; DEP = 3; NS = 28
        def setup():
            a("s_mul_i32 s13, s6, 28672")
            a(f"s_mul_i32 s8, s12, {W2K*1024}"); a("s_add_u32 s8, s8, s13")
            a(f"s_mul_i32 s9, s5, {2*110592}"); a(f"s_add_u32 s9, s9, {HF}")
            a("s_add_u32 s10, s9, s13")
            a("s_add_u32 s11, s10, 24576")
            a("s_cmp_eq_u32 s6, 3"); a(f"s_cbranch_scc0 {name}_m26_{n}")
            a("s_sub_u32 s11, s11, 4096")
            a.label(f"{name}_m26_{n}")
        def poll(stage):
            def fn():
                lp, ld = a.uid("poll"), a.uid("polld")
                a(f"v_and_b32 v{VT}, 31, v0"); a(f"v_lshlrev_b32 v{VT}, 2, v{VT}")
                a("s_mov_b32 s13, 0x4000")
                a.label(lp)
                a(f"buffer_load_dword v{VT+1}, v{VT}, s[36:39], s14 offen offset:{128*stage} sc1")
                a("s_waitcnt vmcnt(0)")
                a(f"v_cmp_ne_u32 vcc, 1, v{VT+1}")
                a("s_sub_u32 s13, s13, 1")
                a("s_nop 3")
                a(f"s_cbranch_vccz {ld}")
                a("s_cmp_eq_u32 s13, 0"); a(f"s_cbranch_scc1 {ld}")
                a("s_sleep 4")
                a(f"s_branch {lp}")
                a.label(ld)
                vm.q = []
            return fn
        def koff(s):
            stage, r = divmod(s, 14); i, half = divmod(r, 2)
            return i, 2*stage + half
        def ld_ops(s):
            if s >= NS or (X("NOLD2") and s >= DEP): return []
            i, o = koff(s); r = AR2 + 4*NF*(s % DEP)
            ops = []
            for j in range(n):
                def f(j=j):
                    a(f"s_add_u32 s15, s8, {j*W2K*1024 + i*4096}")
                    a(f"buffer_load_dwordx4 v[{r+4*j}:{r+4*j+3}], v3, s[48:51], s15 offen offset:{o*1024}"); vm.issue(("l2", s))
                ops.append(f)
            for tt in range(2):
                def f(tt=tt):
                    if i < 6: a(f"s_add_u32 s15, s10, {tt*110592 + i*4096}")
                    else: a(f"s_add_u32 s15, s11, {tt*110592}")
                    a(f"buffer_load_dwordx4 v[{r+4*(n+tt)}:{r+4*(n+tt)+3}], v3, s[36:39], s15 offen offset:{o*1024} sc1"); vm.issue(("l2", s))
                ops.append(f)
            return ops
        def f2(s):
            def fn():
                if s + DEP == 14: pend_poll = True
                vm.wait(("l2", s))
                r = AR2 + 4*NF*(s % DEP)
                nxt = ld_ops(s + DEP)
                if s + DEP == 14: nxt = []
                mf = []
                for j in range(n):
                    for tt in ((0, 1) if j % 2 == 0 else (1, 0)):
                        d = ACC + 16*(2*j + tt)
                        mf.append((mfma32(d, r + 4*j, r + 4*(n + tt), None if s == 0 else d), j))
                for x, (m, j) in enumerate(mf):
                    if not X("NOMF2"): a(m)
                    if x % 2 == 1 and nxt and j < n - 1: nxt[j]()
                if nxt:
                    for f in nxt[n-1:]: f()
                if s + DEP == 14:
                    poll(1)()
                    for f in ld_ops(14): f()
            return fn
        NT = 2*n; OWN = AR2
        def red_write():
            a("s_nop 15")
            a("s_mul_i32 s13, s6, 18432")
            a(f"v_add_u32 v{VX0}, s13, v3")
            ld = a.uid("rw_done"); ls = [a.uid("rw") for _ in range(4)]
            for w in range(4):
                if w < 3:
                    a(f"s_cmp_lg_u32 s6, {w}"); a(f"s_cbranch_scc1 {ls[w]}")
                for T in range(NT):
                    for i in range(4):
                        if i == w: continue
                        ip = (i - w - 1) % 4
                        r = ACC + 16*T + 4*i
                        a(f"ds_write_b128 v{VX0}, v[{r}:{r+3}] offset:{(T*3 + ip)*1024}")
                for T in range(NT):
                    for x in range(4): a(f"v_mov_b32 v{OWN+4*T+x}, v{ACC+16*T+4*w+x}")
                if w < 3:
                    a(f"s_branch {ld}"); a.label(ls[w])
            a.label(ld)
            a("s_waitcnt lgkmcnt(0)")
        def xload():
            a(f"v_and_b32 v{VT}, 31, v0"); a("s_lshl_b32 s13, s5, 6"); a(f"v_add_u32 v{VT}, s13, v{VT}")
            a(f"v_mul_u32_u24 v{VT}, 1280, v{VT}")
            a(f"v_lshrrev_b32 v{VT+1}, 5, v0"); a(f"v_lshl_add_u32 v{VT}, v{VT+1}, 3, v{VT}")
            a("s_lshl_b32 s13, s12, 6"); a("s_lshl_b32 s15, s6, 4"); a("s_add_u32 s13, s13, s15")
            for T in range(NT):
                j, tt = T >> 1, T & 1
                a(f"s_add_u32 s15, s13, {tt*32*1280 + j*64}")
                a(f"buffer_load_dwordx2 v[{OWN+24+2*T}:{OWN+24+2*T+1}], v{VT}, s[52:55], s15 offen"); vm.issue("x")
        def red_read():
            R = ACC
            for d in range(1, 4):
                a(f"s_add_u32 s13, s6, {d}"); a("s_and_b32 s13, s13, 3"); a("s_mul_i32 s13, s13, 18432")
                a(f"v_add_u32 v{VX1}, s13, v3")
                for T in range(NT):
                    r = R + 4*((d-1)*6 + T)
                    a(f"ds_read_b128 v[{r}:{r+3}], v{VX1} offset:{(T*3 + 3 - d)*1024}")
                a("s_waitcnt lgkmcnt(0)")
                for T in range(NT):
                    r = R + 4*((d-1)*6 + T)
                    for x in range(4): a(f"v_add_f32 v{OWN+4*T+x}, v{OWN+4*T+x}, v{r+x}")
            vm.wait("x")
            a("s_lshl_b32 s13, s5, 3"); a("s_add_u32 s13, s13, s4"); a("s_mul_i32 s13, s13, 12288")
            a("s_lshl_b32 s15, s6, 9"); a("s_add_u32 s13, s13, s15"); a(f"s_add_u32 s13, s13, {YF}")
            a(f"v_lshlrev_b32 v{VT}, 3, v0")
            a(f"s_mov_b32 s8, {f2u(LN2):#x}")
            for T in range(NT):
                xr = OWN + 24 + 2*T; y = OWN + 4*T; t = ACC
                a(f"v_lshlrev_b32 v{t}, 16, v{xr}"); a(f"v_and_b32 v{t+1}, 0xffff0000, v{xr}")
                a(f"v_lshlrev_b32 v{t+2}, 16, v{xr+1}"); a(f"v_and_b32 v{t+3}, 0xffff0000, v{xr+1}")
                for x in range(4): a(f"v_fma_f32 v{y+x}, v{y+x}, s8, v{t+x}")
                a(f"v_cvt_pk_bf16_f32 v{y}, v{y}, v{y+1}")
                a(f"v_cvt_pk_bf16_f32 v{y+1}, v{y+2}, v{y+3}")
                a(f"s_add_u32 s15, s13, {T*2048}")
                a(f"buffer_store_dwordx2 v[{y}:{y+1}], v{VT}, s[36:39], s15 offen" + ST); vm.issue("y")
        F2 = [f2(s) for s in range(NS)]
        segs = {b: [] for b in PH2}
        n2 = [int(x) for x in X("F2SCHED", "4,4,4,4,4,4,4").split(",")]
        segs[PH2[0]] += [setup, poll(0), lambda: set_flag(a, vm, 1), lambda: [f() for s in range(DEP) for f in ld_ops(s)]]
        k = 0
        for b, m in zip(PH2, n2):
            segs[b] += F2[k:k + m]; k += m
        assert k == NS
        segs["C14"] += [red_write, xload]
        segs["C15"] += [red_read]
        for b in PH2:
            barrier(a, vm, b)
            if b == PH2[0]: stamp(a, 4)
            if b == "C15": stamp(a, 5)
            for fn in segs[b]: fn()
        stamp(a, 6); stamp_rt(a, 7); stamp_store(a, 8)
        bstamp_store(a)
        a(f"s_branch {lend}")
    lodd = f"{name}_ffn_odd"
    a("s_and_b32 s13, s4, 1"); a("s_cmp_eq_u32 s13, 1")
    a(f"s_cbranch_scc1 {lodd}")
    v3_ = VM(a); v3_.q = list(q_end)
    phase2(3, v3_)
    a.label(lodd)
    v2_ = VM(a); v2_.q = list(q_end)
    phase2(2, v2_)
    return []
```

```python
from asmlib import *
from layout import *
from k0 import srd, kd

def gen_k3(name="out_kernel"):
    a = Asm()
    a(f".globl {name}\n.p2align 8\n.type {name},@function")
    a.label(name)
    a("s_cmp_ge_u32 s2, 256")
    a(f"s_cbranch_scc1 {name}_end")
    rt_begin(a)
    dbg_mark(a, 2, 7, first=True, vt=8)
    a("s_load_dwordx2 s[6:7], s[0:1], 64")
    a("s_load_dwordx2 s[20:21], s[0:1], 80")
    a("v_lshrrev_b32 v1, 6, v0")
    a("v_and_b32 v0, 63, v0")
    a("v_readfirstlane_b32 s3, v1")
    a("v_lshlrev_b32 v3, 4, v0")
    a("s_lshr_b32 s4, s2, 3"); a("s_and_b32 s4, s4, 7")
    a("s_lshr_b32 s5, s2, 6"); a("s_lshl_b32 s5, s5, 3"); a("s_and_b32 s8, s2, 7"); a("s_add_u32 s5, s5, s8")
    a("s_lshr_b32 s8, s4, 1"); a("s_and_b32 s9, s4, 1")
    a("s_mul_i32 s12, s8, 5"); a("s_mul_i32 s13, s9, 3"); a("s_add_u32 s12, s12, s13")
    a("s_waitcnt lgkmcnt(0)")
    srd(a, 24, 20, WOF_SZ, WOF)
    srd(a, 28, 20, OF_SZ, OF)
    srd(a, 32, 20, YF_SZ, YF)
    srd(a, 40, 6, X_SZ)
    a("s_mul_i32 s11, s3, 10240")
    a("s_mul_i32 s10, s12, 40960"); a("s_add_u32 s10, s10, s11")
    a("s_mul_i32 s14, s5, 81920"); a("s_add_u32 s14, s14, s11")
    a("s_lshl_b32 s15, s5, 3"); a("s_add_u32 s15, s15, s4"); a("s_mul_i32 s15, s15, 12288")
    a("s_lshl_b32 s16, s3, 9"); a("s_add_u32 s15, s15, s16")
    a("v_lshlrev_b32 v4, 3, v0")
    a("v_and_b32 v5, 31, v0"); a("s_lshl_b32 s17, s5, 6"); a("v_add_u32 v5, s17, v5")
    a("v_mul_u32_u24 v5, 1280, v5")
    a("v_lshrrev_b32 v6, 5, v0"); a("v_lshl_add_u32 v5, v6, 3, v5")
    a("s_lshl_b32 s17, s12, 6"); a("s_lshl_b32 s18, s3, 4"); a("s_add_u32 s17, s17, s18")
    a("v_add_u32 v5, s17, v5")
    def body(n):
        NF = n + 2; NT = 2*n
        F = 16
        Y = 220
        for k in range(10):
            for tt in range(2):
                r = F + 4*(NF*k + n + tt)
                a(f"s_add_u32 s13, s14, {tt*40960 + (k//4)*4096}")
                a(f"buffer_load_dwordx4 v[{r}:{r+3}], v3, s[28:31], s13 offen offset:{(k%4)*1024}")
            for j in range(n):
                r = F + 4*(NF*k + j)
                a(f"s_add_u32 s13, s10, {j*40960 + (k//4)*4096}")
                a(f"buffer_load_dwordx4 v[{r}:{r+3}], v3, s[24:27], s13 offen offset:{(k%4)*1024}")
        for T in range(NT):
            a(f"s_add_u32 s13, s15, {T*2048}")
            a(f"buffer_load_dwordx2 v[{Y+2*T}:{Y+2*T+1}], v4, s[32:35], s13 offen")
        for k in range(10):
            a(f"s_waitcnt vmcnt({NF*(9-k) + NT})")
            for j in range(n):
                for tt in ((0, 1) if j % 2 == 0 else (1, 0)):
                    T = 2*j + tt
                    c = "0" if k == 0 else f"a[{16*T}:{16*T+15}]"
                    a(f"v_mfma_f32_32x32x16_bf16 a[{16*T}:{16*T+15}], v[{F+4*(NF*k+j)}:{F+4*(NF*k+j)+3}], v[{F+4*(NF*k+n+tt)}:{F+4*(NF*k+n+tt)+3}], {c}")
        a("s_mul_i32 s19, s3, 24576")
        a("v_add_u32 v7, s19, v3")
        a("s_nop 7")
        a("s_nop 7")
        for T in range(NT):
            for i in range(4):
                a(f"ds_write_b128 v7, a[{16*T+4*i}:{16*T+4*i+3}] offset:{(T*4+i)*1024}")
        a("s_waitcnt lgkmcnt(0)")
        a("s_barrier")
        a("s_lshl_b32 s19, s3, 10")
        a("v_add_u32 v7, s19, v3")
        a("v_add_u32 v8, 49152, v7")
        R = 16
        for T in range(NT):
            for src in range(4):
                r = R + 4*(4*T + src)
                a(f"ds_read_b128 v[{r}:{r+3}], v{7 + src//2} offset:{(src%2)*24576 + T*4096}")
            if T % 2 == 1: a("s_waitcnt lgkmcnt(0)")
        S = 120
        for T in range(NT):
            for r in range(4):
                a(f"v_add_f32 v{S+4*T+r}, v{R+16*T+r}, v{R+16*T+4+r}")
                a(f"v_add_f32 v{R+16*T+8+r}, v{R+16*T+8+r}, v{R+16*T+12+r}")
            for r in range(4):
                a(f"v_add_f32 v{S+4*T+r}, v{S+4*T+r}, v{R+16*T+8+r}")
        a("s_waitcnt vmcnt(0)")
        t = 150
        for T in range(NT):
            j, tt = T >> 1, T & 1
            y = Y + 2*T
            a(f"v_lshlrev_b32 v{t}, 16, v{y}"); a(f"v_and_b32 v{t+1}, 0xffff0000, v{y}")
            a(f"v_lshlrev_b32 v{t+2}, 16, v{y+1}"); a(f"v_and_b32 v{t+3}, 0xffff0000, v{y+1}")
            for r in range(4): a(f"v_add_f32 v{S+4*T+r}, v{S+4*T+r}, v{t+r}")
            a(f"v_cvt_pk_bf16_f32 v{S+4*T}, v{S+4*T}, v{S+4*T+1}")
            a(f"v_cvt_pk_bf16_f32 v{S+4*T+1}, v{S+4*T+2}, v{S+4*T+3}")
            a(f"s_mov_b32 s13, {tt*32*1280 + j*64}")
            a(f"buffer_store_dwordx2 v[{S+4*T}:{S+4*T+1}], v5, s[40:43], s13 offen")
    lodd, lfin = f"{name}_odd", f"{name}_fin"
    a("s_cmp_eq_u32 s9, 1"); a(f"s_cbranch_scc1 {lodd}")
    body(3)
    a(f"s_branch {lfin}")
    a.label(lodd)
    body(2)
    a.label(lfin)
    dbg_mark(a, 2, 8, vt=8)
    rt_end(a, 20, 0x8200000, 124)
    a.label(f"{name}_end")
    a("s_endpgm")
    errs = check_hazards(a.lines, name)
    return a.text(), kd(name, 256 + 96, 100, accum=256), errs

def kernels(which):
    if which != "all": return []
    t, d, e = gen_k3()
    return [("out_kernel", t, d, e, 256, 256, 98304)]
```

```python
XN   = 0x0000000; XN_SZ  = 64*40*1024
KV   = 0x0300000; KV_SZ  = 64*4096
KMX  = 0x0380000; KMX_SZ = 1024
WQF  = 0x0400000; WQF_SZ = 32*40*768
W1F  = 0x0600000; W1F_SZ = 54*40*1024
W2K = 108
W2F  = 0x0900000; W2F_SZ = 20*W2K*1024
WOF  = 0x0C00000; WOF_SZ = 20*40*1024
OF   = 0x0D00000; OF_SZ  = 64*40*1024
HF   = 0x1000000; HF_SZ = 32*2*108*1024
DUM  = 0x1700000
YF   = 0x1800000; YF_SZ = 32*8*6*4*512
GFL  = 0x03A0000
OFL  = 0x03A2000
FLG  = 0x0390000; FLG_SZ = 32*256
WS_SZ = 268435456
X_SZ = 2048*640*2
LOG2E = 1.4426950408889634; LN2 = 0.6931471805599453
QSCALE = (20.0 ** -0.5)
import struct
def f2u(f): return struct.unpack("<I", struct.pack("<f", f))[0]
```

```python
from asmlib import *
from layout import *

def srd(a, d, ptr, size, off=0):
    if off:
        a(f"s_add_u32 s{d}, s{ptr}, {off}")
        a(f"s_addc_u32 s{d+1}, s{ptr+1}, 0")
    else:
        a(f"s_mov_b32 s{d}, s{ptr}")
        a(f"s_mov_b32 s{d+1}, s{ptr+1}")
    a(f"s_mov_b32 s{d+2}, {size}")
    a(f"s_mov_b32 s{d+3}, 0x20000")

import os
ST = os.environ.get("X_ST", " sc1")
def gen_k0(name="prep_kernel"):
    a = Asm()
    NLN = 128; NJOB = 720
    a(f".globl {name}\n.p2align 8\n.type {name},@function")
    a.label(name)
    a(f"s_cmp_ge_u32 s2, {NLN + NJOB//4}")
    a(f"s_cbranch_scc1 {name}_end")
    rt_begin(a)
    dbg_mark(a, 0, 0, first=True)
    a("s_load_dwordx8 s[4:11], s[0:1], 0")
    a("s_load_dwordx2 s[12:13], s[0:1], 32")
    a("s_load_dwordx4 s[16:19], s[0:1], 48")
    a("s_load_dwordx2 s[20:21], s[0:1], 80")
    a("v_lshrrev_b32 v1, 6, v0")
    a("v_and_b32 v0, 63, v0")
    a("v_readfirstlane_b32 s3, v1")
    a("v_lshlrev_b32 v2, 4, v0")
    a(f"s_cmp_ge_u32 s2, {NLN}")
    a(f"s_cbranch_scc1 {name}_relayout")
    a("s_waitcnt lgkmcnt(0)")
    srd(a, 24, 4, X_SZ)
    srd(a, 28, 8, 25600)
    srd(a, 32, 10, 25600)
    srd(a, 36, 20, FLG + FLG_SZ)
    a("v_lshrrev_b32 v3, 4, v0")
    a("v_and_b32 v4, 15, v0")
    a("s_lshl_b32 s22, s2, 4")
    a("s_lshl_b32 s23, s3, 2")
    a("s_add_u32 s22, s22, s23")
    a("v_add_u32 v5, s22, v3")
    a("v_mul_u32_u24 v5, 1280, v5")
    a("v_lshl_add_u32 v5, v4, 4, v5")
    for j in range(5):
        a(f"buffer_load_dwordx4 v[{16+4*j}:{19+4*j}], v5, s[24:27], 0 offen offset:{256*j}")
    a("s_lshl_b32 s40, s3, 10")
    for j in range(6):
        a(f"s_add_u32 s41, s40, {j*4096}")
        a("s_mov_b32 m0, s41")
        a(f"s_add_u32 s42, s41, 25600")
        a("buffer_load_dwordx4 v2, s[28:31], s41 offen lds")
        a("s_mov_b32 m0, s42")
        a("s_nop 0")
        a("buffer_load_dwordx4 v2, s[32:35], s41 offen lds")
    l = a.uid("k0_nolast")
    a("s_cmp_lg_u32 s3, 0")
    a(f"s_cbranch_scc1 {l}")
    a("s_movk_i32 s41, 24576")
    a("s_mov_b32 m0, s41")
    a("s_mov_b32 s42, 50176")
    a("buffer_load_dwordx4 v2, s[28:31], s41 offen lds")
    a("s_mov_b32 m0, s42")
    a("s_nop 0")
    a("buffer_load_dwordx4 v2, s[32:35], s41 offen lds")
    a.label(l)
    a("v_mov_b32 v6, 0x3f803f80")
    a("v_mov_b32 v7, 0")
    a("v_mov_b32 v8, 0")
    a("s_waitcnt vmcnt(12)")
    lz = a.uid("k0_noz")
    a("s_cmp_ge_u32 s2, 32"); a(f"s_cbranch_scc1 {lz}")
    a("s_cmp_lg_u32 s3, 0"); a(f"s_cbranch_scc1 {lz}")
    a("s_lshl_b32 s56, s2, 8"); a(f"s_add_u32 s56, s56, {FLG}")
    a("v_lshlrev_b32 v196, 2, v0"); a("v_mov_b32 v192, 0")
    a("buffer_store_dword v192, v196, s[36:39], s56 offen" + ST)
    a.label(lz)
    for i in range(20):
        a(f"v_dot2_f32_bf16 v7, v{16+i}, v6, v7")
        a(f"v_dot2_f32_bf16 v8, v{16+i}, v{16+i}, v8")
    for sh in (8, 4, 2, 1):
        a("s_nop 1")
        a(f"v_add_f32_dpp v7, v7, v7 row_ror:{sh} row_mask:0xf bank_mask:0xf")
        a(f"v_add_f32_dpp v8, v8, v8 row_ror:{sh} row_mask:0xf bank_mask:0xf")
    a("s_nop 0")
    a(f"v_mul_f32 v7, {f2u(1/640.):#x}, v7")
    a(f"v_mul_f32 v8, {f2u(1/640.):#x}, v8")
    a("v_fma_f32 v8, -v7, v7, v8")
    a("v_max_f32 v8, 0, v8")
    a(f"v_add_f32 v8, {f2u(1e-5):#x}, v8")
    a("v_rsq_f32 v8, v8")
    a("s_nop 0")
    a(f"v_mul_f32 v8, {f2u(LOG2E):#x}, v8")
    a("v_mul_f32 v9, v7, v8")
    for i in range(20):
        a(f"v_lshlrev_b32 v10, 16, v{16+i}")
        a(f"v_and_b32 v11, 0xffff0000, v{16+i}")
        a(f"v_fma_f32 v10, v10, v8, -v9")
        a(f"v_fma_f32 v11, v11, v8, -v9")
        a(f"v_cvt_pk_bf16_f32 v{16+i}, v10, v11")
    a("v_lshrrev_b32 v10, 2, v4")
    a("v_lshlrev_b32 v10, 10, v10")
    a("v_and_b32 v11, 3, v4")
    a("v_lshl_add_u32 v10, v11, 8, v10")
    a("v_add_u32 v11, s23, v3")
    a("v_lshl_add_u32 v10, v11, 4, v10")
    a("v_add_u32 v10, 51200, v10")
    for j in range(5):
        a(f"ds_write_b128 v10, v[{16+4*j}:{19+4*j}] offset:{j*4096}")
    a("s_waitcnt vmcnt(0) lgkmcnt(0)")
    a("s_barrier")
    XF = 32; WF = 112
    a("v_add_u32 v12, 51200, v2")
    a("v_lshrrev_b32 v13, 4, v0")
    a("v_and_b32 v14, 15, v0")
    a("v_lshrrev_b32 v15, 2, v14")
    a("v_lshl_add_u32 v15, v13, 3, v15")
    a("v_mul_u32_u24 v15, 40, v15")
    a("v_and_b32 v16, 3, v14")
    a("v_lshl_add_u32 v15, v16, 3, v15")
    a("s_and_b32 s43, s3, 1")
    a("s_lshl_b32 s43, s43, 5")
    a("s_lshr_b32 s44, s3, 1")
    a("s_mul_i32 s44, s44, 25600")
    a("s_add_u32 s43, s43, s44")
    a("v_add_u32 v15, s43, v15")
    for ks in range(20):
        a(f"ds_read_b128 v[{XF+4*ks}:{XF+4*ks+3}], v12 offset:{ks*1024}")
        a(f"ds_read_b64_tr_b16 v[{WF+4*ks}:{WF+4*ks+1}], v15 offset:{ks*1280}")
        a(f"ds_read_b64_tr_b16 v[{WF+4*ks+2}:{WF+4*ks+3}], v15 offset:{ks*1280+160}")
        if ks % 4 == 3: a("s_waitcnt lgkmcnt(0)")
    a("s_waitcnt lgkmcnt(0)")
    a("v_lshrrev_b32 v16, 1, v13")
    a("v_lshlrev_b32 v16, 10, v16")
    a("v_and_b32 v17, 1, v13")
    a("v_lshl_add_u32 v16, v17, 9, v16")
    a("s_and_b32 s45, s2, 1")
    a("s_lshl_b32 s46, s45, 4")
    a("v_add_u32 v18, s46, v14")
    a("v_lshl_add_u32 v16, v18, 4, v16")
    a("s_lshr_b32 s47, s2, 1")
    a("s_mul_i32 s48, s47, 40960")
    a("s_lshl_b32 s49, s3, 11")
    a("s_add_u32 s48, s48, s49")
    assert XN == 0
    lk = [a.uid("k0_st") for _ in range(4)]
    lst_done = a.uid("k0_stdone")
    for w in range(4):
        if w < 3:
            a(f"s_cmp_lg_u32 s3, {w}")
            a(f"s_cbranch_scc1 {lk[w]}")
        for j in range(5):
            ks = w + 4*j
            a(f"s_add_u32 s50, s48, {j*8192}")
            a(f"buffer_store_dwordx4 v[{XF+4*ks}:{XF+4*ks+3}], v16, s[36:39], s50 offen" + ST)
        if w < 3:
            a(f"s_branch {lst_done}")
            a.label(lk[w])
    a.label(lst_done)
    lv = a.uid("k0_vpath"); ld = a.uid("k0_mdone")
    D = 192
    a("s_cmp_ge_u32 s3, 2")
    a(f"s_cbranch_scc1 {lv}")
    for ks in range(20):
        c = "0" if ks == 0 else f"v[{D}:{D+3}]"
        a(f"v_mfma_f32_16x16x32_bf16 v[{D}:{D+3}], v[{WF+4*ks}:{WF+4*ks+3}], v[{XF+4*ks}:{XF+4*ks+3}], {c}")
    a(f"s_branch {ld}")
    a.label(lv)
    for ks in range(20):
        c = "0" if ks == 0 else f"v[{D}:{D+3}]"
        a(f"v_mfma_f32_16x16x32_bf16 v[{D}:{D+3}], v[{XF+4*ks}:{XF+4*ks+3}], v[{WF+4*ks}:{WF+4*ks+3}], {c}")
    a.label(ld)
    a("s_lshl_b32 s51, s47, 12")
    a(f"s_add_u32 s51, s51, {KV}")
    a("v_and_b32 v17, 1, v13")
    a("v_lshrrev_b32 v19, 1, v13")
    a("s_nop 7")
    for r in range(4): a(f"v_mul_f32 v{D+r}, {f2u(LN2):#x}, v{D+r}")
    a(f"v_cvt_pk_bf16_f32 v20, v{D}, v{D+1}")
    a(f"v_cvt_pk_bf16_f32 v21, v{D+2}, v{D+3}")
    l0, l1, l2, l3 = (a.uid("k0_ep") for _ in range(4))
    lend = f"{name}_fin"
    a("s_cmp_eq_u32 s3, 0"); a(f"s_cbranch_scc1 {l0}")
    a("s_cmp_eq_u32 s3, 1"); a(f"s_cbranch_scc1 {l1}")
    a("s_cmp_eq_u32 s3, 2"); a(f"s_cbranch_scc1 {l2}")
    a(f"s_branch {l3}")
    def knorm(slot):
        a(f"v_mul_f32 v22, v{D}, v{D}")
        for r in range(1, 4): a(f"v_fmac_f32 v22, v{D+r}, v{D+r}")
        if slot == 1:
            a("v_cmp_eq_u32 vcc, 0, v13")
            a("s_nop 1")
            a("v_cndmask_b32 v22, 0, v22, vcc")
        a("v_mov_b32 v23, v22")
        a("s_nop 1")
        a("v_permlane32_swap_b32 v22, v23")
        a("s_nop 1")
        a("v_add_f32 v22, v22, v23")
        a("v_mov_b32 v23, v22")
        a("s_nop 1")
        a("v_permlane16_swap_b32 v22, v23")
        a("s_nop 1")
        a("v_add_f32 v22, v22, v23")
        for sh in (8, 4, 2, 1):
            a("s_nop 1")
            a(f"v_max_f32_dpp v22, v22, v22 row_ror:{sh} row_mask:0xf bank_mask:0xf")
        a("s_lshl_b32 s52, s2, 3")
        a(f"s_add_u32 s52, s52, {KMX + 4*slot}")
        a("v_mov_b32 v23, 0")
        a("v_cmp_eq_u32 vcc, 0, v0")
        a("s_and_saveexec_b64 s[54:55], vcc")
        a("buffer_store_dword v22, v23, s[36:39], s52 offen" + ST)
        a("s_mov_b64 exec, s[54:55]")
    a.label(l0)
    a("v_lshl_add_u32 v24, v17, 5, v18")
    a("v_lshlrev_b32 v24, 4, v24")
    a("v_lshl_add_u32 v24, v19, 3, v24")
    a("buffer_store_dwordx2 v[20:21], v24, s[36:39], s51 offen" + ST)
    knorm(0)
    a(f"s_branch {lend}")
    a.label(l1)
    a("v_cmp_eq_u32 vcc, 1, v13")
    a("v_mov_b32 v25, 0x3f803f80")
    a("v_mov_b32 v26, 0x00003f80")
    a("v_cndmask_b32 v20, v20, v25, vcc")
    a("v_cndmask_b32 v21, v21, v26, vcc")
    a("v_lshl_add_u32 v24, v13, 5, v18")
    a("v_lshlrev_b32 v24, 3, v24")
    a("v_add_u32 v24, 1024, v24")
    a("v_cmp_gt_u32 vcc, 2, v13")
    a("s_and_saveexec_b64 s[54:55], vcc")
    a("buffer_store_dwordx2 v[20:21], v24, s[36:39], s51 offen" + ST)
    a("s_mov_b64 exec, s[54:55]")
    knorm(1)
    a(f"s_branch {lend}")
    a.label(l3)
    a("v_cmp_gt_u32 vcc, 4, v14")
    a("s_nop 1")
    a("v_cndmask_b32 v20, 0, v20, vcc")
    a("v_cndmask_b32 v21, 0, v21, vcc")
    a("v_cmp_eq_u32 vcc, 4, v14")
    a("v_mov_b32 v25, 0x3f803f80")
    a("s_nop 0")
    a("v_cndmask_b32 v20, v20, v25, vcc")
    a("v_cndmask_b32 v21, v21, v25, vcc")
    a("v_add_u32 v14, 16, v14")
    a.label(l2)
    a("v_lshl_add_u32 v24, v17, 5, v14")
    a("v_lshlrev_b32 v24, 4, v24")
    a("v_lshl_add_u32 v24, v19, 3, v24")
    a("s_lshl_b32 s52, s45, 10")
    a("s_add_u32 s52, s52, s51")
    a("s_add_u32 s52, s52, 2048")
    a("buffer_store_dwordx2 v[20:21], v24, s[36:39], s52 offen" + ST)
    a(f"s_branch {lend}")

    a.label(f"{name}_relayout")
    a(f"s_sub_u32 s22, s2, {NLN}")
    a("s_lshl_b32 s22, s22, 2")
    a("s_add_u32 s22, s22, s3")
    a("s_mul_i32 s60, s3, 10240")
    a("s_waitcnt lgkmcnt(0)")
    lw2, lwo, lwq, lgo = (a.uid("k0_j") for _ in range(4))
    a("s_cmp_ge_u32 s22, 640"); a(f"s_cbranch_scc1 {lwq}")
    a("s_cmp_ge_u32 s22, 540"); a(f"s_cbranch_scc1 {lwo}")
    a("s_cmp_ge_u32 s22, 270"); a(f"s_cbranch_scc1 {lw2}")
    def div(dst, src, d):
        m = (1 << 32) // d + 1
        a(f"s_mul_hi_u32 s{dst}, s{src}, {m}")
    srd(a, 24, 16, 640*1728*2)
    div(46, 22, 27)
    a("s_mul_i32 s47, s46, 27"); a("s_sub_u32 s47, s22, s47")
    a("s_mov_b32 s40, 3456")
    a(f"s_mul_i32 s41, s46, {64*3456}"); a("s_lshl_b32 s48, s47, 7"); a("s_add_u32 s41, s41, s48")
    a(f"s_mul_i32 s42, s47, {2*40*1024}"); a("s_lshl_b32 s48, s46, 12"); a("s_add_u32 s42, s42, s48"); a(f"s_add_u32 s42, s42, {W1F}")
    a("s_mov_b32 s43, 40960"); a("s_mov_b32 s44, 8"); a("s_mov_b32 s45, 4")
    a(f"s_branch {lgo}")
    a.label(lw2)
    srd(a, 24, 18, 1728*640*2)
    a("s_sub_u32 s22, s22, 270")
    div(46, 22, 10)
    a("s_mul_i32 s47, s46, 10"); a("s_sub_u32 s47, s22, s47")
    a("s_mov_b32 s40, 1280")
    a(f"s_mul_i32 s41, s46, {64*1280}"); a("s_lshl_b32 s48, s47, 7"); a("s_add_u32 s41, s41, s48")
    a(f"s_mul_i32 s42, s47, {2*W2K*1024}"); a("s_lshl_b32 s48, s46, 12"); a("s_add_u32 s42, s42, s48"); a(f"s_add_u32 s42, s42, {W2F}")
    a(f"s_mov_b32 s43, {W2K*1024}"); a("s_mov_b32 s44, 4"); a("s_mov_b32 s45, 8")
    a(f"s_branch {lgo}")
    a.label(lwo)
    srd(a, 24, 12, 640*640*2)
    a("s_sub_u32 s22, s22, 540")
    div(46, 22, 10)
    a("s_mul_i32 s47, s46, 10"); a("s_sub_u32 s47, s22, s47")
    a("s_mov_b32 s40, 1280")
    a(f"s_mul_i32 s41, s46, {64*1280}"); a("s_lshl_b32 s48, s47, 7"); a("s_add_u32 s41, s41, s48")
    a(f"s_mul_i32 s42, s47, {2*40*1024}"); a("s_lshl_b32 s48, s46, 12"); a("s_add_u32 s42, s42, s48"); a(f"s_add_u32 s42, s42, {WOF}")
    a("s_mov_b32 s43, 40960"); a("s_mov_b32 s44, 8"); a("s_mov_b32 s45, 4")
    a.label(lgo)
    srd(a, 28, 20, OF)
    a("v_lshrrev_b32 v3, 3, v0")
    a("v_mul_lo_u32 v3, v3, s40")
    a("v_and_b32 v4, 7, v0")
    a("v_lshl_add_u32 v3, v4, 4, v3")
    a("s_lshl_b32 s49, s40, 3")
    a("s_mov_b32 s50, s60")
    for i in range(8):
        a("s_mov_b32 m0, s50")
        a("s_add_u32 s50, s50, 1024")
        a("buffer_load_dwordx4 v3, s[24:27], s41 offen lds")
        a("s_add_u32 s41, s41, s49")
    a("v_lshrrev_b32 v5, 5, v0")
    a("v_mul_lo_u32 v5, v5, s44")
    a("v_and_b32 v6, 15, v0")
    a("v_lshrrev_b32 v7, 2, v6")
    a("v_add_u32 v5, v5, v7")
    a("v_lshlrev_b32 v5, 7, v5")
    a("v_bfe_u32 v7, v0, 4, 1")
    a("v_lshl_add_u32 v5, v7, 5, v5")
    a("v_and_b32 v7, 3, v6")
    a("v_lshl_add_u32 v5, v7, 3, v5")
    a("v_add_u32 v5, s60, v5")
    a("s_lshl_b32 s45, s45, 7")
    a("v_add_u32 v6, s45, v5")
    a("s_waitcnt vmcnt(0)")
    for nt in range(2):
        for kk in range(4):
            r = 16 + 4*(nt*4+kk)
            a(f"ds_read_b64_tr_b16 v[{r}:{r+1}], v5 offset:{nt*64 + kk*2048}")
            a(f"ds_read_b64_tr_b16 v[{r+2}:{r+3}], v6 offset:{nt*64 + kk*2048}")
        a("s_waitcnt lgkmcnt(0)")
        for kk in range(4):
            r = 16 + 4*(nt*4+kk)
            a(f"s_add_u32 s50, s42, {kk*1024}")
            a(f"buffer_store_dwordx4 v[{r}:{r+3}], v2, s[28:31], s50 offen" + ST)
        if nt == 0: a("s_add_u32 s42, s42, s43")
    a(f"s_branch {name}_fin")
    a.label(lwq)
    srd(a, 24, 6, 640*640*2)
    srd(a, 28, 20, OF)
    a("s_sub_u32 s22, s22, 640")
    a("s_lshr_b32 s46, s22, 3")
    a("s_and_b32 s47, s22, 7")
    a(f"s_mul_i32 s41, s46, {64*1280}"); a("s_mul_i32 s48, s47, 160"); a("s_add_u32 s41, s41, s48")
    a(f"s_mul_i32 s42, s47, {4*40*768}"); a("s_mul_i32 s48, s46, 3072"); a("s_add_u32 s42, s42, s48"); a(f"s_add_u32 s42, s42, {WQF}")
    a("s_mov_b32 s50, s60")
    a("s_movk_i32 s51, 6554")
    for i in range(10):
        a(f"v_add_u32 v3, {64*i}, v0")
        a("v_mul_lo_u32 v4, v3, s51")
        a("v_lshrrev_b32 v4, 16, v4")
        a("v_mul_u32_u24 v5, 10, v4")
        a("v_sub_u32 v3, v3, v5")
        a("v_mul_u32_u24 v4, 1280, v4")
        a("v_lshl_add_u32 v3, v3, 4, v4")
        a("s_mov_b32 m0, s50")
        a("s_add_u32 s50, s50, 1024")
        a("buffer_load_dwordx4 v3, s[24:27], s41 offen lds")
    a("v_lshrrev_b32 v5, 5, v0")
    a("v_lshlrev_b32 v5, 3, v5")
    a("v_and_b32 v6, 15, v0")
    a("v_lshrrev_b32 v7, 2, v6")
    a("v_add_u32 v5, v5, v7")
    a("v_mul_u32_u24 v5, 160, v5")
    a("v_bfe_u32 v7, v0, 4, 1")
    a("v_lshl_add_u32 v5, v7, 5, v5")
    a("v_and_b32 v8, 3, v6")
    a("v_lshl_add_u32 v5, v8, 3, v5")
    a("v_add_u32 v5, s60, v5")
    a("v_lshl_add_u32 v8, v7, 4, v6")
    a("v_cmp_gt_u32 vcc, 20, v8")
    a("v_mov_b32 v9, 0")
    a("v_mov_b32 v10, -1")
    a("v_cndmask_b32 v9, v9, v10, vcc")
    a("v_lshrrev_b32 v11, 5, v0"); a("v_mul_u32_u24 v11, 384, v11")
    a("v_and_b32 v12, 31, v0"); a("v_lshl_add_u32 v11, v12, 4, v11")
    a("v_cmp_gt_u32 s[56:57], 24, v12")
    a("s_waitcnt vmcnt(0)")
    for hh in range(4):
        for kk in range(4):
            r = 16 + 4*(hh*4+kk)
            a(f"ds_read_b64_tr_b16 v[{r}:{r+1}], v5 offset:{hh*40 + kk*16*160}")
            a(f"ds_read_b64_tr_b16 v[{r+2}:{r+3}], v5 offset:{hh*40 + kk*16*160 + 4*160}")
        a("s_waitcnt lgkmcnt(0)")
        for kk in range(4):
            r = 16 + 4*(hh*4+kk)
            for x in range(4): a(f"v_and_b32 v{r+x}, v{r+x}, v9")
            a(f"s_add_u32 s50, s42, {hh*40*768 + kk*768}")
            a("s_mov_b64 exec, s[56:57]")
            a(f"buffer_store_dwordx4 v[{r}:{r+3}], v11, s[28:31], s50 offen" + ST)
            a("s_mov_b64 exec, -1")
    a.label(f"{name}_fin")
    dbg_mark(a, 0, 1, vt=196)
    rt_end(a, 20, 0x8100000, 196)
    a.label(f"{name}_end")
    a("s_endpgm")
    errs = check_hazards(a.lines, name)
    desc = kd(name, 200, 100)
    return a.text(), desc, errs

def kd(name, nv, ns=96, accum=None):
    acc = accum or ((nv + 3)//4*4)
    return f""".section .rodata,"a"
.p2align 6
.amdhsa_kernel {name}
  .amdhsa_next_free_vgpr {nv}
  .amdhsa_next_free_sgpr {ns}
  .amdhsa_accum_offset {acc}
  .amdhsa_group_segment_fixed_size 0
  .amdhsa_kernarg_size 88
  .amdhsa_user_sgpr_count 2
  .amdhsa_user_sgpr_kernarg_segment_ptr 1
  .amdhsa_system_sgpr_workgroup_id_x 1
  .amdhsa_float_denorm_mode_32 3
.end_amdhsa_kernel
.text
"""
if __name__ == "__main__":
    t, d, e = gen_k0()
    for x in e: print(x)
    open("k0.s", "w").write('.amdgcn_target "amdgcn-amd-amdhsa--gfx950"\n.text\n' + t + d)
```

```python
from asmlib import *
from layout import *
from k0 import srd
import k2
from k2 import mfma32, stamp, stamp_rt, stamp_store, KVL, X, ST, xn_piece

VX0, VX1 = 164, 165
VT = 160

class VM:
    def __init__(self, a): self.a = a; self.q = []
    def issue(self, tag, maybe=False): self.q.append((tag, maybe))
    def wait(self, tag, extra=""):
        hits = [i for i, t in enumerate(self.q) if t[0] == tag]
        if not hits:
            if extra: self.a("s_waitcnt" + extra)
            return
        idx = max(hits)
        n = sum(1 for t in self.q[idx + 1:] if not t[1])
        assert n <= 63
        self.a(f"s_waitcnt vmcnt({n}){extra}")
        self.q = self.q[idx + 1:]
    def clone(self, a):
        v = VM(a); v.q = list(self.q); return v

def kv_dma(a, vm, c):
    if c > 15: return
    a(f"s_add_u32 m0, s41, {(c % 4)*16384}")
    a(f"s_add_u32 s15, s40, {c*16384}")
    for i in range(4):
        a(f"buffer_load_dwordx4 v3, s[28:31], s15 offen offset:{i*1024} lds"); vm.issue(("kv", c))

BARS = ["H0", "H1", "H2", "H3", "HQ"] + [f"C{i}" for i in range(16)]
def bstamp(a, name):
    if not X("BSTAMP"): return
    i = BARS.index(name)
    a("s_memtime s[96:97]"); a("s_waitcnt lgkmcnt(0)"); a(f"s_mov_b32 s{64+i}, s96")
def bstamp_store(a):
    if not X("BSTAMP"): return
    a("s_memtime s[96:97]"); a("s_waitcnt lgkmcnt(0)"); a("s_mov_b32 s85, s96")
    a("s_lshl_b32 s58, s2, 2"); a("s_add_u32 s58, s58, s6"); a("s_lshl_b32 s58, s58, 7")
    a(f"s_add_u32 s56, s20, 0x8400000"); a("s_addc_u32 s57, s21, 0")
    a("v_mov_b32 v160, s58")
    for i in range(22):
        a(f"v_mov_b32 v161, s{64+i}")
        a(f"global_store_dword v160, v161, s[56:57] offset:{4*i}")
        a("s_nop 1")
def barrier(a, vm, name):
    if name in ("HQ", "CE"):
        a("s_barrier")
    elif name[0] == "H":
        vm.wait(("xn", int(name[1]))); a("s_barrier")
        if name == "H3":
            for c in range(3): kv_dma(a, vm, c)
    else:
        c = int(name[1:])
        vm.wait(("kv", c + 1))
        a("s_barrier")
        kv_dma(a, vm, c + 3)
    bstamp(a, name)

VPRIO = int(X("VPRIO", "2"))
def hi(a):
    if VPRIO: a(f"s_setprio {VPRIO}")
def lo(a):
    if VPRIO: a("s_setprio 0")
def interleave(a, steps, fill):
    nslots = sum(len(s) for s in steps)
    out = []; done = 0; used = 0
    for s in steps:
        grp = []
        for slot in s:
            done += 1
            tgt = (len(fill)*done + nslots - 1)//nslots if nslots else 0
            mine = fill[used:tgt]; used = max(used, tgt)
            grp.append((slot, mine))
        def emit(grp=grp):
            for slot, mine in grp:
                slot()
                if mine and VPRIO: a(f"s_setprio {VPRIO}")
                for f in mine:
                    f() if callable(f) else a(f)
                if mine and VPRIO: a("s_setprio 0")
        out.append(emit)
    return out

def gen_ffn_wave(a, name, prio, ffn=True):
    lend = f"{name}_end"
    vm0 = VM(a)
    for st in range(4):
        xn_piece(a, st, 0); vm0.issue(("xn", st))
    a("s_sub_u32 s6, s3, 8")
    a("s_lshl_b32 s40, s6, 12")
    a(f"s_add_u32 s41, s40, {KVL}")
    if not ffn:
        for b in BARS: barrier(a, vm0, b)
        a(f"s_branch {lend}")
        return []
    srd(a, 44, 20, W1F_SZ, W1F)
    srd(a, 48, 20, W2F_SZ, W2F)
    a("s_lshr_b32 s8, s4, 1"); a("s_and_b32 s9, s4, 1")
    a("s_lshl_b32 s7, s4, 2"); a("s_add_u32 s7, s7, s6")
    a("s_mul_i32 s12, s8, 5"); a("s_mul_i32 s13, s9, 3"); a("s_add_u32 s12, s12, s13")
    a("s_lshl_b32 s14, s5, 8"); a(f"s_add_u32 s14, s14, {FLG}")
    a("s_lshl_b32 s13, s7, 2"); a("s_add_u32 s16, s14, s13")
    a(f"s_mul_i32 s17, s5, {2*108*1024}"); a(f"s_add_u32 s17, s17, {HF}")
    a(f"v_mov_b32 v{VX0}, v3")
    a(f"v_add_u32 v{VX1}, 40960, v3")
    if prio is not None: a(f"s_setprio {prio}")
    def set_flag(vm, stage):
        a(f"v_mov_b32 v{VT+2}, 0"); a(f"v_mov_b32 v{VT+3}, 1")
        a("s_mov_b64 exec, 1")
        a(f"buffer_store_dword v{VT+3}, v{VT+2}, s[36:39], s16 offen offset:{128*stage} sc1"); vm.issue("flag")
        a("s_mov_b64 exec, -1")
    def poll_issue(vm, stage):
        a(f"v_and_b32 v{VT}, 31, v0"); a(f"v_lshlrev_b32 v{VT}, 2, v{VT}")
        a(f"buffer_load_dword v{VT+1}, v{VT}, s[36:39], s14 offen offset:{128*stage} sc1"); vm.issue(("poll", stage))
    def poll_check(vm, stage):
        lp, ld = a.uid("poll"), a.uid("polld")
        vm.wait(("poll", stage))
        a(f"v_cmp_ne_u32 vcc, 1, v{VT+1}")
        a("s_mov_b32 s13, 0x4000")
        a("s_nop 3")
        a(f"s_cbranch_vccz {ld}")
        a.label(lp)
        a(f"buffer_load_dword v{VT+1}, v{VT}, s[36:39], s14 offen offset:{128*stage} sc1")
        a("s_waitcnt vmcnt(0)")
        a(f"v_cmp_ne_u32 vcc, 1, v{VT+1}")
        a("s_sub_u32 s13, s13, 1")
        a("s_nop 3")
        a(f"s_cbranch_vccz {ld}")
        a("s_cmp_eq_u32 s13, 0"); a(f"s_cbranch_scc1 {ld}")
        a("s_sleep 2")
        a(f"s_branch {lp}")
        a.label(ld)
    T0 = 4; AR = 68; BR = 100; DA = 8
    ACC = 4; AR2 = 100

    def path(n):
        vm = vm0.clone(a)
        full_b = (n == 2)
        def silu(tiles, T, sbase, tag, maybe=False):
            L = []
            for (tb_, delta) in tiles:
                for half in range(2):
                    base = tb_ + 8*half
                    L += [f"v_exp_f32 v{T+i}, -v{base+i}" for i in range(8)]
                    L += [f"v_add_f32 v{T+i}, 1.0, v{T+i}" for i in range(8)]
                    L += [f"v_rcp_f32 v{T+i}, v{T+i}" for i in range(8)]
                    L += [f"v_mul_f32 v{base+i}, v{base+i}, v{T+i}" for i in range(8)]
                    L += [f"v_cvt_pk_bf16_f32 v{base+p}, v{base+2*p}, v{base+2*p+1}" for p in range(4)]
                    def st(base=base, off=delta + half*1024):
                        a(f"s_add_u32 s15, s{sbase}, {off}")
                        a(f"buffer_store_dwordx4 v[{base}:{base+3}], v3, s[36:39], s15 offen sc1"); vm.issue(tag, maybe)
                    L.append(st)
            return L
        a("s_mul_i32 s18, s7, 40960")
        a("s_lshl_b32 s13, s7, 11"); a("s_add_u32 s10, s17, s13")
        if full_b:
            a("s_lshl_b32 s13, s8, 2"); a("s_add_u32 s13, s13, s6"); a("s_add_u32 s13, s13, 32")
            a("s_lshl_b32 s11, s13, 11"); a("s_add_u32 s11, s11, s17")
        else:
            a("s_lshr_b32 s13, s6, 1"); a("s_add_u32 s13, s13, s4"); a("s_add_u32 s13, s13, 48")
            a("s_and_b32 s15, s6, 1"); a("s_mul_i32 s15, s15, 110592")
            a("s_lshl_b32 s11, s13, 11"); a("s_add_u32 s11, s11, s17"); a("s_add_u32 s11, s11, s15")
            a("s_lshl_b32 s15, s6, 11"); a(f"s_add_u32 s15, s15, {DUM}")
            a("s_cmp_eq_u32 s4, 6"); a("s_cselect_b32 s11, s15, s11")
            a("s_and_b32 s15, s6, 1"); a("s_mul_i32 s15, s15, 40960")
            a(f"v_add_u32 v{VT+6}, s15, v3")
        a("s_mul_i32 s19, s13, 40960")
        def a1_load(i):
            if i >= 80: return
            if X("NOLD1") and i >= DA: return
            r = AR + 4*(i % DA)
            if i == 40: a("s_mov_b32 s18, s19")
            elif i % 4 == 0 and i > 0: a("s_add_u32 s18, s18, 4096")
            a(f"buffer_load_dwordx4 v[{r}:{r+3}], v3, s[44:47], s18 offen offset:{(i%4)*1024}"); vm.issue(("a1", i))
        DB = 3
        def b1_load(i):
            if i >= 80: return
            ks = i % 40; r = BR + 8*(i % DB)
            if i < 40 or full_b:
                a(f"ds_read_b128 v[{r}:{r+3}], v{VX0} offset:{ks*1024}")
                a(f"ds_read_b128 v[{r+4}:{r+7}], v{VX1} offset:{ks*1024}")
            else:
                a(f"ds_read_b128 v[{r}:{r+3}], v{VT+6} offset:{ks*1024}")
        nb = lambda i: 0 if i >= 80 else (2 if (i < 40 or full_b) else 1)
        def f1(i):
            st_, ks = divmod(i, 40)
            ra = AR + 4*(i % DA); rb = BR + 8*(i % DB)
            d0 = T0 + 32*st_; d1 = d0 + 16
            two = (st_ == 0 or full_b)
            def s0():
                vm.wait(("a1", i), f" lgkmcnt({nb(i + 1)})")
                a(mfma32(d0, ra, rb, None if ks == 0 else d0))
                if not two:
                    b1_load(i + 2); a1_load(i + DA)
            def s1():
                a(mfma32(d1, ra, rb + 4, None if ks == 0 else d1))
                b1_load(i + 2)
                a1_load(i + DA)
            return [s0, s1] if two else [s0]
        P1 = [f1(i) for i in range(40)]
        P2 = [f1(i) for i in range(40, 80)]
        sl0 = silu([(T0, 0), (T0 + 16, 110592)], 124, 10, "hst0")
        lead = 3 if full_b else 5
        nfill = int(X("NFILL%d" % n, "22" if full_b else "26"))
        steps = interleave(a, P1, []) + interleave(a, P2[:lead], []) + interleave(a, P2[lead:nfill], sl0) + interleave(a, P2[nfill:], [])
        npub0 = min(80, 40 + nfill + (5 if full_b else 4))
        NF = n + 2; DEP = 3; NS = 27; NA = 16
        def setup2():
            a("s_lshl_b32 s13, s6, 14")
            a(f"s_mul_i32 s8, s12, {W2K*1024}")
            a("s_mul_i32 s15, s6, 11264"); a("s_add_u32 s15, s15, 65536")
            a("s_add_u32 s9, s8, s15"); a("s_add_u32 s8, s8, s13")
            a("s_add_u32 s19, s17, s15"); a("s_add_u32 s18, s17, s13")
        def ld_ops(s):
            if s >= NS or (X("NOLD2") and s >= DEP): return []
            sa, sb, i = (8, 18, s) if s < NA else (9, 19, s - NA)
            r = AR2 + 4*NF*(s % DEP)
            hi, lo = (i // 4)*4096, (i % 4)*1024
            ops = []
            for j in range(n):
                def f(j=j):
                    a(f"s_add_u32 s15, s{sa}, {j*W2K*1024 + hi}")
                    a(f"buffer_load_dwordx4 v[{r+4*j}:{r+4*j+3}], v3, s[48:51], s15 offen offset:{lo}"); vm.issue(("l2", s))
                ops.append(f)
            for tt in range(2):
                def f(tt=tt):
                    a(f"s_add_u32 s15, s{sb}, {tt*110592 + hi}")
                    a(f"buffer_load_dwordx4 v[{r+4*(n+tt)}:{r+4*(n+tt)+3}], v3, s[36:39], s15 offen offset:{lo} sc1"); vm.issue(("l2", s))
                ops.append(f)
            return ops
        def f2(s):
            def fn():
                vm.wait(("l2", s))
                r = AR2 + 4*NF*(s % DEP)
                if s + DEP == NA: poll_check(vm, 1)
                nxt = ld_ops(s + DEP)
                mf = []
                for j in range(n):
                    for tt in ((0, 1) if j % 2 == 0 else (1, 0)):
                        d = ACC + 16*(2*j + tt)
                        mf.append((mfma32(d, r + 4*j, r + 4*(n + tt), None if s == 0 else d), j))
                for x, (m, j) in enumerate(mf):
                    if not X("NOMF2"): a(m)
                    if x % 2 == 1 and nxt and j < n - 1: nxt[j]()
                if nxt:
                    for f in nxt[n-1:]: f()
                if s + DEP == NA - 2: poll_issue(vm, 1)
                if s == 1:
                    vm.wait("hst1"); set_flag(vm, 1)
            return fn
        NT = 2*n; OWN = AR2
        def red_write():
            a("s_mul_i32 s13, s6, 18432")
            a(f"v_add_u32 v{VX0}, s13, v3")
            ld = a.uid("rw_done"); ls = [a.uid("rw") for _ in range(4)]
            for w in range(4):
                if w < 3:
                    a(f"s_cmp_lg_u32 s6, {w}"); a(f"s_cbranch_scc1 {ls[w]}")
                a("s_nop 15")
                for T in range(NT):
                    for i in range(4):
                        if i == w: continue
                        ip = (i - w - 1) % 4
                        r = ACC + 16*T + 4*i
                        a(f"ds_write_b128 v{VX0}, v[{r}:{r+3}] offset:{(T*3 + ip)*1024}")
                for T in range(NT):
                    for x in range(4): a(f"v_mov_b32 v{OWN+4*T+x}, v{ACC+16*T+4*w+x}")
                if w < 3:
                    a(f"s_branch {ld}"); a.label(ls[w])
            a.label(ld)
            a("s_waitcnt lgkmcnt(0)")
        def red_read():
            R = ACC
            for d in range(1, 4):
                a(f"s_add_u32 s13, s6, {d}"); a("s_and_b32 s13, s13, 3"); a("s_mul_i32 s13, s13, 18432")
                a(f"v_add_u32 v{VX1}, s13, v3")
                for T in range(NT):
                    r = R + 4*((d-1)*6 + T)
                    a(f"ds_read_b128 v[{r}:{r+3}], v{VX1} offset:{(T*3 + 3 - d)*1024}")
            a("s_lshl_b32 s13, s5, 3"); a("s_add_u32 s13, s13, s4"); a("s_mul_i32 s13, s13, 12288")
            a("s_lshl_b32 s15, s6, 9"); a("s_add_u32 s13, s13, s15"); a(f"s_add_u32 s13, s13, {YF}")
            a(f"v_lshlrev_b32 v{VT}, 3, v0")
            a(f"s_mov_b32 s8, {f2u(LN2):#x}")
            a("s_waitcnt lgkmcnt(0)")
            for T in range(NT):
                y = OWN + 4*T
                for d in range(1, 4):
                    r = R + 4*((d-1)*6 + T)
                    for x in range(4): a(f"v_add_f32 v{y+x}, v{y+x}, v{r+x}")
                for x in range(4): a(f"v_mul_f32 v{y+x}, s8, v{y+x}")
                a(f"v_cvt_pk_bf16_f32 v{y}, v{y}, v{y+1}")
                a(f"v_cvt_pk_bf16_f32 v{y+1}, v{y+2}, v{y+3}")
                a(f"s_add_u32 s15, s13, {T*2048}")
                a(f"buffer_store_dwordx2 v[{y}:{y+1}], v{VT}, s[36:39], s15 offen" + ST); vm.issue("y")
        def mid():
            setup2()
            poll_issue(vm, 0)
            a("s_nop 7")
            tiles = [(T0 + 32, 0), (T0 + 48, 110592)] if full_b else [(T0 + 32, 0)]
            hi(a)
            for f in silu(tiles, 68, 11, "hst1"): f() if callable(f) else a(f)
            poll_check(vm, 0)
            for st_ in range(DEP):
                for f in ld_ops(st_): f()
            lo(a)
        segs = {b: [] for b in BARS}
        segs["H3"] += [lambda: [a1_load(i) for i in range(DA)]]
        segs["HQ"] += [lambda: (b1_load(0), b1_load(1))]
        n1 = [int(x) for x in X("F1SCHED%d" % n, "8,11,11,10,10,10,10,10" if full_b else "8,11,11,10,14,13,13").split(",")]
        order = BARS[BARS.index("HQ"):]
        k = 0
        for b, m in zip(order, n1):
            for e in steps[k:k + m]:
                segs[b].append(e)
                k += 1
                if k == npub0: segs[b].append(lambda: (vm.wait("hst0"), set_flag(vm, 0)))
        assert k == 80
        last1 = order[len(n1) - 1]
        bmid = order[len(n1)]
        segs[bmid].append(mid)
        n2 = [int(x) for x in X("F2SCHED%d" % n, "5,5,5,4,4,4" if full_b else "4,4,4,4,4,4,3").split(",")]
        F2 = [f2(s) for s in range(NS)]
        k = 0
        for b, m in zip(order[len(n1) + 1:], n2):
            segs[b] += F2[k:k + m]; k += m
        assert k == NS and order[len(n1) + len(n2)] in ("C13",), (order[len(n1) + len(n2)])
        segs["C14"] += [lambda: hi(a), red_write]
        segs["C15"] += [red_read]
        for b in BARS:
            barrier(a, vm, b)
            if b == "HQ": stamp(a, 2)
            if b == bmid: stamp(a, 3)
            if b == order[len(n1) + 1]: stamp(a, 4)
            if b == "C14": stamp(a, 5)
            for fn in segs[b]: fn()
        stamp(a, 6); stamp_rt(a, 7); stamp_store(a, 8)
        bstamp_store(a)
        a(f"s_branch {lend}")
    lodd = f"{name}_ffn_odd"
    a("s_cmp_eq_u32 s9, 1")
    a(f"s_cbranch_scc1 {lodd}")
    path(3)
    a.label(lodd)
    path(2)
    return []
```

```python
from asmlib import *
from layout import *
from k0 import srd, kd

def gen_k3(name="out_kernel"):
    a = Asm()
    a(f".globl {name}\n.p2align 8\n.type {name},@function")
    a.label(name)
    a("s_cmp_ge_u32 s2, 256")
    a(f"s_cbranch_scc1 {name}_end")
    rt_begin(a)
    dbg_mark(a, 1, 7, first=True, vt=8, nl=2)
    a("s_load_dwordx2 s[22:23], s[0:1], 0")
    a("s_load_dwordx2 s[6:7], s[0:1], 64")
    a("s_load_dwordx2 s[20:21], s[0:1], 80")
    a("v_lshrrev_b32 v1, 6, v0")
    a("v_and_b32 v0, 63, v0")
    a("v_readfirstlane_b32 s3, v1")
    a("v_lshlrev_b32 v3, 4, v0")
    a("s_lshr_b32 s4, s2, 3"); a("s_and_b32 s4, s4, 7")
    a("s_lshr_b32 s5, s2, 6"); a("s_lshl_b32 s5, s5, 3"); a("s_and_b32 s8, s2, 7"); a("s_add_u32 s5, s5, s8")
    a("s_lshr_b32 s8, s4, 1"); a("s_and_b32 s9, s4, 1")
    a("s_mul_i32 s12, s8, 5"); a("s_mul_i32 s13, s9, 3"); a("s_add_u32 s12, s12, s13")
    a("s_waitcnt lgkmcnt(0)")
    srd(a, 24, 20, WOF_SZ, WOF)
    srd(a, 28, 20, OF_SZ, OF)
    srd(a, 32, 20, YF_SZ, YF)
    srd(a, 40, 6, X_SZ)
    srd(a, 36, 22, X_SZ)
    a("s_mul_i32 s11, s3, 10240")
    a("s_mul_i32 s10, s12, 40960"); a("s_add_u32 s10, s10, s11")
    a("s_mul_i32 s14, s5, 81920"); a("s_add_u32 s14, s14, s11")
    a("s_lshl_b32 s15, s5, 3"); a("s_add_u32 s15, s15, s4"); a("s_mul_i32 s15, s15, 12288")
    a("s_lshl_b32 s16, s3, 9"); a("s_add_u32 s15, s15, s16")
    a("v_lshlrev_b32 v4, 3, v0")
    a("v_and_b32 v5, 31, v0"); a("s_lshl_b32 s17, s5, 6"); a("v_add_u32 v5, s17, v5")
    a("v_mul_u32_u24 v5, 1280, v5")
    a("v_lshrrev_b32 v6, 5, v0"); a("v_lshl_add_u32 v5, v6, 3, v5")
    a("s_lshl_b32 s17, s12, 6"); a("s_lshl_b32 s18, s3, 4"); a("s_add_u32 s17, s17, s18")
    a("v_add_u32 v5, s17, v5")
    def body(n):
        NF = n + 2; NT = 2*n
        F = 16
        Y = 220
        for k in range(10):
            for tt in range(2):
                r = F + 4*(NF*k + n + tt)
                a(f"s_add_u32 s13, s14, {tt*40960 + (k//4)*4096}")
                a(f"buffer_load_dwordx4 v[{r}:{r+3}], v3, s[28:31], s13 offen offset:{(k%4)*1024}")
            for j in range(n):
                r = F + 4*(NF*k + j)
                a(f"s_add_u32 s13, s10, {j*40960 + (k//4)*4096}")
                a(f"buffer_load_dwordx4 v[{r}:{r+3}], v3, s[24:27], s13 offen offset:{(k%4)*1024}")
        for T in range(NT):
            a(f"s_add_u32 s13, s15, {T*2048}")
            a(f"buffer_load_dwordx2 v[{Y+2*T}:{Y+2*T+1}], v4, s[32:35], s13 offen")
        XR = 232
        def xl(T):
            j, tt = T >> 1, T & 1
            a(f"s_mov_b32 s13, {tt*32*1280 + j*64}")
            a(f"buffer_load_dwordx2 v[{XR+2*T}:{XR+2*T+1}], v5, s[36:39], s13 offen")
        for k in range(10):
            a(f"s_waitcnt vmcnt({NF*(9-k) + NT + min(k, NT)})")
            for j in range(n):
                for tt in ((0, 1) if j % 2 == 0 else (1, 0)):
                    T = 2*j + tt
                    c = "0" if k == 0 else f"a[{16*T}:{16*T+15}]"
                    a(f"v_mfma_f32_32x32x16_bf16 a[{16*T}:{16*T+15}], v[{F+4*(NF*k+j)}:{F+4*(NF*k+j)+3}], v[{F+4*(NF*k+n+tt)}:{F+4*(NF*k+n+tt)+3}], {c}")
            if k < NT: xl(k)
        a("s_mul_i32 s19, s3, 24576")
        a("v_add_u32 v7, s19, v3")
        a("s_nop 7")
        a("s_nop 7")
        for T in range(NT):
            for i in range(4):
                a(f"ds_write_b128 v7, a[{16*T+4*i}:{16*T+4*i+3}] offset:{(T*4+i)*1024}")
        a("s_waitcnt lgkmcnt(0)")
        a("s_barrier")
        a("s_lshl_b32 s19, s3, 10")
        a("v_add_u32 v7, s19, v3")
        a("v_add_u32 v8, 49152, v7")
        R = 16
        for T in range(NT):
            for src in range(4):
                r = R + 4*(4*T + src)
                a(f"ds_read_b128 v[{r}:{r+3}], v{7 + src//2} offset:{(src%2)*24576 + T*4096}")
            if T % 2 == 1: a("s_waitcnt lgkmcnt(0)")
        S = 120
        for T in range(NT):
            for r in range(4):
                a(f"v_add_f32 v{S+4*T+r}, v{R+16*T+r}, v{R+16*T+4+r}")
                a(f"v_add_f32 v{R+16*T+8+r}, v{R+16*T+8+r}, v{R+16*T+12+r}")
            for r in range(4):
                a(f"v_add_f32 v{S+4*T+r}, v{S+4*T+r}, v{R+16*T+8+r}")
        a("s_waitcnt vmcnt(0)")
        t = 150
        for T in range(NT):
            j, tt = T >> 1, T & 1
            y = Y + 2*T
            a(f"v_lshlrev_b32 v{t}, 16, v{y}"); a(f"v_and_b32 v{t+1}, 0xffff0000, v{y}")
            a(f"v_lshlrev_b32 v{t+2}, 16, v{y+1}"); a(f"v_and_b32 v{t+3}, 0xffff0000, v{y+1}")
            for r in range(4): a(f"v_add_f32 v{S+4*T+r}, v{S+4*T+r}, v{t+r}")
            y = XR + 2*T
            a(f"v_lshlrev_b32 v{t}, 16, v{y}"); a(f"v_and_b32 v{t+1}, 0xffff0000, v{y}")
            a(f"v_lshlrev_b32 v{t+2}, 16, v{y+1}"); a(f"v_and_b32 v{t+3}, 0xffff0000, v{y+1}")
            for r in range(4): a(f"v_add_f32 v{S+4*T+r}, v{S+4*T+r}, v{t+r}")
            a(f"v_cvt_pk_bf16_f32 v{S+4*T}, v{S+4*T}, v{S+4*T+1}")
            a(f"v_cvt_pk_bf16_f32 v{S+4*T+1}, v{S+4*T+2}, v{S+4*T+3}")
            a(f"s_mov_b32 s13, {tt*32*1280 + j*64}")
            a(f"buffer_store_dwordx2 v[{S+4*T}:{S+4*T+1}], v5, s[40:43], s13 offen")
    lodd, lfin = f"{name}_odd", f"{name}_fin"
    a("s_cmp_eq_u32 s9, 1"); a(f"s_cbranch_scc1 {lodd}")
    body(3)
    a(f"s_branch {lfin}")
    a.label(lodd)
    body(2)
    a.label(lfin)
    dbg_mark(a, 1, 8, vt=8, nl=2)
    rt_end(a, 20, 0x8200000, 124)
    a.label(f"{name}_end")
    a("s_endpgm")
    errs = check_hazards(a.lines, name)
    return a.text(), kd(name, 256 + 96, 100, accum=256), errs

def kernels(which):
    if which != "all": return []
    t, d, e = gen_k3()
    return [("out_kernel", t, d, e, 256, 256, 98304)]
```

```python
from asmlib import *
from layout import *
from k0 import srd, kd
import os
import k2
from k2 import X, ST, mfma32, mfma8, attn_tile, Q1, Q2, KB, VB, P, S, O, E, THR, stamp, stamp_rt, stamp_store

XT = 42240; XC = 528; XKS = 1056
KVL = 84480
WKVL = KVL
SB = (KVL + 25600, KVL + 46080, KVL)
STAGE_BUF = (0, 1, 0, 2, 1)
J3L = KVL + 66560
QXL = KVL + 3*16384
NONCE_L = 163824
LDS_MAIN = 163840
CODE_PF_KB = 40
NONCE = 98

HS = X("HSTAMP")
def hstamp(a, who, i):
    if HS == who: stamp(a, i)
def nstamp(a, i):
    if not HS: stamp(a, i)
def rstamp(a, i):
    if HS == "R": stamp_rt(a, i)
def spin_timeout(a, sreg): a(f"s_mov_b32 s{sreg}, 0x8000")

def gen_attn(a, name, prio):
    srd(a, 24, 22, X_SZ)
    srd(a, 28, 20, KV_SZ, KV)
    srd(a, 36, 20, YF + YF_SZ)
    srd(a, 32, 8, 640*640*2)
    a("s_lshr_b32 s6, s3, 1")
    a("s_lshl_b32 s7, s4, 2")
    a("s_add_u32 s6, s6, s7")
    a("s_and_b32 s7, s3, 1")
    XR = (88, 108)
    a("v_lshrrev_b32 v10, 4, v0")
    a("v_and_b32 v11, 15, v0")
    a("s_and_b32 s11, s4, 6"); a("s_add_u32 s11, s11, s3"); a("s_and_b32 s11, s11, 7")
    a("s_lshl_b32 s8, s11, 3")
    a("v_add_u32 v12, s8, v10")
    a("s_lshl_b32 s9, s5, 6")
    a("v_add_u32 v13, s9, v12")
    a("v_mul_u32_u24 v13, 1280, v13")
    a("v_lshl_add_u32 v13, v11, 4, v13")
    for ps in range(2):
        a(f"s_mov_b32 s10, {ps*4*1280}")
        for j in range(5):
            a(f"buffer_load_dwordx4 v[{XR[ps]+4*j}:{XR[ps]+4*j+3}], v13, s[24:27], s10 offen offset:{256*j}")
    if X("B0", "1") == "1": a("s_barrier")
    a("s_lshr_b32 s10, s11, 2"); a(f"s_mul_i32 s10, s10, {XT}")
    a("v_and_b32 v14, 31, v12")
    a("v_lshlrev_b32 v14, 4, v14")
    a(f"v_mul_u32_u24 v15, {XC}, v11")
    a("v_add3_u32 v14, v14, v15, s10")
    a(f"v_add_u32 v1, {KVL}, v3")
    a("v_lshlrev_b32 v2, 3, v0")
    a(f"v_add_u32 v2, {KVL}, v2")
    a("v_mov_b32 v16, 0x3f803f80")
    for ps in range(2):
        R = XR[ps]
        a("v_mov_b32 v17, 0"); a("v_mov_b32 v18, 0")
        if ps == 0: hstamp(a, "A", 2)
        a(f"s_waitcnt vmcnt({5 if ps == 0 else 0})")
        hstamp(a, "A", 3 + ps)
        if ps == 1:
            npf = 0
            if X("WQPF", "0") == "1":
                lnp = a.uid("a_nopf")
                a("s_cmp_ge_u32 s3, 6"); a(f"s_cbranch_scc1 {lnp}")
                a("s_lshl_b32 s10, s3, 6"); a("s_add_u32 s10, s10, 128")
                a("s_add_u32 s11, s10, 128"); a("s_cmp_ge_u32 s3, 3"); a("s_cselect_b32 s10, s11, s10")
                a("v_add_u32 v150, s10, v0"); a("v_mul_u32_u24 v150, 1280, v150")
                a("s_mul_i32 s10, s4, 160")
                a("buffer_load_dword v151, v150, s[32:35], s10 offen")
                a("buffer_load_dword v152, v150, s[32:35], s10 offen offset:128")
                a.label(lnp)
                npf = 0
        for i in range(20):
            a(f"v_dot2_f32_bf16 v17, v{R+i}, v16, v17")
            a(f"v_dot2_f32_bf16 v18, v{R+i}, v{R+i}, v18")
        for sh in (8, 4, 2, 1):
            a("s_nop 1")
            a(f"v_add_f32_dpp v17, v17, v17 row_ror:{sh} row_mask:0xf bank_mask:0xf")
            a(f"v_add_f32_dpp v18, v18, v18 row_ror:{sh} row_mask:0xf bank_mask:0xf")
        a("s_nop 0")
        a(f"v_mul_f32 v17, {f2u(1/640.):#x}, v17")
        a(f"v_mul_f32 v18, {f2u(1/640.):#x}, v18")
        a("v_fma_f32 v18, -v17, v17, v18")
        a("v_max_f32 v18, 0, v18")
        a(f"v_add_f32 v18, {f2u(1e-5):#x}, v18")
        a("v_rsq_f32 v18, v18")
        a("s_nop 0")
        a(f"v_mul_f32 v18, {f2u(LOG2E):#x}, v18")
        a("v_mul_f32 v19, v17, v18")
        for j in range(5):
            for i in range(4):
                r = R + 4*j + i
                t = 20 + 2*(i & 1)
                a(f"v_lshlrev_b32 v{t}, 16, v{r}")
                a(f"v_and_b32 v{t+1}, 0xffff0000, v{r}")
                a(f"v_fma_f32 v{t}, v{t}, v18, -v19")
                a(f"v_fma_f32 v{t+1}, v{t+1}, v18, -v19")
                a(f"v_cvt_pk_bf16_f32 v{r}, v{t}, v{t+1}")
            a(f"ds_write_b128 v14, v[{R+4*j}:{R+4*j+3}] offset:{j*16*XC + ps*64}")
    a("s_waitcnt lgkmcnt(0)")
    hstamp(a, "A", 5)
    a("s_barrier")
    hstamp(a, "A", 6)
    nstamp(a, 2)
    if prio is not None: a(f"s_setprio {prio}")
    a("v_lshrrev_b32 v16, 5, v0")
    a("v_and_b32 v17, 31, v0")
    a(f"v_mul_u32_u24 v10, {XC}, v16")
    a("v_lshl_add_u32 v10, v17, 4, v10")
    a(f"s_mul_i32 s10, s7, {20*XKS}")
    a("v_add_u32 v10, s10, v10")
    a(f"v_add_u32 v11, {XT}, v10")
    a("v_and_b32 v17, 15, v0"); a("v_lshrrev_b32 v18, 2, v17")
    a("v_lshl_add_u32 v18, v16, 3, v18")
    a("s_lshl_b32 s10, s7, 6"); a("v_add_u32 v18, s10, v18")
    a("v_mul_u32_u24 v18, 160, v18")
    a("v_bfe_u32 v19, v0, 4, 1"); a("v_lshl_add_u32 v18, v19, 5, v18")
    a("v_and_b32 v19, 3, v17"); a("v_lshl_add_u32 v18, v19, 3, v18")
    a("s_lshr_b32 s10, s3, 1"); a("s_mul_i32 s10, s10, 40")
    a("v_add_u32 v18, s10, v18")
    for b in range(3): a(f"v_add_u32 v{12+b}, {SB[b]}, v18")
    D0, D1 = S
    AQ = 88; BQ = (104, 136)
    def bread(st):
        b = BQ[st & 1]
        for kk in range(4):
            ks = 4*st + kk
            a(f"ds_read_b128 v[{b+8*kk}:{b+8*kk+3}], v10 offset:{ks*XKS}")
            a(f"ds_read_b128 v[{b+8*kk+4}:{b+8*kk+7}], v11 offset:{ks*XKS}")
    bread(0)
    for st in range(5):
        if st > 0: a("s_barrier")
        if st > 0: hstamp(a, "Q", st + 1)
        vb = 12 + STAGE_BUF[st]
        for kk in range(4):
            a(f"ds_read_b64_tr_b16 v[{AQ+4*kk}:{AQ+4*kk+1}], v{vb} offset:{kk*16*160}")
            a(f"ds_read_b64_tr_b16 v[{AQ+4*kk+2}:{AQ+4*kk+3}], v{vb} offset:{kk*16*160 + 640}")
        b = BQ[st & 1]
        for kk in range(4):
            ks = 4*st + kk
            nxt = 8 if (st < 4 and kk >= 1) else 0
            a(f"s_waitcnt lgkmcnt({min(15, 2*(3 - kk) + nxt)})")
            a(mfma32(D0, AQ + 4*kk, b + 8*kk, None if ks == 0 else D0))
            a(mfma32(D1, AQ + 4*kk, b + 8*kk + 4, None if ks == 0 else D1))
            if kk == 0 and st < 4: bread(st + 1)
        if st < 4: a("s_waitcnt lgkmcnt(0)")
    a("s_mul_i32 s44, s3, 3072")
    a(f"s_add_u32 s44, s44, {QXL}")
    a("v_add_u32 v12, s44, v3")
    a("s_xor_b32 s45, s3, 1"); a("s_mul_i32 s45, s45, 3072"); a(f"s_add_u32 s45, s45, {QXL}")
    a("v_add_u32 v13, s45, v3")
    lp1, lpd = a.uid("qx1"), a.uid("qxd")
    a("s_nop 7")
    a("s_cmp_eq_u32 s7, 1"); a(f"s_cbranch_scc1 {lp1}")
    for i in range(3): a(f"ds_write_b128 v12, v[{D1+4*i}:{D1+4*i+3}] offset:{i*1024}")
    a(f"s_branch {lpd}")
    a.label(lp1)
    for i in range(3): a(f"ds_write_b128 v12, v[{D0+4*i}:{D0+4*i+3}] offset:{i*1024}")
    a("s_waitcnt lgkmcnt(0)")
    for r in range(12): a(f"v_mov_b32 v{D0+r}, v{D1+r}")
    a.label(lpd)
    a("s_waitcnt lgkmcnt(0)")
    a("s_barrier")
    hstamp(a, "Q", 6)
    for i in range(3): a(f"ds_read_b128 v[{D1+4*i}:{D1+4*i+3}], v13 offset:{i*1024}")
    a("v_cmp_gt_u32 vcc, 32, v0")
    a("s_waitcnt lgkmcnt(0)")
    D = D0
    for r in range(12): a(f"v_add_f32 v{D+r}, v{D+r}, v{D1+r}")
    for r in range(8, 12): a(f"v_cndmask_b32 v{D+r}, 0, v{D+r}, vcc")
    a(f"s_mov_b32 s45, {f2u(QSCALE):#x}")
    for r in range(12): a(f"v_mul_f32 v{D+r}, s45, v{D+r}")
    a(f"v_mul_f32 v136, v{D}, v{D}")
    for r in range(1, 12): a(f"v_fmac_f32 v136, v{D+r}, v{D+r}")
    for r in range(4): a(f"v_cvt_pk_bf16_f32 v{Q1+r}, v{D+2*r}, v{D+2*r+1}")
    for r in range(2): a(f"v_cvt_pk_bf16_f32 v{Q2+r}, v{D+8+2*r}, v{D+8+2*r+1}")
    a("v_mov_b32 v137, v136"); a("s_nop 1")
    a("v_permlane32_swap_b32 v136, v137"); a("s_nop 1")
    a("v_add_f32 v136, v136, v137")
    for r in range(16): a(f"v_mov_b32 v{O+r}, 0")
    for r in range(8): a(f"v_mov_b32 v{P+r}, 0")
    for r in range(8): a(f"v_mov_b32 v{E+r}, 0")
    for r in range(4): a(f"v_mov_b32 v{VB[1][1]+r}, 0")
    nstamp(a, 3)
    a("s_barrier")
    a(f"s_mov_b32 s43, {KMX}")
    a(f"buffer_load_dwordx4 v[140:143], v3, s[36:39], s43 offen sc1")
    a("s_waitcnt vmcnt(0)")
    a("v_max_f32 v140, v140, v142")
    a("v_max_f32 v141, v141, v143")
    for sh in (8, 4, 2, 1):
        a("s_nop 1")
        a(f"v_max_f32_dpp v140, v140, v140 row_ror:{sh} row_mask:0xf bank_mask:0xf")
        a(f"v_max_f32_dpp v141, v141, v141 row_ror:{sh} row_mask:0xf bank_mask:0xf")
    for sw in ("16", "32"):
        a("v_mov_b32 v142, v140"); a("v_mov_b32 v143, v141"); a("s_nop 1")
        a(f"v_permlane{sw}_swap_b32 v140, v142"); a(f"v_permlane{sw}_swap_b32 v141, v143"); a("s_nop 1")
        a("v_max_f32 v140, v140, v142"); a("v_max_f32 v141, v141, v143")
    a("v_add_f32 v140, v140, v141")
    a("v_mul_f32 v136, v136, v140")
    a(f"s_mov_b32 s45, {f2u(THR*THR):#x}")
    a("v_cmp_nle_f32 vcc, v136, s45")
    lfast = a.uid("attn_fast")
    a("s_nop 4")
    a(f"s_cbranch_vccz {lfast}")
    lm = a.uid("attn_maxloop")
    M = 136; TK = 140
    a(f"v_mov_b32 v{M}, 0xff800000")
    a("s_mov_b32 s46, 0")
    a(f"v_lshlrev_b32 v{M+1}, 3, v0")
    a.label(lm)
    a(f"buffer_load_dwordx4 v[{TK}:{TK+3}], v3, s[28:31], s46 offen sc1")
    a(f"buffer_load_dwordx2 v[{TK+4}:{TK+5}], v{M+1}, s[28:31], s46 offen offset:1024 sc1")
    a("s_waitcnt vmcnt(0)")
    a(mfma32(S[1], TK, Q1, None))
    a(mfma8(S[1], TK+4, Q2, S[1]))
    a("s_add_u32 s46, s46, 4096")
    a("s_nop 15")
    for r in range(0, 16, 2): a(f"v_max3_f32 v{M}, v{M}, v{S[1]+r}, v{S[1]+r+1}")
    a(f"s_cmp_lt_u32 s46, {64*4096}")
    a(f"s_cbranch_scc1 {lm}")
    a(f"v_mov_b32 v{M+2}, v{M}"); a("s_nop 1")
    a(f"v_permlane32_swap_b32 v{M}, v{M+2}"); a("s_nop 1")
    a(f"v_max_f32 v{M}, v{M}, v{M+2}")
    a(f"v_xor_b32 v{M}, 0x80000000, v{M}")
    a(f"v_and_b32 v{M+1}, 0xffff0000, v{M}")
    a(f"v_sub_f32 v{M+2}, v{M}, v{M+1}")
    a(f"v_and_b32 v{M+3}, 0xffff0000, v{M+2}")
    a(f"v_sub_f32 v{M+2}, v{M+2}, v{M+3}")
    a(f"v_lshrrev_b32 v{M+2}, 16, v{M+2}")
    a(f"v_lshrrev_b32 v{M+1}, 16, v{M+1}")
    a(f"v_or_b32 v{M+1}, v{M+1}, v{M+3}")
    a("v_cmp_lt_u32 vcc, 31, v0")
    a("s_nop 1")
    a(f"v_cndmask_b32 v{Q2}, v{Q2}, v{M+1}, vcc")
    a(f"v_cndmask_b32 v{Q2+1}, v{Q2+1}, v{M+2}, vcc")
    a.label(lfast)
    a("s_barrier")
    a(f"ds_read_b128 v[{KB[0][0]}:{KB[0][0]+3}], v1 offset:0")
    a(f"ds_read_b64 v[{KB[0][1]}:{KB[0][1]+1}], v2 offset:1024")
    a("s_waitcnt lgkmcnt(0)")
    a(mfma32(S[0], KB[0][0], Q1, None))
    a(mfma8(S[0], KB[0][1], Q2, S[0]))
    a(f"ds_read_b128 v[{KB[1][0]}:{KB[1][0]+3}], v1 offset:{4096}")
    a(f"ds_read_b64 v[{KB[1][1]}:{KB[1][1]+1}], v2 offset:{4096+1024}")
    a(f"ds_read_b128 v[{VB[0][0]}:{VB[0][0]+3}], v1 offset:2048")
    a(f"ds_read_b128 v[{VB[0][1]}:{VB[0][1]+3}], v1 offset:3072")
    a("s_nop 7")
    nstamp(a, 4)
    a("s_mov_b32 s47, 4")
    lp = a.uid("attn_loop")
    body = Asm()
    for t in range(16):
        if t % 4 == 0 and t > 0: body("s_barrier")
        attn_tile(body, t)
    a.label(lp)
    a.lines += body.lines
    a("s_sub_u32 s47, s47, 1")
    a("s_cmp_eq_u32 s47, 0")
    lout = a.uid("attn_out")
    a(f"s_cbranch_scc1 {lout}")
    a("s_barrier")
    a(f"s_branch {lp}")
    a.label(lout)
    nstamp(a, 5)
    a(f"v_cvt_pk_bf16_f32 v{P+6}, v{E+4}, v{E+5}")
    a(f"v_cvt_pk_bf16_f32 v{P+7}, v{E+6}, v{E+7}")
    a("s_waitcnt lgkmcnt(0)")
    a("s_nop 0")
    a(mfma32(O, VB[1][1], P + 4, O))
    a("v_lshrrev_b32 v110, 5, v0")
    a("s_mul_i32 s48, s6, 5")
    a("v_add_u32 v111, s48, v110")
    a("v_and_b32 v112, 31, v0")
    a("v_lshlrev_b32 v112, 4, v112")
    def qoff(dst, q):
        a(f"v_lshrrev_b32 v113, 2, v{q}")
        a(f"v_lshlrev_b32 v{dst}, 10, v113")
        a(f"v_bfe_u32 v113, v{q}, 1, 1")
        a(f"v_lshl_add_u32 v{dst}, v113, 9, v{dst}")
        a(f"v_and_b32 v113, 1, v{q}")
        a(f"v_lshl_add_u32 v{dst}, v113, 3, v{dst}")
        a(f"v_add_u32 v{dst}, v{dst}, v112")
    qoff(114, 111)
    a("v_add_u32 v111, 2, v111")
    qoff(115, 111)
    a("s_add_u32 s48, s48, 4")
    a("v_mov_b32 v111, s48")
    qoff(116, 111)
    a("s_lshl_b32 s49, s5, 1")
    a("s_add_u32 s49, s49, s7")
    a("s_mul_i32 s49, s49, 40960")
    a(f"s_add_u32 s49, s49, {OF}")
    a(f"v_mov_b32 v118, v{O+8}")
    a(f"v_mov_b32 v119, v{O+8}")
    a("s_nop 1")
    a("v_permlane32_swap_b32 v118, v119")
    a("s_nop 1")
    a("v_rcp_f32 v119, v119")
    a("s_nop 0")
    for r in range(12): a(f"v_mul_f32 v{O+r}, v{O+r}, v119")
    for r in range(6): a(f"v_cvt_pk_bf16_f32 v{120+r}, v{O+2*r}, v{O+2*r+1}")
    a("buffer_store_dwordx2 v[120:121], v114, s[36:39], s49 offen" + ST)
    a("buffer_store_dwordx2 v[122:123], v115, s[36:39], s49 offen" + ST)
    a("v_cmp_gt_u32 vcc, 32, v0")
    a("s_and_saveexec_b64 s[50:51], vcc")
    a("buffer_store_dwordx2 v[124:125], v116, s[36:39], s49 offen" + ST)
    a("s_mov_b64 exec, s[50:51]")
    nstamp(a, 6); stamp_rt(a, 7)
    stamp_store(a, 8)
    a("s_endpgm")
    return check_hazards(body.lines + body.lines, name + ":loop")

def tr_addr(a, dst, base_s, hm, delta):
    a(f"v_lshrrev_b32 v{dst}, 5, v0"); a(f"v_mul_lo_u32 v{dst}, v{dst}, {hm}")
    a(f"v_and_b32 v{dst+1}, 15, v0"); a(f"v_lshrrev_b32 v{dst+2}, 2, v{dst+1}"); a(f"v_add_u32 v{dst}, v{dst}, v{dst+2}")
    a(f"v_lshlrev_b32 v{dst}, 7, v{dst}")
    a(f"v_bfe_u32 v{dst+2}, v0, 4, 1"); a(f"v_lshl_add_u32 v{dst}, v{dst+2}, 5, v{dst}")
    a(f"v_and_b32 v{dst+2}, 3, v{dst+1}"); a(f"v_lshl_add_u32 v{dst}, v{dst+2}, 3, v{dst}")
    a(f"v_add_u32 v{dst}, {base_s}, v{dst}")
    a(f"v_add_u32 v{dst+1}, {delta}, v{dst}")

def gen_ffn_head(a, name):
    a("s_setprio 3")
    srd(a, 28, 20, KV_SZ, KV)
    srd(a, 36, 20, YF + YF_SZ)
    lkvw, lcommon = a.uid("h_kvw"), a.uid("h_common")
    a("s_cmp_lt_u32 s6, 2"); a(f"s_cbranch_scc1 {lkvw}")
    srd(a, 32, 8, 640*640*2)
    l3, lq = a.uid("h_w3"), a.uid("h_wq")
    a("s_cmp_eq_u32 s6, 3"); a(f"s_cbranch_scc1 {l3}")
    lwo, lgo = a.uid("h_jo"), a.uid("h_jg")
    a("s_cmp_ge_u32 s2, 216"); a(f"s_cbranch_scc1 {lwo}")
    srd(a, 24, 16, 640*1728*2)
    a(f"s_mul_hi_u32 s54, s2, {(1 << 32)//27 + 1}")
    a("s_mul_i32 s55, s54, 27"); a("s_sub_u32 s55, s2, s55")
    a("s_mov_b32 s48, 3456")
    a(f"s_mul_i32 s49, s54, {80*3456}"); a("s_lshl_b32 s43, s55, 7"); a("s_add_u32 s49, s49, s43")
    a(f"s_mul_i32 s50, s55, {2*40*1024}"); a("s_mul_i32 s43, s54, 5120"); a("s_add_u32 s50, s50, s43"); a(f"s_add_u32 s50, s50, {W1F}")
    a(f"s_branch {lgo}")
    a.label(lwo)
    srd(a, 24, 14, 640*640*2)
    a("s_sub_u32 s42, s2, 216")
    a(f"s_mul_hi_u32 s54, s42, {(1 << 32)//10 + 1}")
    a("s_mul_i32 s55, s54, 10"); a("s_sub_u32 s55, s42, s55")
    a("s_mov_b32 s48, 1280")
    a(f"s_mul_i32 s49, s54, {80*1280}"); a("s_lshl_b32 s43, s55, 7"); a("s_add_u32 s49, s49, s43")
    a(f"s_mul_i32 s50, s55, {2*40*1024}"); a("s_mul_i32 s43, s54, 5120"); a("s_add_u32 s50, s50, s43"); a(f"s_add_u32 s50, s50, {WOF}")
    a.label(lgo)
    a("v_lshrrev_b32 v4, 3, v0"); a("v_mul_lo_u32 v4, v4, s48")
    a("v_and_b32 v5, 7, v0"); a("v_lshl_add_u32 v4, v5, 4, v4")
    a("v_mov_b32 v8, v4")
    a(f"s_branch {lq}")
    a.label(l3)
    if X("CODEPF", "1") == "1":
        lcp = a.uid("h_nocp")
        a("s_cmp_ge_u32 s2, 8"); a(f"s_cbranch_scc1 {lcp}")
        a("s_getpc_b64 s[54:55]")
        a.label(f"{name}_pc0")
        a(f"s_sub_u32 s54, s54, {name}_pc0-{name}"); a("s_subb_u32 s55, s55, 0")
        a("v_lshlrev_b32 v4, 7, v0")
        for i in range(CODE_PF_KB // 8):
            a(f"global_load_dword v{160+i}, v4, s[54:55]")
            a("s_add_u32 s54, s54, 8192"); a("s_addc_u32 s55, s55, 0")
        a.label(lcp)
    a("s_cmp_lg_u32 s2, 0"); a(f"s_cbranch_scc1 {lq}")
    a("s_memrealtime s[54:55]")
    a("s_waitcnt lgkmcnt(0)")
    a("s_or_b32 s54, s54, 1")
    a("v_mov_b32 v4, 0"); a("v_mov_b32 v5, s54")
    a("s_mov_b64 exec, 1")
    a("global_store_dword v4, v5, s[90:91] sc1")
    a("s_mov_b64 exec, -1")
    a.label(lq)
    WQ = 148; PQ = 76
    a("s_sub_u32 s56, s6, 2")
    a("s_lshr_b32 s59, s5, 3"); a("s_mul_i32 s59, s59, 5"); a("s_lshr_b32 s59, s59, 1")
    a("s_movk_i32 s41, 6554")
    for i in range(10):
        a(f"s_add_u32 s42, s59, {i}"); a("s_sub_u32 s43, s42, 10"); a("s_cmp_ge_u32 s42, 10"); a("s_cselect_b32 s42, s43, s42")
        a("s_mul_i32 s43, s56, 10"); a("s_add_u32 s42, s42, s43")
        a(f"s_lshl_b32 s{PQ+i}, s42, 10")
        a("s_lshl_b32 s42, s42, 6")
        a(f"v_add_u32 v4, s42, v0")
        a("v_mul_lo_u32 v5, v4, s41"); a("v_lshrrev_b32 v5, 16, v5")
        a("v_mul_u32_u24 v6, 10, v5"); a("v_sub_u32 v4, v4, v6")
        a("v_lshrrev_b32 v6, 6, v5"); a("v_mul_u32_u24 v6, 320, v6")
        a("v_and_b32 v5, 63, v5"); a("v_add_u32 v5, v5, v6")
        a("v_mul_u32_u24 v5, 1280, v5")
        a(f"v_lshl_add_u32 v{WQ+i}, v4, 4, v5")
    for p_ in range(1280): assert (p_*6554) >> 16 == p_//10
    a("s_mul_i32 s57, s4, 160")
    def wq_stage(st):
        a(f"s_add_u32 s41, s57, {st*64*1280}")
        for i in range(10):
            a(f"s_add_u32 m0, s{PQ+i}, {SB[STAGE_BUF[st]]}")
            a("s_nop 0")
            a(f"buffer_load_dwordx4 v{WQ+i}, s[32:35], s41 offen lds")
    if X("B0", "1") == "1": a("s_barrier")
    lnj = a.uid("h_noj")
    a("s_cmp_eq_u32 s6, 3"); a(f"s_cbranch_scc1 {lnj}")
    a("s_lshl_b32 s43, s48, 3")
    for i in range(10):
        a(f"s_mov_b32 m0, {J3L + i*1024}")
        a("s_nop 0")
        a("buffer_load_dwordx4 v8, s[24:27], s49 offen lds")
        a("s_add_u32 s49, s49, s43")
    a.label(lnj)
    wq_stage(0); wq_stage(1)
    lw3, lbln = a.uid("h_w3b"), a.uid("h_bln")
    a("s_cmp_eq_u32 s6, 3"); a(f"s_cbranch_scc1 {lw3}")
    tr_addr(a, 5, J3L, 8, 512)
    hstamp(a, "F", 2)
    a("s_waitcnt vmcnt(20)")
    hstamp(a, "F", 3)
    for nt in range(2):
        for kk in range(5):
            r = 16 + 4*(nt*5+kk)
            a(f"ds_read_b64_tr_b16 v[{r}:{r+1}], v5 offset:{nt*64 + kk*2048}")
            a(f"ds_read_b64_tr_b16 v[{r+2}:{r+3}], v6 offset:{nt*64 + kk*2048}")
        a("s_waitcnt lgkmcnt(0)")
        for kk in range(5):
            r = 16 + 4*(nt*5+kk)
            a(f"s_add_u32 s42, s50, {kk*1024 + nt*40960}")
            a(f"buffer_store_dwordx4 v[{r}:{r+3}], v3, s[36:39], s42 offen sc1")
    hstamp(a, "F", 4)
    a("s_waitcnt vmcnt(20)")
    hstamp(a, "F", 5)
    a("s_barrier")
    a("s_waitcnt vmcnt(10)")
    a(f"s_branch {lbln}")
    a.label(lw3)
    lp, lpd = a.uid("h_np"), a.uid("h_npd")
    spin_timeout(a, 42)
    a("v_mov_b32 v4, 0")
    a.label(lp)
    a("global_load_dword v5, v4, s[90:91] sc1")
    a("s_waitcnt vmcnt(0)")
    a("v_readfirstlane_b32 s43, v5")
    a("s_sub_u32 s42, s42, 1")
    a("s_cmp_lg_u32 s43, 0"); a(f"s_cbranch_scc1 {lpd}")
    a("s_cmp_eq_u32 s42, 0"); a(f"s_cbranch_scc1 {lpd}")
    a("s_sleep 1")
    a(f"s_branch {lp}")
    a.label(lpd)
    a(f"v_mov_b32 v4, {NONCE_L}")
    a("ds_write_b32 v4, v5")
    a("s_waitcnt lgkmcnt(0)")
    a("s_barrier")
    a.label(lbln)
    hstamp(a, "F", 6)
    a(f"v_mov_b32 v4, {NONCE_L}")
    a("ds_read_b32 v5, v4")
    a("s_waitcnt lgkmcnt(0)")
    a(f"v_readfirstlane_b32 s{NONCE}, v5")
    a("s_barrier")
    wq_stage(2); wq_stage(3)
    a("s_waitcnt vmcnt(10)")
    a("s_barrier")
    wq_stage(4)
    lnf = a.uid("h_nf")
    a("s_waitcnt vmcnt(10)"); a("s_barrier")
    a("s_cmp_eq_u32 s6, 3"); a(f"s_cbranch_scc1 {lnf}")
    a("s_waitcnt vmcnt(0)"); a("s_barrier")
    a(f"s_branch {lcommon}")
    a.label(lnf)
    a("s_lshl_b32 s42, s2, 2"); a(f"s_add_u32 s42, s42, {GFL}")
    a("v_mov_b32 v4, 0"); a(f"v_mov_b32 v5, s{NONCE}")
    a("s_mov_b64 exec, 1")
    a("buffer_store_dword v5, v4, s[36:39], s42 offen sc1")
    a("s_mov_b64 exec, -1")
    a("s_waitcnt vmcnt(1)"); a("s_barrier")
    hstamp(a, "G", 2)
    lw, lwp = a.uid("h_gw"), a.uid("h_gp")
    spin_timeout(a, 42)
    a(f"s_mov_b32 s43, {GFL}")
    a("s_barrier")
    hstamp(a, "G", 3)
    a.label(lwp)
    a("buffer_load_dwordx4 v[4:7], v3, s[36:39], s43 offen sc1")
    a("s_waitcnt vmcnt(0)")
    for r in range(4, 8): a(f"v_xor_b32 v{r}, s{NONCE}, v{r}")
    a("v_or_b32 v4, v4, v5"); a("v_or_b32 v6, v6, v7"); a("v_or_b32 v4, v4, v6")
    a("v_cmp_ne_u32 vcc, 0, v4")
    a("s_sub_u32 s42, s42, 1")
    a("s_nop 3")
    a(f"s_cbranch_vccz {lw}")
    a("s_cmp_eq_u32 s42, 0"); a(f"s_cbranch_scc1 {lw}")
    a(f"s_sleep {X('GSLEEP', '4')}")
    a(f"s_branch {lwp}")
    a.label(lw)
    hstamp(a, "G", 4)
    a("s_barrier")
    hstamp(a, "G", 5)
    ldone = a.uid("h_done")
    a(f"s_branch {ldone}")
    a.label(lkvw)
    lv, lkv = a.uid("h_isv"), a.uid("h_kv")
    a("s_and_b32 s7, s4, 1")
    a("s_cmp_eq_u32 s7, 1"); a(f"s_cbranch_scc1 {lv}")
    srd(a, 44, 10, 25600)
    a(f"s_branch {lkv}")
    a.label(lv)
    srd(a, 44, 12, 25600)
    a.label(lkv)
    if X("B0", "1") == "1": a("s_barrier")
    a("s_lshr_b32 s42, s2, 3"); a("s_and_b32 s42, s42, 31"); a("s_mul_i32 s42, s42, 43"); a("s_lshr_b32 s42, s42, 7")
    a("s_lshl_b32 s40, s6, 10")
    for j in range(12):
        a(f"s_add_u32 s43, s42, {j}"); a("s_sub_u32 s41, s43, 12"); a("s_cmp_ge_u32 s43, 12"); a("s_cselect_b32 s43, s41, s43")
        a("s_lshl_b32 s43, s43, 11"); a("s_add_u32 s41, s43, s40")
        a(f"s_add_u32 m0, s41, {WKVL}")
        a("s_nop 0")
        a("buffer_load_dwordx4 v3, s[44:47], s41 offen lds")
    l24 = a.uid("h_no24")
    a("s_cmp_lg_u32 s6, 0"); a(f"s_cbranch_scc1 {l24}")
    a(f"s_mov_b32 m0, {WKVL + 24576}")
    a("s_movk_i32 s41, 24576")
    a("buffer_load_dwordx4 v3, s[44:47], s41 offen lds")
    a.label(l24)
    XF, WF, D = 4, 84, 164
    a("s_lshr_b32 s48, s4, 1")
    a("v_lshrrev_b32 v4, 4, v0")
    a("v_and_b32 v5, 15, v0")
    a("s_and_b32 s49, s48, 1"); a("s_lshl_b32 s50, s49, 4")
    a("v_add_u32 v6, s50, v5")
    a(f"v_mul_u32_u24 v1, {XC}, v4"); a("v_lshl_add_u32 v1, v6, 4, v1")
    a("s_lshr_b32 s51, s48, 1"); a(f"s_mul_i32 s51, s51, {XT}")
    a("v_add_u32 v1, s51, v1")
    a("v_lshrrev_b32 v2, 2, v5"); a("v_lshl_add_u32 v2, v4, 3, v2"); a("v_mul_u32_u24 v2, 40, v2")
    a("v_and_b32 v7, 3, v5"); a("v_lshl_add_u32 v2, v7, 3, v2")
    a("s_lshl_b32 s51, s6, 5"); a(f"s_add_u32 s51, s51, {WKVL}")
    a("v_add_u32 v2, s51, v2")
    a("s_lshl_b32 s52, s5, 1"); a("s_lshr_b32 s53, s48, 1"); a("s_add_u32 s52, s52, s53")
    a("s_lshl_b32 s52, s52, 12"); a(f"s_add_u32 s52, s52, {KV}")
    a("s_lshl_b32 s53, s5, 2"); a("s_add_u32 s53, s53, s48")
    a("s_waitcnt vmcnt(0)")
    rstamp(a, 2)
    a("s_barrier")
    rstamp(a, 3)
    lvm, lmd = a.uid("h_vm"), a.uid("h_md")
    for ks in range(20):
        a(f"ds_read_b128 v[{XF+4*ks}:{XF+4*ks+3}], v1 offset:{ks*2*XKS}")
        a(f"ds_read_b64_tr_b16 v[{WF+4*ks}:{WF+4*ks+1}], v2 offset:{ks*1280}")
        a(f"ds_read_b64_tr_b16 v[{WF+4*ks+2}:{WF+4*ks+3}], v2 offset:{ks*1280+160}")
        if ks % 4 == 3: a("s_waitcnt lgkmcnt(3)")
    a(f"v_mov_b32 v1, {NONCE_L}")
    a("ds_read_b32 v2, v1")
    a("s_waitcnt lgkmcnt(0)")
    a("s_barrier")
    a(f"v_readfirstlane_b32 s{NONCE}, v2")
    def kvmm(isv):
        for k in range(20):
            c = "0" if k == 0 else f"v[{D}:{D+3}]"
            x, w = f"v[{XF+4*k}:{XF+4*k+3}]", f"v[{WF+4*k}:{WF+4*k+3}]"
            a(f"v_mfma_f32_16x16x32_bf16 v[{D}:{D+3}], {x if isv else w}, {w if isv else x}, {c}")
    a("s_cmp_eq_u32 s7, 1"); a(f"s_cbranch_scc1 {lvm}")
    kvmm(False)
    a(f"s_branch {lmd}")
    a.label(lvm)
    kvmm(True)
    a.label(lmd)
    a("v_lshrrev_b32 v88, 4, v0")
    a("v_and_b32 v89, 15, v0")
    a("v_add_u32 v90, s50, v89")
    a("v_and_b32 v93, 1, v88")
    a("v_lshrrev_b32 v94, 1, v88")
    a("s_nop 7")
    for r in range(4): a(f"v_mul_f32 v{D+r}, {f2u(LN2):#x}, v{D+r}")
    a(f"v_cvt_pk_bf16_f32 v96, v{D}, v{D+1}")
    a(f"v_cvt_pk_bf16_f32 v97, v{D+2}, v{D+3}")
    l0, l1, l2, l3v, lst = (a.uid("h_ep") for _ in range(5))
    a("s_lshl_b32 s54, s7, 1"); a("s_add_u32 s54, s54, s6")
    a("s_cmp_eq_u32 s54, 0"); a(f"s_cbranch_scc1 {l0}")
    a("s_cmp_eq_u32 s54, 1"); a(f"s_cbranch_scc1 {l1}")
    a("s_cmp_eq_u32 s54, 2"); a(f"s_cbranch_scc1 {l2}")
    a(f"s_branch {l3v}")
    def knorm(slot):
        a(f"v_mul_f32 v98, v{D}, v{D}")
        for r in range(1, 4): a(f"v_fmac_f32 v98, v{D+r}, v{D+r}")
        if slot == 1:
            a("v_cmp_eq_u32 vcc, 0, v88")
            a("s_nop 1")
            a("v_cndmask_b32 v98, 0, v98, vcc")
        for sw in ("32", "16"):
            a("v_mov_b32 v99, v98"); a("s_nop 1")
            a(f"v_permlane{sw}_swap_b32 v98, v99"); a("s_nop 1")
            a("v_add_f32 v98, v98, v99")
        for sh in (8, 4, 2, 1):
            a("s_nop 1")
            a(f"v_max_f32_dpp v98, v98, v98 row_ror:{sh} row_mask:0xf bank_mask:0xf")
        a("s_lshl_b32 s55, s53, 3"); a(f"s_add_u32 s55, s55, {KMX + 4*slot}")
        a("v_mov_b32 v99, 0")
        a("s_mov_b64 exec, 1")
        a("buffer_store_dword v98, v99, s[36:39], s55 offen sc1")
        a("s_mov_b64 exec, -1")
    a.label(l0)
    a("v_lshl_add_u32 v95, v93, 5, v90"); a("v_lshlrev_b32 v95, 4, v95"); a("v_lshl_add_u32 v95, v94, 3, v95")
    a("buffer_store_dwordx2 v[96:97], v95, s[36:39], s52 offen sc1")
    knorm(0)
    a(f"s_branch {lst}")
    a.label(l1)
    a("v_cmp_eq_u32 vcc, 1, v88")
    a("v_mov_b32 v98, 0x3f803f80"); a("v_mov_b32 v99, 0x00003f80")
    a("v_cndmask_b32 v96, v96, v98, vcc"); a("v_cndmask_b32 v97, v97, v99, vcc")
    a("v_lshl_add_u32 v95, v88, 5, v90"); a("v_lshlrev_b32 v95, 3, v95"); a("v_add_u32 v95, 1024, v95")
    a("v_cmp_gt_u32 vcc, 2, v88")
    a("s_and_saveexec_b64 s[54:55], vcc")
    a("buffer_store_dwordx2 v[96:97], v95, s[36:39], s52 offen sc1")
    a("s_mov_b64 exec, s[54:55]")
    knorm(1)
    a(f"s_branch {lst}")
    a.label(l3v)
    a("v_cmp_gt_u32 vcc, 4, v89"); a("s_nop 1")
    a("v_cndmask_b32 v96, 0, v96, vcc"); a("v_cndmask_b32 v97, 0, v97, vcc")
    a("v_cmp_eq_u32 vcc, 4, v89"); a("v_mov_b32 v98, 0x3f803f80"); a("s_nop 0")
    a("v_cndmask_b32 v96, v96, v98, vcc"); a("v_cndmask_b32 v97, v97, v98, vcc")
    a("v_add_u32 v89, 16, v89")
    a.label(l2)
    a("v_lshl_add_u32 v95, v93, 5, v89"); a("v_lshlrev_b32 v95, 4, v95"); a("v_lshl_add_u32 v95, v94, 3, v95")
    a("s_lshl_b32 s55, s49, 10"); a("s_add_u32 s55, s55, s52"); a("s_add_u32 s55, s55, 2048")
    a("buffer_store_dwordx2 v[96:97], v95, s[36:39], s55 offen sc1")
    a.label(lst)
    a("s_barrier")
    rstamp(a, 4)
    a("s_waitcnt vmcnt(0)")
    rstamp(a, 5)
    a("s_barrier")
    a("s_barrier")
    a.label(lcommon)
    a("s_barrier")
    a("s_barrier")
    rstamp(a, 6)
    a.label(ldone)
    a("s_waitcnt vmcnt(0)")
    lo2, lg2 = a.uid("h_j2o"), a.uid("h_j2g")
    a("s_sub_u32 s42, s2, 220"); a("s_cmp_ge_u32 s2, 220"); a("s_cselect_b32 s42, s42, s2")
    a("s_cmp_ge_u32 s42, 180"); a(f"s_cbranch_scc1 {lo2}")
    srd(a, 24, 18, 1728*640*2)
    a(f"s_mul_hi_u32 s54, s42, {(1 << 32)//10 + 1}")
    a("s_mul_i32 s55, s54, 10"); a("s_sub_u32 s55, s42, s55")
    a(f"s_mul_i32 s92, s54, {96*1280}"); a("s_lshl_b32 s43, s55, 7"); a("s_add_u32 s92, s92, s43")
    a(f"s_mul_i32 s93, s55, {2*W2K*1024}"); a("s_mul_i32 s43, s54, 6144"); a("s_add_u32 s93, s93, s43"); a(f"s_add_u32 s93, s93, {W2F}")
    a(f"s_mov_b32 s94, {W2K*1024}"); a("s_mov_b32 s95, 4"); a("s_movk_i32 s99, 1024")
    a(f"s_branch {lg2}")
    a.label(lo2)
    srd(a, 24, 14, 640*640*2)
    a("s_sub_u32 s42, s42, 180")
    a(f"s_mul_hi_u32 s54, s42, {(1 << 32)//10 + 1}")
    a("s_mul_i32 s55, s54, 10"); a("s_sub_u32 s55, s42, s55")
    a("s_mul_i32 s54, s54, 5"); a("s_add_u32 s54, s54, 20"); a("s_min_u32 s54, s54, 34")
    a(f"s_mul_i32 s92, s54, {16*1280}"); a("s_lshl_b32 s43, s55, 7"); a("s_add_u32 s92, s92, s43")
    a(f"s_mul_i32 s93, s55, {2*40*1024}"); a("s_lshl_b32 s43, s54, 10"); a("s_add_u32 s93, s93, s43"); a(f"s_add_u32 s93, s93, {WOF}")
    a("s_mov_b32 s94, 40960"); a("s_mov_b32 s95, 8"); a("s_movk_i32 s99, 512")
    a.label(lg2)
    a("s_setprio 0")

def gen_main(name="main_kernel", ffn=True, prio_attn=None, prio_ffn=None):
    a = Asm()
    a(f".globl {name}\n.p2align 8\n.type {name},@function")
    a.label(name)
    a("s_cmp_ge_u32 s2, 256")
    a(f"s_cbranch_scc1 {name}_end")
    stamp_rt(a, 0); stamp(a, 1)
    a("s_load_dwordx2 s[22:23], s[0:1], 0")
    a("s_load_dwordx8 s[8:15], s[0:1], 8")
    a("s_load_dwordx4 s[16:19], s[0:1], 48")
    a("s_load_dwordx2 s[90:91], s[0:1], 72")
    a("s_load_dwordx2 s[20:21], s[0:1], 80")
    a("v_lshrrev_b32 v1, 6, v0")
    a("v_and_b32 v0, 63, v0")
    a("v_readfirstlane_b32 s3, v1")
    a("v_lshlrev_b32 v3, 4, v0")
    a("s_lshr_b32 s4, s2, 3"); a("s_and_b32 s4, s4, 7")
    a("s_lshr_b32 s5, s2, 6"); a("s_lshl_b32 s5, s5, 3"); a("s_and_b32 s6, s2, 7"); a("s_add_u32 s5, s5, s6")
    a("s_waitcnt lgkmcnt(0)")
    lffn = f"{name}_ffn"
    a("s_cmp_ge_u32 s3, 8")
    a(f"s_cbranch_scc1 {lffn}")
    errs = gen_attn(a, name, prio_attn)
    a.label(lffn)
    a("s_sub_u32 s6, s3, 8")
    gen_ffn_head(a, name)
    import kfffn
    errs += kfffn.gen_ffn_main(a, name, prio_ffn, ffn)
    a.label(f"{name}_end")
    a("s_endpgm")
    errs += check_hazards(a.lines, name)
    return a.text(), kd(name, 168, 102), errs

def kernels(which):
    k2.PROF = bool(os.environ.get("PROF"))
    t, d, e = gen_main("main_kernel", ffn=(which != "attn"), prio_attn=X("PRIOA"), prio_ffn=X("PRIOF"))
    return [("main_kernel", t, d, e, 256, 768, LDS_MAIN)]
```

```python
from asmlib import *
from layout import *
from k0 import srd
import k2
from k2 import mfma32, stamp, stamp_rt, stamp_store, X, ST
from kf import KVL, XT, XC, XKS, NONCE, HS, J3L

VX0, VX1 = 164, 165
VT = 160

class VM:
    def __init__(self, a): self.a = a; self.q = []
    def issue(self, tag, maybe=False): self.q.append((tag, maybe))
    def wait(self, tag, extra=""):
        hits = [i for i, t in enumerate(self.q) if t[0] == tag]
        if not hits:
            if extra: self.a("s_waitcnt" + extra)
            return
        idx = max(hits)
        n = sum(1 for t in self.q[idx + 1:] if not t[1])
        assert n <= 63
        self.a(f"s_waitcnt vmcnt({n}){extra}")
        self.q = self.q[idx + 1:]
    def clone(self, a):
        v = VM(a); v.q = list(self.q); return v

def kv_dma(a, vm, c):
    if c > 15: return
    a(f"s_add_u32 m0, s41, {(c % 4)*16384}")
    a(f"s_add_u32 s15, s40, {c*16384}")
    for i in range(4):
        a(f"buffer_load_dwordx4 v3, s[28:31], s15 offen offset:{i*1024} sc1 lds"); vm.issue(("kv", c))

BARS = ["S1"] + [f"C{i}" for i in range(16)]
def bstamp(a, name):
    if not X("BSTAMP"): return
    i = BARS.index(name)
    a("s_memtime s[96:97]"); a("s_waitcnt lgkmcnt(0)"); a(f"s_mov_b32 s{64+i}, s96")
def bstamp_store(a):
    if not X("BSTAMP"): return
    a("s_memtime s[96:97]"); a("s_waitcnt lgkmcnt(0)"); a("s_mov_b32 s85, s96")
    a("s_lshl_b32 s58, s2, 2"); a("s_add_u32 s58, s58, s6"); a("s_lshl_b32 s58, s58, 7")
    a(f"s_add_u32 s56, s20, 0x8400000"); a("s_addc_u32 s57, s21, 0")
    a("v_mov_b32 v160, s58")
    for i in range(22):
        a(f"v_mov_b32 v161, s{64+i}")
        a(f"global_store_dword v160, v161, s[56:57] offset:{4*i}")
        a("s_nop 1")
def barrier(a, vm, name):
    if name == "S1":
        for c in range(2): kv_dma(a, vm, c)
    else:
        c = int(name[1:])
        vm.wait(("kv", c + 1))
        if c == 2: vm.wait("j3in")
        if c == 4: vm.wait("j3st")
        a("s_barrier")
        if c == 0: kv_dma(a, vm, 2)
        kv_dma(a, vm, c + 3)
    bstamp(a, name)

VPRIO = int(X("VPRIO", "2"))
def hi(a):
    if VPRIO: a(f"s_setprio {VPRIO}")
def lo(a):
    if VPRIO: a("s_setprio 0")
def interleave(a, steps, fill):
    nslots = sum(len(s) for s in steps)
    out = []; done = 0; used = 0
    for s in steps:
        grp = []
        for slot in s:
            done += 1
            tgt = (len(fill)*done + nslots - 1)//nslots if nslots else 0
            mine = fill[used:tgt]; used = max(used, tgt)
            grp.append((slot, mine))
        def emit(grp=grp):
            for slot, mine in grp:
                slot()
                if mine and VPRIO: a(f"s_setprio {VPRIO}")
                for f in mine:
                    f() if callable(f) else a(f)
                if mine and VPRIO: a("s_setprio 0")
        out.append(emit)
    return out

def gen_ffn_main(a, name, prio, ffn=True):
    lend = f"{name}_end"
    vm0 = VM(a)
    a("s_lshl_b32 s40, s6, 12")
    a(f"s_add_u32 s41, s40, {KVL}")
    if not ffn:
        for b in BARS: barrier(a, vm0, b)
        a(f"s_branch {lend}")
        return []
    srd(a, 44, 20, W1F_SZ, W1F)
    srd(a, 48, 20, W2F_SZ, W2F)
    a("s_lshr_b32 s8, s4, 1"); a("s_and_b32 s9, s4, 1")
    a("s_lshl_b32 s7, s4, 2"); a("s_add_u32 s7, s7, s6")
    a("s_mul_i32 s12, s8, 5"); a("s_mul_i32 s13, s9, 3"); a("s_add_u32 s12, s12, s13")
    a("s_lshl_b32 s14, s5, 8"); a(f"s_add_u32 s14, s14, {FLG}")
    a("s_lshl_b32 s13, s7, 2"); a("s_add_u32 s16, s14, s13")
    a(f"s_mul_i32 s17, s5, {2*108*1024}"); a(f"s_add_u32 s17, s17, {HF}")
    a(f"v_lshrrev_b32 v{VX0}, 5, v0"); a(f"v_mul_u32_u24 v{VX0}, {XC}, v{VX0}")
    a(f"v_and_b32 v{VX1}, 31, v0"); a(f"v_lshl_add_u32 v{VX0}, v{VX1}, 4, v{VX0}")
    a(f"v_add_u32 v{VX1}, {XT}, v{VX0}")
    if prio is not None: a(f"s_setprio {prio}")
    def set_flag(vm, stage):
        a(f"v_mov_b32 v{VT+2}, 0"); a(f"v_mov_b32 v{VT+3}, s{NONCE}")
        a("s_mov_b64 exec, 1")
        a(f"buffer_store_dword v{VT+3}, v{VT+2}, s[36:39], s16 offen offset:{128*stage} sc1"); vm.issue("flag")
        a("s_mov_b64 exec, -1")
    def poll_issue(vm, stage):
        a(f"v_and_b32 v{VT}, 31, v0"); a(f"v_lshlrev_b32 v{VT}, 2, v{VT}")
        a(f"buffer_load_dword v{VT+1}, v{VT}, s[36:39], s14 offen offset:{128*stage} sc1"); vm.issue(("poll", stage))
    def poll_check(vm, stage):
        lp, ld = a.uid("poll"), a.uid("polld")
        vm.wait(("poll", stage))
        a(f"v_cmp_ne_u32 vcc, s{NONCE}, v{VT+1}")
        a("s_mov_b32 s13, 0x4000")
        a("s_nop 3")
        a(f"s_cbranch_vccz {ld}")
        a.label(lp)
        a(f"buffer_load_dword v{VT+1}, v{VT}, s[36:39], s14 offen offset:{128*stage} sc1")
        a("s_waitcnt vmcnt(0)")
        a(f"v_cmp_ne_u32 vcc, s{NONCE}, v{VT+1}")
        a("s_sub_u32 s13, s13, 1")
        a("s_nop 3")
        a(f"s_cbranch_vccz {ld}")
        a("s_cmp_eq_u32 s13, 0"); a(f"s_cbranch_scc1 {ld}")
        a("s_sleep 2")
        a(f"s_branch {lp}")
        a.label(ld)
    T0 = 4; AR = 68; BR = 100; DA = 8
    ACC = 4; AR2 = 100

    def path(n):
        vm = vm0.clone(a)
        full_b = (n == 2)
        def silu(tiles, T, sbase, tag, maybe=False):
            L = []
            for (tb_, delta) in tiles:
                for half in range(2):
                    base = tb_ + 8*half
                    L += [f"v_exp_f32 v{T+i}, -v{base+i}" for i in range(8)]
                    L += [f"v_add_f32 v{T+i}, 1.0, v{T+i}" for i in range(8)]
                    L += [f"v_rcp_f32 v{T+i}, v{T+i}" for i in range(8)]
                    L += [f"v_mul_f32 v{base+i}, v{base+i}, v{T+i}" for i in range(8)]
                    L += [f"v_cvt_pk_bf16_f32 v{base+p}, v{base+2*p}, v{base+2*p+1}" for p in range(4)]
                    def st(base=base, off=delta + half*1024):
                        a(f"s_add_u32 s15, s{sbase}, {off}")
                        a(f"buffer_store_dwordx4 v[{base}:{base+3}], v3, s[36:39], s15 offen sc1"); vm.issue(tag, maybe)
                    L.append(st)
            return L
        a("s_mul_i32 s18, s7, 40960")
        a("s_lshl_b32 s13, s7, 11"); a("s_add_u32 s10, s17, s13")
        if full_b:
            a("s_lshl_b32 s13, s8, 2"); a("s_add_u32 s13, s13, s6"); a("s_add_u32 s13, s13, 32")
            a("s_lshl_b32 s11, s13, 11"); a("s_add_u32 s11, s11, s17")
        else:
            a("s_lshr_b32 s13, s6, 1"); a("s_add_u32 s13, s13, s4"); a("s_add_u32 s13, s13, 48")
            a("s_and_b32 s15, s6, 1"); a("s_mul_i32 s15, s15, 110592")
            a("s_lshl_b32 s11, s13, 11"); a("s_add_u32 s11, s11, s17"); a("s_add_u32 s11, s11, s15")
            a("s_lshl_b32 s15, s6, 11"); a(f"s_add_u32 s15, s15, {DUM}")
            a("s_cmp_eq_u32 s4, 6"); a("s_cselect_b32 s11, s15, s11")
            a("s_and_b32 s15, s6, 1"); a(f"s_mul_i32 s15, s15, {XT}")
            a(f"v_add_u32 v{VT+6}, s15, v{VX0}")
        a("s_mul_i32 s19, s13, 40960")
        def a1_load(i):
            if i >= 80: return
            if X("NOLD1") and i >= DA: return
            r = AR + 4*(i % DA)
            if i == 40: a("s_mov_b32 s18, s19")
            elif i % 4 == 0 and i > 0: a("s_add_u32 s18, s18, 4096")
            a(f"buffer_load_dwordx4 v[{r}:{r+3}], v3, s[44:47], s18 offen offset:{(i%4)*1024} sc1"); vm.issue(("a1", i))
        DB = 3
        def b1_load(i):
            if i >= 80: return
            ks = i % 40; r = BR + 8*(i % DB)
            if i < 40 or full_b:
                a(f"ds_read_b128 v[{r}:{r+3}], v{VX0} offset:{ks*XKS}")
                a(f"ds_read_b128 v[{r+4}:{r+7}], v{VX1} offset:{ks*XKS}")
            else:
                a(f"ds_read_b128 v[{r}:{r+3}], v{VT+6} offset:{ks*XKS}")
        nb = lambda i: 0 if i >= 80 else (2 if (i < 40 or full_b) else 1)
        def f1(i):
            st_, ks = divmod(i, 40)
            ra = AR + 4*(i % DA); rb = BR + 8*(i % DB)
            d0 = T0 + 32*st_; d1 = d0 + 16
            two = (st_ == 0 or full_b)
            def s0():
                vm.wait(("a1", i), f" lgkmcnt({nb(i + 1)})")
                a(mfma32(d0, ra, rb, None if ks == 0 else d0))
                if not two:
                    b1_load(i + 2); a1_load(i + DA)
            def s1():
                a(mfma32(d1, ra, rb + 4, None if ks == 0 else d1))
                b1_load(i + 2)
                a1_load(i + DA)
            return [s0, s1] if two else [s0]
        P1 = [f1(i) for i in range(40)]
        P2 = [f1(i) for i in range(40, 80)]
        sl0 = silu([(T0, 0), (T0 + 16, 110592)], 124, 10, "hst0")
        lead = 3 if full_b else 5
        nfill = int(X("NFILL%d" % n, "22" if full_b else "26"))
        steps = interleave(a, P1, []) + interleave(a, P2[:lead], []) + interleave(a, P2[lead:nfill], sl0) + interleave(a, P2[nfill:], [])
        npub0 = min(80, 40 + nfill + (5 if full_b else 4))
        NF = n + 2; DEP = 3; NS = 27; NA = 16
        def setup2():
            a("s_lshl_b32 s13, s6, 14")
            a(f"s_mul_i32 s8, s12, {W2K*1024}")
            a("s_mul_i32 s15, s6, 11264"); a("s_add_u32 s15, s15, 65536")
            a("s_add_u32 s9, s8, s15"); a("s_add_u32 s8, s8, s13")
            a("s_add_u32 s19, s17, s15"); a("s_add_u32 s18, s17, s13")
        def ld_ops(s):
            if s >= NS or (X("NOLD2") and s >= DEP): return []
            sa, sb, i = (8, 18, s) if s < NA else (9, 19, s - NA)
            r = AR2 + 4*NF*(s % DEP)
            hi, lo = (i // 4)*4096, (i % 4)*1024
            ops = []
            for j in range(n):
                def f(j=j):
                    a(f"s_add_u32 s15, s{sa}, {j*W2K*1024 + hi}")
                    a(f"buffer_load_dwordx4 v[{r+4*j}:{r+4*j+3}], v3, s[48:51], s15 offen offset:{lo} sc1"); vm.issue(("l2", s))
                ops.append(f)
            for tt in range(2):
                def f(tt=tt):
                    a(f"s_add_u32 s15, s{sb}, {tt*110592 + hi}")
                    a(f"buffer_load_dwordx4 v[{r+4*(n+tt)}:{r+4*(n+tt)+3}], v3, s[36:39], s15 offen offset:{lo} sc1"); vm.issue(("l2", s))
                ops.append(f)
            return ops
        def f2(s):
            def fn():
                vm.wait(("l2", s))
                r = AR2 + 4*NF*(s % DEP)
                if s + DEP == NA: poll_check(vm, 1)
                nxt = ld_ops(s + DEP)
                mf = []
                for j in range(n):
                    for tt in ((0, 1) if j % 2 == 0 else (1, 0)):
                        d = ACC + 16*(2*j + tt)
                        mf.append((mfma32(d, r + 4*j, r + 4*(n + tt), None if s == 0 else d), j))
                for x, (m, j) in enumerate(mf):
                    if not X("NOMF2"): a(m)
                    if x % 2 == 1 and nxt and j < n - 1: nxt[j]()
                if nxt:
                    for f in nxt[n-1:]: f()
                if s + DEP == NA - 2: poll_issue(vm, 1)
                if s == 1:
                    vm.wait("hst1"); set_flag(vm, 1)
            return fn
        NT = 2*n; OWN = AR2
        def red_write():
            a("s_mul_i32 s13, s6, 18432")
            a(f"v_add_u32 v{VX0}, s13, v3")
            ld = a.uid("rw_done"); ls = [a.uid("rw") for _ in range(4)]
            for w in range(4):
                if w < 3:
                    a(f"s_cmp_lg_u32 s6, {w}"); a(f"s_cbranch_scc1 {ls[w]}")
                a("s_nop 15")
                for T in range(NT):
                    for i in range(4):
                        if i == w: continue
                        ip = (i - w - 1) % 4
                        r = ACC + 16*T + 4*i
                        a(f"ds_write_b128 v{VX0}, v[{r}:{r+3}] offset:{(T*3 + ip)*1024}")
                for T in range(NT):
                    for x in range(4): a(f"v_mov_b32 v{OWN+4*T+x}, v{ACC+16*T+4*w+x}")
                if w < 3:
                    a(f"s_branch {ld}"); a.label(ls[w])
            a.label(ld)
            a("s_waitcnt lgkmcnt(0)")
        def red_read():
            R = ACC
            for d in range(1, 4):
                a(f"s_add_u32 s13, s6, {d}"); a("s_and_b32 s13, s13, 3"); a("s_mul_i32 s13, s13, 18432")
                a(f"v_add_u32 v{VX1}, s13, v3")
                for T in range(NT):
                    r = R + 4*((d-1)*6 + T)
                    a(f"ds_read_b128 v[{r}:{r+3}], v{VX1} offset:{(T*3 + 3 - d)*1024}")
            a("s_lshl_b32 s13, s5, 3"); a("s_add_u32 s13, s13, s4"); a("s_mul_i32 s13, s13, 12288")
            a("s_lshl_b32 s15, s6, 9"); a("s_add_u32 s13, s13, s15"); a(f"s_add_u32 s13, s13, {YF}")
            a(f"v_lshlrev_b32 v{VT}, 3, v0")
            a(f"s_mov_b32 s8, {f2u(LN2):#x}")
            a("s_waitcnt lgkmcnt(0)")
            for T in range(NT):
                y = OWN + 4*T
                for d in range(1, 4):
                    r = R + 4*((d-1)*6 + T)
                    for x in range(4): a(f"v_add_f32 v{y+x}, v{y+x}, v{r+x}")
                for x in range(4): a(f"v_mul_f32 v{y+x}, s8, v{y+x}")
                a(f"v_cvt_pk_bf16_f32 v{y}, v{y}, v{y+1}")
                a(f"v_cvt_pk_bf16_f32 v{y+1}, v{y+2}, v{y+3}")
                a(f"s_add_u32 s15, s13, {T*2048}")
                a(f"buffer_store_dwordx2 v[{y}:{y+1}], v{VT}, s[36:39], s15 offen" + ST); vm.issue("y")
        def mid():
            setup2()
            poll_issue(vm, 0)
            g2_issue()
            a("s_nop 7")
            tiles = [(T0 + 32, 0), (T0 + 48, 110592)] if full_b else [(T0 + 32, 0)]
            hi(a)
            for f in silu(tiles, 68, 11, "hst1"): f() if callable(f) else a(f)
            poll_check(vm, 0)
            g2_check()
            for st_ in range(DEP):
                for f in ld_ops(st_): f()
            lo(a)
        segs = {b: [] for b in BARS}
        def j3_in():
            a("v_lshrrev_b32 v147, 3, v0"); a("v_mul_u32_u24 v147, 1280, v147")
            a("v_and_b32 v146, 7, v0"); a("v_lshl_add_u32 v147, v146, 4, v147")
            a("s_mul_i32 s13, s6, 30720"); a("s_add_u32 s13, s13, s92")
            a("s_mul_i32 s15, s6, 3072")
            for i in range(3):
                a(f"s_add_u32 m0, s15, {J3L + i*1024}")
                a("s_nop 0")
                a("buffer_load_dwordx4 v147, s[24:27], s13 offen lds"); vm.issue("j3in")
                if i < 2: a("s_add_u32 s13, s13, 10240")
        def j3_out():
            a("v_lshrrev_b32 v144, 5, v0"); a("v_mul_lo_u32 v144, v144, s95")
            a("v_and_b32 v145, 15, v0"); a("v_lshrrev_b32 v146, 2, v145"); a("v_add_u32 v144, v144, v146")
            a("v_lshlrev_b32 v144, 7, v144")
            a("v_bfe_u32 v146, v0, 4, 1"); a("v_lshl_add_u32 v144, v146, 5, v144")
            a("v_and_b32 v146, 3, v145"); a("v_lshl_add_u32 v144, v146, 3, v144")
            a("s_lshr_b32 s13, s6, 1"); a("s_lshl_b32 s15, s13, 6")
            a("s_mul_i32 s13, s13, s94"); a("s_add_u32 s13, s13, s93")
            a("s_and_b32 s43, s6, 1"); a("s_mul_i32 s43, s43, 3")
            a("s_lshl_b32 s42, s43, 11"); a("s_add_u32 s15, s15, s42"); a(f"s_add_u32 s15, s15, {J3L}")
            a("s_lshl_b32 s43, s43, 10"); a("s_add_u32 s13, s13, s43")
            a("v_add_u32 v144, s15, v144")
            a("v_add_u32 v145, s99, v144")
            for i in range(3):
                a(f"ds_read_b64_tr_b16 v[{132+4*i}:{133+4*i}], v144 offset:{i*2048}")
                a(f"ds_read_b64_tr_b16 v[{134+4*i}:{135+4*i}], v145 offset:{i*2048}")
            a("s_waitcnt lgkmcnt(0)")
            for i in range(3):
                a(f"buffer_store_dwordx4 v[{132+4*i}:{135+4*i}], v3, s[36:39], s13 offen offset:{i*1024} sc1"); vm.issue("j3st")
        def g2_flag():
            l = a.uid("g2f")
            a("s_cmp_lg_u32 s6, 3"); a(f"s_cbranch_scc1 {l}")
            a("s_lshl_b32 s13, s2, 2"); a(f"s_add_u32 s13, s13, {GFL + 3072}")
            a(f"v_mov_b32 v{VT+2}, 0"); a(f"v_mov_b32 v{VT+3}, s{NONCE}")
            a("s_mov_b64 exec, 1")
            a(f"buffer_store_dword v{VT+3}, v{VT+2}, s[36:39], s13 offen sc1"); vm.issue("g2f", True)
            a("s_mov_b64 exec, -1")
            a.label(l)
        def g2_issue():
            a(f"s_mov_b32 s13, {GFL + 3072}")
            a("buffer_load_dwordx4 v[132:135], v3, s[36:39], s13 offen sc1"); vm.issue("g2p")
        def g2_check():
            lp, ld = a.uid("g2p"), a.uid("g2d")
            vm.wait("g2p")
            a("s_mov_b32 s43, 0x4000")
            a(f"s_mov_b32 s13, {GFL + 3072}")
            a.label(lp)
            for r in range(132, 136): a(f"v_xor_b32 v{r}, s{NONCE}, v{r}")
            a("v_or_b32 v132, v132, v133"); a("v_or_b32 v134, v134, v135"); a("v_or_b32 v132, v132, v134")
            a("v_cmp_ne_u32 vcc, 0, v132")
            a("s_sub_u32 s43, s43, 1")
            a("s_nop 3")
            a(f"s_cbranch_vccz {ld}")
            a("s_cmp_eq_u32 s43, 0"); a(f"s_cbranch_scc1 {ld}")
            a("s_sleep 2")
            a("buffer_load_dwordx4 v[132:135], v3, s[36:39], s13 offen sc1")
            a("s_waitcnt vmcnt(0)")
            a(f"s_branch {lp}")
            a.label(ld)
        segs["S1"] += [lambda: [a1_load(i) for i in range(DA)], lambda: (b1_load(0), b1_load(1))]
        segs["C1"] += [lambda: hi(a), j3_in, lambda: lo(a)]
        segs["C2"] += [lambda: hi(a), j3_out, lambda: lo(a)]
        segs["C4"] += [g2_flag]
        n1 = [int(x) for x in X("F1SCHED%d" % n, "0,13,13,14,10,10,10,10" if full_b else "0,13,13,14,14,13,13").split(",")]
        order = BARS
        k = 0
        for b, m in zip(order, n1):
            for e in steps[k:k + m]:
                segs[b].append(e)
                k += 1
                if k == npub0: segs[b].append(lambda: (vm.wait("hst0"), set_flag(vm, 0)))
        assert k == 80
        last1 = order[len(n1) - 1]
        bmid = order[len(n1)]
        segs[bmid].append(mid)
        n2 = [int(x) for x in X("F2SCHED%d" % n, "5,5,5,4,4,4" if full_b else "4,4,4,4,4,4,3").split(",")]
        F2 = [f2(s) for s in range(NS)]
        k = 0
        for b, m in zip(order[len(n1) + 1:], n2):
            segs[b] += F2[k:k + m]; k += m
        assert k == NS and order[len(n1) + len(n2)] in ("C13",), (order[len(n1) + len(n2)])
        segs["C14"] += [lambda: hi(a), red_write]
        segs["C15"] += [red_read]
        for b in BARS:
            barrier(a, vm, b)
            if b == "S1" and not HS: stamp(a, 2)
            if b == bmid and not HS: stamp(a, 3)
            if b == order[len(n1) + 1] and not HS: stamp(a, 4)
            if b == "C14" and not HS: stamp(a, 5)
            for fn in segs[b]: fn()
        if not HS: stamp(a, 6)
        if HS == "G": stamp(a, 6)
        stamp_rt(a, 7); stamp_store(a, 8)
        bstamp_store(a)
        a(f"s_branch {lend}")
    lodd = f"{name}_ffn_odd"
    a("s_cmp_eq_u32 s9, 1")
    a(f"s_cbranch_scc1 {lodd}")
    path(3)
    a.label(lodd)
    path(2)
    return []
```

```python
from asmlib import *
from layout import *
from k0 import srd, kd
import os
import k2
from k2 import X, ST, mfma32, mfma8, attn_tile, Q1, Q2, KB, VB, P, S, O, E, THR, stamp, stamp_rt, stamp_store

XT = 42240; XC = 528; XKS = 1056
KVL = 84480
WKVL = KVL
SB = (KVL + 25600, KVL + 46080, KVL)
STAGE_BUF = (0, 1, 0, 2, 1)
J3L = KVL + 66560
QXL = KVL + 3*16384
NONCE_L = 163824
LDS_MAIN = 163840
CODE_PF_KB = 40
NONCE = 98

HS = X("HSTAMP")
def hstamp(a, who, i):
    if HS == who: stamp(a, i)
def nstamp(a, i):
    if not HS: stamp(a, i)
def rstamp(a, i):
    if HS == "R": stamp_rt(a, i)
def spin_timeout(a, sreg): a(f"s_mov_b32 s{sreg}, 0x8000")

def gen_attn(a, name, prio):
    srd(a, 24, 22, X_SZ)
    srd(a, 28, 20, KV_SZ, KV)
    srd(a, 36, 20, YF + YF_SZ)
    srd(a, 32, 8, 640*640*2)
    a("s_lshr_b32 s6, s3, 1")
    a("s_lshl_b32 s7, s4, 2")
    a("s_add_u32 s6, s6, s7")
    a("s_and_b32 s7, s3, 1")
    XR = (88, 108)
    a("v_lshrrev_b32 v10, 4, v0")
    a("v_and_b32 v11, 15, v0")
    a("s_and_b32 s11, s4, 6"); a("s_add_u32 s11, s11, s3"); a("s_and_b32 s11, s11, 7")
    a("s_lshl_b32 s8, s11, 3")
    a("v_add_u32 v12, s8, v10")
    a("s_lshl_b32 s9, s5, 6")
    a("v_add_u32 v13, s9, v12")
    a("v_mul_u32_u24 v13, 1280, v13")
    a("v_lshl_add_u32 v13, v11, 4, v13")
    for ps in range(2):
        a(f"s_mov_b32 s10, {ps*4*1280}")
        for j in range(5):
            a(f"buffer_load_dwordx4 v[{XR[ps]+4*j}:{XR[ps]+4*j+3}], v13, s[24:27], s10 offen offset:{256*j}")
    if X("B0", "1") == "1": a("s_barrier")
    a("s_lshr_b32 s10, s11, 2"); a(f"s_mul_i32 s10, s10, {XT}")
    a("v_and_b32 v14, 31, v12")
    a("v_lshlrev_b32 v14, 4, v14")
    a(f"v_mul_u32_u24 v15, {XC}, v11")
    a("v_add3_u32 v14, v14, v15, s10")
    a(f"v_add_u32 v1, {KVL}, v3")
    a("v_lshlrev_b32 v2, 3, v0")
    a(f"v_add_u32 v2, {KVL}, v2")
    a("v_mov_b32 v16, 0x3f803f80")
    for ps in range(2):
        R = XR[ps]
        a("v_mov_b32 v17, 0"); a("v_mov_b32 v18, 0")
        if ps == 0: hstamp(a, "A", 2)
        a(f"s_waitcnt vmcnt({5 if ps == 0 else 0})")
        hstamp(a, "A", 3 + ps)
        if ps == 1:
            npf = 0
            if X("WQPF", "0") == "1":
                lnp = a.uid("a_nopf")
                a("s_cmp_ge_u32 s3, 6"); a(f"s_cbranch_scc1 {lnp}")
                a("s_lshl_b32 s10, s3, 6"); a("s_add_u32 s10, s10, 128")
                a("s_add_u32 s11, s10, 128"); a("s_cmp_ge_u32 s3, 3"); a("s_cselect_b32 s10, s11, s10")
                a("v_add_u32 v150, s10, v0"); a("v_mul_u32_u24 v150, 1280, v150")
                a("s_mul_i32 s10, s4, 160")
                a("buffer_load_dword v151, v150, s[32:35], s10 offen")
                a("buffer_load_dword v152, v150, s[32:35], s10 offen offset:128")
                a.label(lnp)
                npf = 0
        for i in range(20):
            a(f"v_dot2_f32_bf16 v17, v{R+i}, v16, v17")
            a(f"v_dot2_f32_bf16 v18, v{R+i}, v{R+i}, v18")
        for sh in (8, 4, 2, 1):
            a("s_nop 1")
            a(f"v_add_f32_dpp v17, v17, v17 row_ror:{sh} row_mask:0xf bank_mask:0xf")
            a(f"v_add_f32_dpp v18, v18, v18 row_ror:{sh} row_mask:0xf bank_mask:0xf")
        a("s_nop 0")
        a(f"v_mul_f32 v17, {f2u(1/640.):#x}, v17")
        a(f"v_mul_f32 v18, {f2u(1/640.):#x}, v18")
        a("v_fma_f32 v18, -v17, v17, v18")
        a("v_max_f32 v18, 0, v18")
        a(f"v_add_f32 v18, {f2u(1e-5):#x}, v18")
        a("v_rsq_f32 v18, v18")
        a("s_nop 0")
        a(f"v_mul_f32 v18, {f2u(LOG2E):#x}, v18")
        a("v_mul_f32 v19, v17, v18")
        for j in range(5):
            for i in range(4):
                r = R + 4*j + i
                t = 20 + 2*(i & 1)
                a(f"v_lshlrev_b32 v{t}, 16, v{r}")
                a(f"v_and_b32 v{t+1}, 0xffff0000, v{r}")
                a(f"v_fma_f32 v{t}, v{t}, v18, -v19")
                a(f"v_fma_f32 v{t+1}, v{t+1}, v18, -v19")
                a(f"v_cvt_pk_bf16_f32 v{r}, v{t}, v{t+1}")
            a(f"ds_write_b128 v14, v[{R+4*j}:{R+4*j+3}] offset:{j*16*XC + ps*64}")
    a("s_waitcnt lgkmcnt(0)")
    hstamp(a, "A", 5)
    a("s_barrier")
    hstamp(a, "A", 6)
    nstamp(a, 2)
    dbg_mark(a, 0, 1, vt=160, nl=2, sreg=78)
    if prio is not None: a(f"s_setprio {prio}")
    a("v_lshrrev_b32 v16, 5, v0")
    a("v_and_b32 v17, 31, v0")
    a(f"v_mul_u32_u24 v10, {XC}, v16")
    a("v_lshl_add_u32 v10, v17, 4, v10")
    a(f"s_mul_i32 s10, s7, {20*XKS}")
    a("v_add_u32 v10, s10, v10")
    a(f"v_add_u32 v11, {XT}, v10")
    a("v_and_b32 v17, 15, v0"); a("v_lshrrev_b32 v18, 2, v17")
    a("v_lshl_add_u32 v18, v16, 3, v18")
    a("s_lshl_b32 s10, s7, 6"); a("v_add_u32 v18, s10, v18")
    a("v_mul_u32_u24 v18, 160, v18")
    a("v_bfe_u32 v19, v0, 4, 1"); a("v_lshl_add_u32 v18, v19, 5, v18")
    a("v_and_b32 v19, 3, v17"); a("v_lshl_add_u32 v18, v19, 3, v18")
    a("s_lshr_b32 s10, s3, 1"); a("s_mul_i32 s10, s10, 40")
    a("v_add_u32 v18, s10, v18")
    for b in range(3): a(f"v_add_u32 v{12+b}, {SB[b]}, v18")
    D0, D1 = S
    AQ = 88; BQ = (104, 136)
    def bread(st):
        b = BQ[st & 1]
        for kk in range(4):
            ks = 4*st + kk
            a(f"ds_read_b128 v[{b+8*kk}:{b+8*kk+3}], v10 offset:{ks*XKS}")
            a(f"ds_read_b128 v[{b+8*kk+4}:{b+8*kk+7}], v11 offset:{ks*XKS}")
    bread(0)
    for st in range(5):
        if st > 0: a("s_barrier")
        if st > 0: hstamp(a, "Q", st + 1)
        vb = 12 + STAGE_BUF[st]
        for kk in range(4):
            a(f"ds_read_b64_tr_b16 v[{AQ+4*kk}:{AQ+4*kk+1}], v{vb} offset:{kk*16*160}")
            a(f"ds_read_b64_tr_b16 v[{AQ+4*kk+2}:{AQ+4*kk+3}], v{vb} offset:{kk*16*160 + 640}")
        b = BQ[st & 1]
        for kk in range(4):
            ks = 4*st + kk
            nxt = 8 if (st < 4 and kk >= 1) else 0
            a(f"s_waitcnt lgkmcnt({min(15, 2*(3 - kk) + nxt)})")
            a(mfma32(D0, AQ + 4*kk, b + 8*kk, None if ks == 0 else D0))
            a(mfma32(D1, AQ + 4*kk, b + 8*kk + 4, None if ks == 0 else D1))
            if kk == 0 and st < 4: bread(st + 1)
        if st < 4: a("s_waitcnt lgkmcnt(0)")
    a("s_mul_i32 s44, s3, 3072")
    a(f"s_add_u32 s44, s44, {QXL}")
    a("v_add_u32 v12, s44, v3")
    a("s_xor_b32 s45, s3, 1"); a("s_mul_i32 s45, s45, 3072"); a(f"s_add_u32 s45, s45, {QXL}")
    a("v_add_u32 v13, s45, v3")
    lp1, lpd = a.uid("qx1"), a.uid("qxd")
    a("s_nop 7")
    a("s_cmp_eq_u32 s7, 1"); a(f"s_cbranch_scc1 {lp1}")
    for i in range(3): a(f"ds_write_b128 v12, v[{D1+4*i}:{D1+4*i+3}] offset:{i*1024}")
    a(f"s_branch {lpd}")
    a.label(lp1)
    for i in range(3): a(f"ds_write_b128 v12, v[{D0+4*i}:{D0+4*i+3}] offset:{i*1024}")
    a("s_waitcnt lgkmcnt(0)")
    for r in range(12): a(f"v_mov_b32 v{D0+r}, v{D1+r}")
    a.label(lpd)
    a("s_waitcnt lgkmcnt(0)")
    a("s_barrier")
    hstamp(a, "Q", 6)
    dbg_mark(a, 0, 2, vt=160, nl=2, sreg=78)
    for i in range(3): a(f"ds_read_b128 v[{D1+4*i}:{D1+4*i+3}], v13 offset:{i*1024}")
    a("v_cmp_gt_u32 vcc, 32, v0")
    a("s_waitcnt lgkmcnt(0)")
    D = D0
    for r in range(12): a(f"v_add_f32 v{D+r}, v{D+r}, v{D1+r}")
    for r in range(8, 12): a(f"v_cndmask_b32 v{D+r}, 0, v{D+r}, vcc")
    a(f"s_mov_b32 s45, {f2u(QSCALE):#x}")
    for r in range(12): a(f"v_mul_f32 v{D+r}, s45, v{D+r}")
    a(f"v_mul_f32 v136, v{D}, v{D}")
    for r in range(1, 12): a(f"v_fmac_f32 v136, v{D+r}, v{D+r}")
    for r in range(4): a(f"v_cvt_pk_bf16_f32 v{Q1+r}, v{D+2*r}, v{D+2*r+1}")
    for r in range(2): a(f"v_cvt_pk_bf16_f32 v{Q2+r}, v{D+8+2*r}, v{D+8+2*r+1}")
    a("v_mov_b32 v137, v136"); a("s_nop 1")
    a("v_permlane32_swap_b32 v136, v137"); a("s_nop 1")
    a("v_add_f32 v136, v136, v137")
    for r in range(16): a(f"v_mov_b32 v{O+r}, 0")
    for r in range(8): a(f"v_mov_b32 v{P+r}, 0")
    for r in range(8): a(f"v_mov_b32 v{E+r}, 0")
    for r in range(4): a(f"v_mov_b32 v{VB[1][1]+r}, 0")
    nstamp(a, 3)
    a("s_barrier")
    dbg_mark(a, 0, 3, vt=160, nl=2, sreg=78)
    a(f"s_mov_b32 s43, {KMX}")
    a(f"buffer_load_dwordx4 v[140:143], v3, s[36:39], s43 offen sc1")
    a("s_waitcnt vmcnt(0)")
    a("v_max_f32 v140, v140, v142")
    a("v_max_f32 v141, v141, v143")
    for sh in (8, 4, 2, 1):
        a("s_nop 1")
        a(f"v_max_f32_dpp v140, v140, v140 row_ror:{sh} row_mask:0xf bank_mask:0xf")
        a(f"v_max_f32_dpp v141, v141, v141 row_ror:{sh} row_mask:0xf bank_mask:0xf")
    for sw in ("16", "32"):
        a("v_mov_b32 v142, v140"); a("v_mov_b32 v143, v141"); a("s_nop 1")
        a(f"v_permlane{sw}_swap_b32 v140, v142"); a(f"v_permlane{sw}_swap_b32 v141, v143"); a("s_nop 1")
        a("v_max_f32 v140, v140, v142"); a("v_max_f32 v141, v141, v143")
    a("v_add_f32 v140, v140, v141")
    a("v_mul_f32 v136, v136, v140")
    a(f"s_mov_b32 s45, {f2u(THR*THR):#x}")
    a("v_cmp_nle_f32 vcc, v136, s45")
    lfast = a.uid("attn_fast")
    a("s_nop 4")
    a(f"s_cbranch_vccz {lfast}")
    lm = a.uid("attn_maxloop")
    M = 136; TK = 140
    a(f"v_mov_b32 v{M}, 0xff800000")
    a("s_mov_b32 s46, 0")
    a(f"v_lshlrev_b32 v{M+1}, 3, v0")
    a.label(lm)
    a(f"buffer_load_dwordx4 v[{TK}:{TK+3}], v3, s[28:31], s46 offen sc1")
    a(f"buffer_load_dwordx2 v[{TK+4}:{TK+5}], v{M+1}, s[28:31], s46 offen offset:1024 sc1")
    a("s_waitcnt vmcnt(0)")
    a(mfma32(S[1], TK, Q1, None))
    a(mfma8(S[1], TK+4, Q2, S[1]))
    a("s_add_u32 s46, s46, 4096")
    a("s_nop 15")
    for r in range(0, 16, 2): a(f"v_max3_f32 v{M}, v{M}, v{S[1]+r}, v{S[1]+r+1}")
    a(f"s_cmp_lt_u32 s46, {64*4096}")
    a(f"s_cbranch_scc1 {lm}")
    a(f"v_mov_b32 v{M+2}, v{M}"); a("s_nop 1")
    a(f"v_permlane32_swap_b32 v{M}, v{M+2}"); a("s_nop 1")
    a(f"v_max_f32 v{M}, v{M}, v{M+2}")
    a(f"v_xor_b32 v{M}, 0x80000000, v{M}")
    a(f"v_and_b32 v{M+1}, 0xffff0000, v{M}")
    a(f"v_sub_f32 v{M+2}, v{M}, v{M+1}")
    a(f"v_and_b32 v{M+3}, 0xffff0000, v{M+2}")
    a(f"v_sub_f32 v{M+2}, v{M+2}, v{M+3}")
    a(f"v_lshrrev_b32 v{M+2}, 16, v{M+2}")
    a(f"v_lshrrev_b32 v{M+1}, 16, v{M+1}")
    a(f"v_or_b32 v{M+1}, v{M+1}, v{M+3}")
    a("v_cmp_lt_u32 vcc, 31, v0")
    a("s_nop 1")
    a(f"v_cndmask_b32 v{Q2}, v{Q2}, v{M+1}, vcc")
    a(f"v_cndmask_b32 v{Q2+1}, v{Q2+1}, v{M+2}, vcc")
    a.label(lfast)
    a("s_barrier")
    a(f"ds_read_b128 v[{KB[0][0]}:{KB[0][0]+3}], v1 offset:0")
    a(f"ds_read_b64 v[{KB[0][1]}:{KB[0][1]+1}], v2 offset:1024")
    a("s_waitcnt lgkmcnt(0)")
    a(mfma32(S[0], KB[0][0], Q1, None))
    a(mfma8(S[0], KB[0][1], Q2, S[0]))
    a(f"ds_read_b128 v[{KB[1][0]}:{KB[1][0]+3}], v1 offset:{4096}")
    a(f"ds_read_b64 v[{KB[1][1]}:{KB[1][1]+1}], v2 offset:{4096+1024}")
    a(f"ds_read_b128 v[{VB[0][0]}:{VB[0][0]+3}], v1 offset:2048")
    a(f"ds_read_b128 v[{VB[0][1]}:{VB[0][1]+3}], v1 offset:3072")
    a("s_nop 7")
    nstamp(a, 4)
    dbg_mark(a, 0, 4, vt=160, nl=2, sreg=78)
    a("s_mov_b32 s47, 4")
    lp = a.uid("attn_loop")
    body = Asm()
    for t in range(16):
        if t % 4 == 0 and t > 0: body("s_barrier")
        attn_tile(body, t)
    a.label(lp)
    a.lines += body.lines
    a("s_sub_u32 s47, s47, 1")
    a("s_cmp_eq_u32 s47, 0")
    lout = a.uid("attn_out")
    a(f"s_cbranch_scc1 {lout}")
    a("s_barrier")
    a(f"s_branch {lp}")
    a.label(lout)
    nstamp(a, 5)
    dbg_mark(a, 0, 5, vt=160, nl=2, sreg=78)
    a(f"v_cvt_pk_bf16_f32 v{P+6}, v{E+4}, v{E+5}")
    a(f"v_cvt_pk_bf16_f32 v{P+7}, v{E+6}, v{E+7}")
    a("s_waitcnt lgkmcnt(0)")
    a("s_nop 0")
    a(mfma32(O, VB[1][1], P + 4, O))
    a("v_lshrrev_b32 v110, 5, v0")
    a("s_mul_i32 s48, s6, 5")
    a("v_add_u32 v111, s48, v110")
    a("v_and_b32 v112, 31, v0")
    a("v_lshlrev_b32 v112, 4, v112")
    def qoff(dst, q):
        a(f"v_lshrrev_b32 v113, 2, v{q}")
        a(f"v_lshlrev_b32 v{dst}, 10, v113")
        a(f"v_bfe_u32 v113, v{q}, 1, 1")
        a(f"v_lshl_add_u32 v{dst}, v113, 9, v{dst}")
        a(f"v_and_b32 v113, 1, v{q}")
        a(f"v_lshl_add_u32 v{dst}, v113, 3, v{dst}")
        a(f"v_add_u32 v{dst}, v{dst}, v112")
    qoff(114, 111)
    a("v_add_u32 v111, 2, v111")
    qoff(115, 111)
    a("s_add_u32 s48, s48, 4")
    a("v_mov_b32 v111, s48")
    qoff(116, 111)
    a("s_lshl_b32 s49, s5, 1")
    a("s_add_u32 s49, s49, s7")
    a("s_mul_i32 s49, s49, 40960")
    a(f"s_add_u32 s49, s49, {OF}")
    a(f"v_mov_b32 v118, v{O+8}")
    a(f"v_mov_b32 v119, v{O+8}")
    a("s_nop 1")
    a("v_permlane32_swap_b32 v118, v119")
    a("s_nop 1")
    a("v_rcp_f32 v119, v119")
    a("s_nop 0")
    for r in range(12): a(f"v_mul_f32 v{O+r}, v{O+r}, v119")
    for r in range(6): a(f"v_cvt_pk_bf16_f32 v{120+r}, v{O+2*r}, v{O+2*r+1}")
    a("buffer_store_dwordx2 v[120:121], v114, s[36:39], s49 offen" + ST)
    a("buffer_store_dwordx2 v[122:123], v115, s[36:39], s49 offen" + ST)
    a("v_cmp_gt_u32 vcc, 32, v0")
    a("s_and_saveexec_b64 s[50:51], vcc")
    a("buffer_store_dwordx2 v[124:125], v116, s[36:39], s49 offen" + ST)
    a("s_mov_b64 exec, s[50:51]")
    dbg_mark(a, 0, 6, vt=160, nl=2, sreg=78)
    nstamp(a, 6); stamp_rt(a, 7)
    stamp_store(a, 8)
    a("s_endpgm")
    return check_hazards(body.lines + body.lines, name + ":loop")

def tr_addr(a, dst, base_s, hm, delta):
    a(f"v_lshrrev_b32 v{dst}, 5, v0"); a(f"v_mul_lo_u32 v{dst}, v{dst}, {hm}")
    a(f"v_and_b32 v{dst+1}, 15, v0"); a(f"v_lshrrev_b32 v{dst+2}, 2, v{dst+1}"); a(f"v_add_u32 v{dst}, v{dst}, v{dst+2}")
    a(f"v_lshlrev_b32 v{dst}, 7, v{dst}")
    a(f"v_bfe_u32 v{dst+2}, v0, 4, 1"); a(f"v_lshl_add_u32 v{dst}, v{dst+2}, 5, v{dst}")
    a(f"v_and_b32 v{dst+2}, 3, v{dst+1}"); a(f"v_lshl_add_u32 v{dst}, v{dst+2}, 3, v{dst}")
    a(f"v_add_u32 v{dst}, {base_s}, v{dst}")
    a(f"v_add_u32 v{dst+1}, {delta}, v{dst}")

def gen_ffn_head(a, name):
    a("s_setprio 3")
    srd(a, 28, 20, KV_SZ, KV)
    srd(a, 36, 20, YF + YF_SZ)
    lkvw, lcommon = a.uid("h_kvw"), a.uid("h_common")
    a("s_cmp_lt_u32 s6, 2"); a(f"s_cbranch_scc1 {lkvw}")
    srd(a, 32, 8, 640*640*2)
    l3, lq = a.uid("h_w3"), a.uid("h_wq")
    a("s_cmp_eq_u32 s6, 3"); a(f"s_cbranch_scc1 {l3}")
    lwo, lgo = a.uid("h_jo"), a.uid("h_jg")
    a("s_cmp_ge_u32 s2, 216"); a(f"s_cbranch_scc1 {lwo}")
    srd(a, 24, 16, 640*1728*2)
    a(f"s_mul_hi_u32 s54, s2, {(1 << 32)//27 + 1}")
    a("s_mul_i32 s55, s54, 27"); a("s_sub_u32 s55, s2, s55")
    a("s_mov_b32 s48, 3456")
    a(f"s_mul_i32 s49, s54, {80*3456}"); a("s_lshl_b32 s43, s55, 7"); a("s_add_u32 s49, s49, s43")
    a(f"s_mul_i32 s50, s55, {2*40*1024}"); a("s_mul_i32 s43, s54, 5120"); a("s_add_u32 s50, s50, s43"); a(f"s_add_u32 s50, s50, {W1F}")
    a(f"s_branch {lgo}")
    a.label(lwo)
    srd(a, 24, 14, 640*640*2)
    a("s_sub_u32 s42, s2, 216")
    a(f"s_mul_hi_u32 s54, s42, {(1 << 32)//10 + 1}")
    a("s_mul_i32 s55, s54, 10"); a("s_sub_u32 s55, s42, s55")
    a("s_mov_b32 s48, 1280")
    a(f"s_mul_i32 s49, s54, {80*1280}"); a("s_lshl_b32 s43, s55, 7"); a("s_add_u32 s49, s49, s43")
    a(f"s_mul_i32 s50, s55, {2*40*1024}"); a("s_mul_i32 s43, s54, 5120"); a("s_add_u32 s50, s50, s43"); a(f"s_add_u32 s50, s50, {WOF}")
    a.label(lgo)
    a("v_lshrrev_b32 v4, 3, v0"); a("v_mul_lo_u32 v4, v4, s48")
    a("v_and_b32 v5, 7, v0"); a("v_lshl_add_u32 v4, v5, 4, v4")
    a("v_mov_b32 v8, v4")
    a(f"s_branch {lq}")
    a.label(l3)
    if X("CODEPF", "1") == "1":
        lcp = a.uid("h_nocp")
        a("s_cmp_ge_u32 s2, 8"); a(f"s_cbranch_scc1 {lcp}")
        a("s_getpc_b64 s[54:55]")
        a.label(f"{name}_pc0")
        a(f"s_sub_u32 s54, s54, {name}_pc0-{name}"); a("s_subb_u32 s55, s55, 0")
        a("v_lshlrev_b32 v4, 7, v0")
        for i in range(CODE_PF_KB // 8):
            a(f"global_load_dword v{160+i}, v4, s[54:55]")
            a("s_add_u32 s54, s54, 8192"); a("s_addc_u32 s55, s55, 0")
        a.label(lcp)
    a("s_cmp_lg_u32 s2, 0"); a(f"s_cbranch_scc1 {lq}")
    a("s_memrealtime s[54:55]")
    a("s_waitcnt lgkmcnt(0)")
    a("s_or_b32 s54, s54, 1")
    a("v_mov_b32 v4, 0"); a("v_mov_b32 v5, s54")
    a("s_mov_b64 exec, 1")
    a("global_store_dword v4, v5, s[90:91] sc1")
    a("s_mov_b64 exec, -1")
    a.label(lq)
    WQ = 148; PQ = 76
    a("s_sub_u32 s56, s6, 2")
    a("s_lshr_b32 s59, s5, 3"); a("s_mul_i32 s59, s59, 5"); a("s_lshr_b32 s59, s59, 1")
    a("s_movk_i32 s41, 6554")
    for i in range(10):
        a(f"s_add_u32 s42, s59, {i}"); a("s_sub_u32 s43, s42, 10"); a("s_cmp_ge_u32 s42, 10"); a("s_cselect_b32 s42, s43, s42")
        a("s_mul_i32 s43, s56, 10"); a("s_add_u32 s42, s42, s43")
        a(f"s_lshl_b32 s{PQ+i}, s42, 10")
        a("s_lshl_b32 s42, s42, 6")
        a(f"v_add_u32 v4, s42, v0")
        a("v_mul_lo_u32 v5, v4, s41"); a("v_lshrrev_b32 v5, 16, v5")
        a("v_mul_u32_u24 v6, 10, v5"); a("v_sub_u32 v4, v4, v6")
        a("v_lshrrev_b32 v6, 6, v5"); a("v_mul_u32_u24 v6, 320, v6")
        a("v_and_b32 v5, 63, v5"); a("v_add_u32 v5, v5, v6")
        a("v_mul_u32_u24 v5, 1280, v5")
        a(f"v_lshl_add_u32 v{WQ+i}, v4, 4, v5")
    for p_ in range(1280): assert (p_*6554) >> 16 == p_//10
    a("s_mul_i32 s57, s4, 160")
    def wq_stage(st):
        a(f"s_add_u32 s41, s57, {st*64*1280}")
        for i in range(10):
            a(f"s_add_u32 m0, s{PQ+i}, {SB[STAGE_BUF[st]]}")
            a("s_nop 0")
            a(f"buffer_load_dwordx4 v{WQ+i}, s[32:35], s41 offen lds")
    if X("B0", "1") == "1": a("s_barrier")
    lnj = a.uid("h_noj")
    a("s_cmp_eq_u32 s6, 3"); a(f"s_cbranch_scc1 {lnj}")
    a("s_lshl_b32 s43, s48, 3")
    for i in range(10):
        a(f"s_mov_b32 m0, {J3L + i*1024}")
        a("s_nop 0")
        a("buffer_load_dwordx4 v8, s[24:27], s49 offen lds")
        a("s_add_u32 s49, s49, s43")
    a.label(lnj)
    wq_stage(0); wq_stage(1)
    lw3, lbln = a.uid("h_w3b"), a.uid("h_bln")
    a("s_cmp_eq_u32 s6, 3"); a(f"s_cbranch_scc1 {lw3}")
    tr_addr(a, 5, J3L, 8, 512)
    hstamp(a, "F", 2)
    a("s_waitcnt vmcnt(20)")
    hstamp(a, "F", 3)
    for nt in range(2):
        for kk in range(5):
            r = 16 + 4*(nt*5+kk)
            a(f"ds_read_b64_tr_b16 v[{r}:{r+1}], v5 offset:{nt*64 + kk*2048}")
            a(f"ds_read_b64_tr_b16 v[{r+2}:{r+3}], v6 offset:{nt*64 + kk*2048}")
        a("s_waitcnt lgkmcnt(0)")
        for kk in range(5):
            r = 16 + 4*(nt*5+kk)
            a(f"s_add_u32 s42, s50, {kk*1024 + nt*40960}")
            a(f"buffer_store_dwordx4 v[{r}:{r+3}], v3, s[36:39], s42 offen sc1")
    hstamp(a, "F", 4)
    a("s_waitcnt vmcnt(20)")
    hstamp(a, "F", 5)
    a("s_barrier")
    a("s_waitcnt vmcnt(10)")
    a(f"s_branch {lbln}")
    a.label(lw3)
    lp, lpd = a.uid("h_np"), a.uid("h_npd")
    spin_timeout(a, 42)
    a("v_mov_b32 v4, 0")
    a.label(lp)
    a("global_load_dword v5, v4, s[90:91] sc1")
    a("s_waitcnt vmcnt(0)")
    a("v_readfirstlane_b32 s43, v5")
    a("s_sub_u32 s42, s42, 1")
    a("s_cmp_lg_u32 s43, 0"); a(f"s_cbranch_scc1 {lpd}")
    a("s_cmp_eq_u32 s42, 0"); a(f"s_cbranch_scc1 {lpd}")
    a("s_sleep 1")
    a(f"s_branch {lp}")
    a.label(lpd)
    a(f"v_mov_b32 v4, {NONCE_L}")
    a("ds_write_b32 v4, v5")
    a("s_waitcnt lgkmcnt(0)")
    a("s_barrier")
    a.label(lbln)
    hstamp(a, "F", 6)
    a(f"v_mov_b32 v4, {NONCE_L}")
    a("ds_read_b32 v5, v4")
    a("s_waitcnt lgkmcnt(0)")
    a(f"v_readfirstlane_b32 s{NONCE}, v5")
    a("s_barrier")
    wq_stage(2); wq_stage(3)
    a("s_waitcnt vmcnt(10)")
    a("s_barrier")
    wq_stage(4)
    lnf = a.uid("h_nf")
    a("s_waitcnt vmcnt(10)"); a("s_barrier")
    a("s_cmp_eq_u32 s6, 3"); a(f"s_cbranch_scc1 {lnf}")
    a("s_waitcnt vmcnt(0)"); a("s_barrier")
    a(f"s_branch {lcommon}")
    a.label(lnf)
    a("s_lshl_b32 s42, s2, 2"); a(f"s_add_u32 s42, s42, {GFL}")
    a("v_mov_b32 v4, 0"); a(f"v_mov_b32 v5, s{NONCE}")
    a("s_mov_b64 exec, 1")
    a("buffer_store_dword v5, v4, s[36:39], s42 offen sc1")
    a("s_mov_b64 exec, -1")
    a("s_waitcnt vmcnt(1)"); a("s_barrier")
    hstamp(a, "G", 2)
    lw, lwp = a.uid("h_gw"), a.uid("h_gp")
    spin_timeout(a, 42)
    a(f"s_mov_b32 s43, {GFL}")
    a("s_barrier")
    hstamp(a, "G", 3)
    a.label(lwp)
    a("buffer_load_dwordx4 v[4:7], v3, s[36:39], s43 offen sc1")
    a("s_waitcnt vmcnt(0)")
    for r in range(4, 8): a(f"v_xor_b32 v{r}, s{NONCE}, v{r}")
    a("v_or_b32 v4, v4, v5"); a("v_or_b32 v6, v6, v7"); a("v_or_b32 v4, v4, v6")
    a("v_cmp_ne_u32 vcc, 0, v4")
    a("s_sub_u32 s42, s42, 1")
    a("s_nop 3")
    a(f"s_cbranch_vccz {lw}")
    a("s_cmp_eq_u32 s42, 0"); a(f"s_cbranch_scc1 {lw}")
    a(f"s_sleep {X('GSLEEP', '4')}")
    a(f"s_branch {lwp}")
    a.label(lw)
    hstamp(a, "G", 4)
    a("s_barrier")
    hstamp(a, "G", 5)
    ldone = a.uid("h_done")
    a(f"s_branch {ldone}")
    a.label(lkvw)
    lv, lkv = a.uid("h_isv"), a.uid("h_kv")
    a("s_and_b32 s7, s4, 1")
    a("s_cmp_eq_u32 s7, 1"); a(f"s_cbranch_scc1 {lv}")
    srd(a, 44, 10, 25600)
    a(f"s_branch {lkv}")
    a.label(lv)
    srd(a, 44, 12, 25600)
    a.label(lkv)
    if X("B0", "1") == "1": a("s_barrier")
    a("s_lshr_b32 s42, s2, 3"); a("s_and_b32 s42, s42, 31"); a("s_mul_i32 s42, s42, 43"); a("s_lshr_b32 s42, s42, 7")
    a("s_lshl_b32 s40, s6, 10")
    for j in range(12):
        a(f"s_add_u32 s43, s42, {j}"); a("s_sub_u32 s41, s43, 12"); a("s_cmp_ge_u32 s43, 12"); a("s_cselect_b32 s43, s41, s43")
        a("s_lshl_b32 s43, s43, 11"); a("s_add_u32 s41, s43, s40")
        a(f"s_add_u32 m0, s41, {WKVL}")
        a("s_nop 0")
        a("buffer_load_dwordx4 v3, s[44:47], s41 offen lds")
    l24 = a.uid("h_no24")
    a("s_cmp_lg_u32 s6, 0"); a(f"s_cbranch_scc1 {l24}")
    a(f"s_mov_b32 m0, {WKVL + 24576}")
    a("s_movk_i32 s41, 24576")
    a("buffer_load_dwordx4 v3, s[44:47], s41 offen lds")
    a.label(l24)
    XF, WF, D = 4, 84, 164
    a("s_lshr_b32 s48, s4, 1")
    a("v_lshrrev_b32 v4, 4, v0")
    a("v_and_b32 v5, 15, v0")
    a("s_and_b32 s49, s48, 1"); a("s_lshl_b32 s50, s49, 4")
    a("v_add_u32 v6, s50, v5")
    a(f"v_mul_u32_u24 v1, {XC}, v4"); a("v_lshl_add_u32 v1, v6, 4, v1")
    a("s_lshr_b32 s51, s48, 1"); a(f"s_mul_i32 s51, s51, {XT}")
    a("v_add_u32 v1, s51, v1")
    a("v_lshrrev_b32 v2, 2, v5"); a("v_lshl_add_u32 v2, v4, 3, v2"); a("v_mul_u32_u24 v2, 40, v2")
    a("v_and_b32 v7, 3, v5"); a("v_lshl_add_u32 v2, v7, 3, v2")
    a("s_lshl_b32 s51, s6, 5"); a(f"s_add_u32 s51, s51, {WKVL}")
    a("v_add_u32 v2, s51, v2")
    a("s_lshl_b32 s52, s5, 1"); a("s_lshr_b32 s53, s48, 1"); a("s_add_u32 s52, s52, s53")
    a("s_lshl_b32 s52, s52, 12"); a(f"s_add_u32 s52, s52, {KV}")
    a("s_lshl_b32 s53, s5, 2"); a("s_add_u32 s53, s53, s48")
    a("s_waitcnt vmcnt(0)")
    rstamp(a, 2)
    a("s_barrier")
    rstamp(a, 3)
    lvm, lmd = a.uid("h_vm"), a.uid("h_md")
    for ks in range(20):
        a(f"ds_read_b128 v[{XF+4*ks}:{XF+4*ks+3}], v1 offset:{ks*2*XKS}")
        a(f"ds_read_b64_tr_b16 v[{WF+4*ks}:{WF+4*ks+1}], v2 offset:{ks*1280}")
        a(f"ds_read_b64_tr_b16 v[{WF+4*ks+2}:{WF+4*ks+3}], v2 offset:{ks*1280+160}")
        if ks % 4 == 3: a("s_waitcnt lgkmcnt(3)")
    a(f"v_mov_b32 v1, {NONCE_L}")
    a("ds_read_b32 v2, v1")
    a("s_waitcnt lgkmcnt(0)")
    a("s_barrier")
    a(f"v_readfirstlane_b32 s{NONCE}, v2")
    def kvmm(isv):
        for k in range(20):
            c = "0" if k == 0 else f"v[{D}:{D+3}]"
            x, w = f"v[{XF+4*k}:{XF+4*k+3}]", f"v[{WF+4*k}:{WF+4*k+3}]"
            a(f"v_mfma_f32_16x16x32_bf16 v[{D}:{D+3}], {x if isv else w}, {w if isv else x}, {c}")
    a("s_cmp_eq_u32 s7, 1"); a(f"s_cbranch_scc1 {lvm}")
    kvmm(False)
    a(f"s_branch {lmd}")
    a.label(lvm)
    kvmm(True)
    a.label(lmd)
    a("v_lshrrev_b32 v88, 4, v0")
    a("v_and_b32 v89, 15, v0")
    a("v_add_u32 v90, s50, v89")
    a("v_and_b32 v93, 1, v88")
    a("v_lshrrev_b32 v94, 1, v88")
    a("s_nop 7")
    for r in range(4): a(f"v_mul_f32 v{D+r}, {f2u(LN2):#x}, v{D+r}")
    a(f"v_cvt_pk_bf16_f32 v96, v{D}, v{D+1}")
    a(f"v_cvt_pk_bf16_f32 v97, v{D+2}, v{D+3}")
    l0, l1, l2, l3v, lst = (a.uid("h_ep") for _ in range(5))
    a("s_lshl_b32 s54, s7, 1"); a("s_add_u32 s54, s54, s6")
    a("s_cmp_eq_u32 s54, 0"); a(f"s_cbranch_scc1 {l0}")
    a("s_cmp_eq_u32 s54, 1"); a(f"s_cbranch_scc1 {l1}")
    a("s_cmp_eq_u32 s54, 2"); a(f"s_cbranch_scc1 {l2}")
    a(f"s_branch {l3v}")
    def knorm(slot):
        a(f"v_mul_f32 v98, v{D}, v{D}")
        for r in range(1, 4): a(f"v_fmac_f32 v98, v{D+r}, v{D+r}")
        if slot == 1:
            a("v_cmp_eq_u32 vcc, 0, v88")
            a("s_nop 1")
            a("v_cndmask_b32 v98, 0, v98, vcc")
        for sw in ("32", "16"):
            a("v_mov_b32 v99, v98"); a("s_nop 1")
            a(f"v_permlane{sw}_swap_b32 v98, v99"); a("s_nop 1")
            a("v_add_f32 v98, v98, v99")
        for sh in (8, 4, 2, 1):
            a("s_nop 1")
            a(f"v_max_f32_dpp v98, v98, v98 row_ror:{sh} row_mask:0xf bank_mask:0xf")
        a("s_lshl_b32 s55, s53, 3"); a(f"s_add_u32 s55, s55, {KMX + 4*slot}")
        a("v_mov_b32 v99, 0")
        a("s_mov_b64 exec, 1")
        a("buffer_store_dword v98, v99, s[36:39], s55 offen sc1")
        a("s_mov_b64 exec, -1")
    a.label(l0)
    a("v_lshl_add_u32 v95, v93, 5, v90"); a("v_lshlrev_b32 v95, 4, v95"); a("v_lshl_add_u32 v95, v94, 3, v95")
    a("buffer_store_dwordx2 v[96:97], v95, s[36:39], s52 offen sc1")
    knorm(0)
    a(f"s_branch {lst}")
    a.label(l1)
    a("v_cmp_eq_u32 vcc, 1, v88")
    a("v_mov_b32 v98, 0x3f803f80"); a("v_mov_b32 v99, 0x00003f80")
    a("v_cndmask_b32 v96, v96, v98, vcc"); a("v_cndmask_b32 v97, v97, v99, vcc")
    a("v_lshl_add_u32 v95, v88, 5, v90"); a("v_lshlrev_b32 v95, 3, v95"); a("v_add_u32 v95, 1024, v95")
    a("v_cmp_gt_u32 vcc, 2, v88")
    a("s_and_saveexec_b64 s[54:55], vcc")
    a("buffer_store_dwordx2 v[96:97], v95, s[36:39], s52 offen sc1")
    a("s_mov_b64 exec, s[54:55]")
    knorm(1)
    a(f"s_branch {lst}")
    a.label(l3v)
    a("v_cmp_gt_u32 vcc, 4, v89"); a("s_nop 1")
    a("v_cndmask_b32 v96, 0, v96, vcc"); a("v_cndmask_b32 v97, 0, v97, vcc")
    a("v_cmp_eq_u32 vcc, 4, v89"); a("v_mov_b32 v98, 0x3f803f80"); a("s_nop 0")
    a("v_cndmask_b32 v96, v96, v98, vcc"); a("v_cndmask_b32 v97, v97, v98, vcc")
    a("v_add_u32 v89, 16, v89")
    a.label(l2)
    a("v_lshl_add_u32 v95, v93, 5, v89"); a("v_lshlrev_b32 v95, 4, v95"); a("v_lshl_add_u32 v95, v94, 3, v95")
    a("s_lshl_b32 s55, s49, 10"); a("s_add_u32 s55, s55, s52"); a("s_add_u32 s55, s55, 2048")
    a("buffer_store_dwordx2 v[96:97], v95, s[36:39], s55 offen sc1")
    a.label(lst)
    a("s_barrier")
    rstamp(a, 4)
    a("s_waitcnt vmcnt(0)")
    rstamp(a, 5)
    a("s_barrier")
    a("s_barrier")
    a.label(lcommon)
    a("s_barrier")
    a("s_barrier")
    rstamp(a, 6)
    a.label(ldone)
    a("s_waitcnt vmcnt(0)")
    lo2, lg2 = a.uid("h_j2o"), a.uid("h_j2g")
    a("s_sub_u32 s42, s2, 220"); a("s_cmp_ge_u32 s2, 220"); a("s_cselect_b32 s42, s42, s2")
    a("s_cmp_ge_u32 s42, 180"); a(f"s_cbranch_scc1 {lo2}")
    srd(a, 24, 18, 1728*640*2)
    a(f"s_mul_hi_u32 s54, s42, {(1 << 32)//10 + 1}")
    a("s_mul_i32 s55, s54, 10"); a("s_sub_u32 s55, s42, s55")
    a(f"s_mul_i32 s92, s54, {96*1280}"); a("s_lshl_b32 s43, s55, 7"); a("s_add_u32 s92, s92, s43")
    a(f"s_mul_i32 s93, s55, {2*W2K*1024}"); a("s_mul_i32 s43, s54, 6144"); a("s_add_u32 s93, s93, s43"); a(f"s_add_u32 s93, s93, {W2F}")
    a(f"s_mov_b32 s94, {W2K*1024}"); a("s_mov_b32 s95, 4"); a("s_movk_i32 s99, 1024")
    a(f"s_branch {lg2}")
    a.label(lo2)
    srd(a, 24, 14, 640*640*2)
    a("s_sub_u32 s42, s42, 180")
    a(f"s_mul_hi_u32 s54, s42, {(1 << 32)//10 + 1}")
    a("s_mul_i32 s55, s54, 10"); a("s_sub_u32 s55, s42, s55")
    a("s_mul_i32 s54, s54, 5"); a("s_add_u32 s54, s54, 20"); a("s_min_u32 s54, s54, 34")
    a(f"s_mul_i32 s92, s54, {16*1280}"); a("s_lshl_b32 s43, s55, 7"); a("s_add_u32 s92, s92, s43")
    a(f"s_mul_i32 s93, s55, {2*40*1024}"); a("s_lshl_b32 s43, s54, 10"); a("s_add_u32 s93, s93, s43"); a(f"s_add_u32 s93, s93, {WOF}")
    a("s_mov_b32 s94, 40960"); a("s_mov_b32 s95, 8"); a("s_movk_i32 s99, 512")
    a.label(lg2)
    a("s_setprio 0")

def gen_main(name="main_kernel", ffn=True, prio_attn=None, prio_ffn=None):
    a = Asm()
    a(f".globl {name}\n.p2align 8\n.type {name},@function")
    a.label(name)
    a("s_cmp_ge_u32 s2, 256")
    a(f"s_cbranch_scc1 {name}_end")
    stamp_rt(a, 0); stamp(a, 1)
    dbg_mark(a, 0, 0, first=True, vt=160, nl=2, sreg=78)
    a("s_load_dwordx2 s[22:23], s[0:1], 0")
    a("s_load_dwordx8 s[8:15], s[0:1], 8")
    a("s_load_dwordx4 s[16:19], s[0:1], 48")
    a("s_load_dwordx2 s[90:91], s[0:1], 72")
    a("s_load_dwordx2 s[20:21], s[0:1], 80")
    a("v_lshrrev_b32 v1, 6, v0")
    a("v_and_b32 v0, 63, v0")
    a("v_readfirstlane_b32 s3, v1")
    a("v_lshlrev_b32 v3, 4, v0")
    a("s_lshr_b32 s4, s2, 3"); a("s_and_b32 s4, s4, 7")
    a("s_lshr_b32 s5, s2, 6"); a("s_lshl_b32 s5, s5, 3"); a("s_and_b32 s6, s2, 7"); a("s_add_u32 s5, s5, s6")
    a("s_waitcnt lgkmcnt(0)")
    lffn = f"{name}_ffn"
    a("s_cmp_ge_u32 s3, 8")
    a(f"s_cbranch_scc1 {lffn}")
    errs = gen_attn(a, name, prio_attn)
    a.label(lffn)
    a("s_sub_u32 s6, s3, 8")
    gen_ffn_head(a, name)
    import kfffn
    errs += kfffn.gen_ffn_main(a, name, prio_ffn, ffn)
    a.label(f"{name}_end")
    a("s_endpgm")
    errs += check_hazards(a.lines, name)
    return a.text(), kd(name, 168, 102), errs

def kernels(which):
    k2.PROF = bool(os.environ.get("PROF"))
    t, d, e = gen_main("main_kernel", ffn=(which != "attn"), prio_attn=X("PRIOA"), prio_ffn=X("PRIOF"))
    return [("main_kernel", t, d, e, 256, 768, LDS_MAIN)]
```

```python
from asmlib import *
from layout import *
from k0 import srd, kd
import os
import k2
from k2 import X, ST, mfma32, mfma8, attn_tile, Q1, Q2, KB, VB, P, S, O, E, THR, stamp, stamp_rt, stamp_store

XT = 42240; XC = 528; XKS = 1056
KVL = 84480
WKVL = KVL
SB = (KVL + 25600, KVL + 46080, KVL)
STAGE_BUF = (0, 1, 0, 2, 1)
J3L = KVL + 66560
QXL = KVL
NONCE_L = 163824
LDS_MAIN = 163840
CODE_PF_KB = 40
NONCE = 98

HS = X("HSTAMP")
def hstamp(a, who, i):
    if HS == who: stamp(a, i)
def nstamp(a, i):
    if not HS: stamp(a, i)
def rstamp(a, i):
    if HS == "R": stamp_rt(a, i)
def spin_timeout(a, sreg): a(f"s_mov_b32 s{sreg}, 0x8000")

def j3b_params(a):
    lo2, lg2 = a.uid("h_j2o"), a.uid("h_j2g")
    a("s_sub_u32 s83, s2, 220"); a("s_cmp_ge_u32 s2, 220"); a("s_cselect_b32 s83, s83, s2")
    a("s_cmp_ge_u32 s83, 180"); a(f"s_cbranch_scc1 {lo2}")
    a(f"s_mul_hi_u32 s80, s83, {(1 << 32)//10 + 1}")
    a("s_mul_i32 s81, s80, 10"); a("s_sub_u32 s81, s83, s81")
    a(f"s_mul_i32 s92, s80, {96*1280}"); a("s_lshl_b32 s82, s81, 7"); a("s_add_u32 s92, s92, s82")
    a(f"s_mul_i32 s93, s81, {2*W2K*1024}"); a("s_mul_i32 s82, s80, 6144"); a("s_add_u32 s93, s93, s82"); a(f"s_add_u32 s93, s93, {W2F}")
    a(f"s_mov_b32 s94, {W2K*1024}"); a("s_mov_b32 s95, 4"); a("s_movk_i32 s99, 1024")
    a(f"s_branch {lg2}")
    a.label(lo2)
    a("s_sub_u32 s83, s83, 180")
    a(f"s_mul_hi_u32 s80, s83, {(1 << 32)//10 + 1}")
    a("s_mul_i32 s81, s80, 10"); a("s_sub_u32 s81, s83, s81")
    a("s_mul_i32 s80, s80, 5"); a("s_add_u32 s80, s80, 20"); a("s_min_u32 s80, s80, 34")
    a(f"s_mul_i32 s92, s80, {16*1280}"); a("s_lshl_b32 s82, s81, 7"); a("s_add_u32 s92, s92, s82")
    a(f"s_mul_i32 s93, s81, {2*40*1024}"); a("s_lshl_b32 s82, s80, 10"); a("s_add_u32 s93, s93, s82"); a(f"s_add_u32 s93, s93, {WOF}")
    a("s_mov_b32 s94, 40960"); a("s_mov_b32 s95, 8"); a("s_movk_i32 s99, 512")
    a.label(lg2)

def gen_attn(a, name, prio):
    if X("PRIOX"): a("s_setprio 3")
    srd(a, 24, 22, X_SZ)
    srd(a, 28, 20, KV_SZ, KV)
    srd(a, 36, 20, YF + YF_SZ)
    srd(a, 32, 8, 640*640*2)
    a("s_lshr_b32 s6, s3, 1")
    a("s_lshl_b32 s7, s4, 2")
    a("s_add_u32 s6, s6, s7")
    a("s_and_b32 s7, s3, 1")
    XR = (88, 108)
    a("v_lshrrev_b32 v10, 4, v0")
    a("v_and_b32 v11, 15, v0")
    a("s_and_b32 s11, s4, 6"); a("s_add_u32 s11, s11, s3"); a("s_and_b32 s11, s11, 7")
    a("s_lshl_b32 s8, s11, 3")
    a("v_add_u32 v12, s8, v10")
    a("s_lshl_b32 s9, s5, 6")
    a("v_add_u32 v13, s9, v12")
    a("v_mul_u32_u24 v13, 1280, v13")
    a("v_lshl_add_u32 v13, v11, 4, v13")
    for ps in range(2):
        a(f"s_mov_b32 s10, {ps*4*1280}")
        for j in range(5):
            a(f"buffer_load_dwordx4 v[{XR[ps]+4*j}:{XR[ps]+4*j+3}], v13, s[24:27], s10 offen offset:{256*j}")
    if X("TOUCH", "1") == "1":
        lt, ltb = a.uid("a_notouch"), a.uid("a_touchb")
        a("s_cmp_lt_u32 s3, 4"); a(f"s_cbranch_scc1 {lt}")
        a("s_cmp_ge_u32 s3, 6"); a(f"s_cbranch_scc1 {ltb}")
        a("s_lshr_b32 s10, s5, 3"); a("s_mul_i32 s10, s10, 96")
        a("s_sub_u32 s42, s3, 4"); a("s_lshl_b32 s42, s42, 6"); a("s_add_u32 s10, s10, s42")
        a("v_add_u32 v150, s10, v0")
        a("v_cmp_gt_u32 vcc, 192, v150")
        a("v_add_u32 v151, 128, v150"); a("v_add_u32 v152, 256, v150")
        a("v_cndmask_b32 v151, v152, v151, vcc")
        a("v_mul_u32_u24 v151, 1280, v151")
        a("s_mul_i32 s10, s4, 160")
        a("s_cmp_eq_u32 s3, 5"); a("s_cselect_b32 exec_hi, 0, -1")
        a("buffer_load_dword v153, v151, s[32:35], s10 offen")
        a("buffer_load_dword v154, v151, s[32:35], s10 offen offset:128")
        a("s_mov_b64 exec, -1")
        a(f"s_branch {lt}")
        a.label(ltb)
        j3b_params(a)
        lt2o, lt2g = a.uid("a_t2o"), a.uid("a_t2g")
        a("s_cmp_eq_u32 s99, 512"); a(f"s_cbranch_scc1 {lt2o}")
        srd(a, 32, 18, 1728*640*2)
        a(f"s_branch {lt2g}")
        a.label(lt2o)
        srd(a, 32, 14, 640*640*2)
        a.label(lt2g)
        a("s_sub_u32 s42, s3, 6"); a("s_mul_i32 s42, s42, 81920"); a("s_add_u32 s42, s42, s92")
        a("v_mul_u32_u24 v151, 1280, v0")
        a("s_cmp_eq_u32 s3, 7"); a("s_cselect_b32 exec_hi, 0, -1")
        a("buffer_load_dword v153, v151, s[32:35], s42 offen")
        a("s_mov_b64 exec, -1")
        a.label(lt)
    if X("PRIOX"): a("s_setprio 0")
    if X("B0", "1") == "1": a("s_barrier")
    a("s_lshr_b32 s10, s11, 2"); a(f"s_mul_i32 s10, s10, {XT}")
    a("v_and_b32 v14, 31, v12")
    a("v_lshlrev_b32 v14, 4, v14")
    a(f"v_mul_u32_u24 v15, {XC}, v11")
    a("v_add3_u32 v14, v14, v15, s10")
    a(f"v_add_u32 v1, {KVL}, v3")
    a("v_lshlrev_b32 v2, 3, v0")
    a(f"v_add_u32 v2, {KVL}, v2")
    a("v_mov_b32 v16, 0x3f803f80")
    for ps in range(2):
        R = XR[ps]
        a("v_mov_b32 v17, 0"); a("v_mov_b32 v18, 0")
        if ps == 0: hstamp(a, "A", 2)
        base = 5 if ps == 0 else 0
        if X("TOUCH", "1") == "1":
            l0, l1, l2 = a.uid("a_wx"), a.uid("a_wx"), a.uid("a_wx")
            a("s_cmp_lt_u32 s3, 4"); a(f"s_cbranch_scc1 {l0}")
            a("s_cmp_lt_u32 s3, 6"); a(f"s_cbranch_scc1 {l1}")
            a(f"s_waitcnt vmcnt({base + 1})"); a(f"s_branch {l2}")
            a.label(l1); a(f"s_waitcnt vmcnt({base + 2})"); a(f"s_branch {l2}")
            a.label(l0); a(f"s_waitcnt vmcnt({base})")
            a.label(l2)
        else:
            a(f"s_waitcnt vmcnt({base})")
        hstamp(a, "A", 3 + ps)
        if ps == 1:
            npf = 0
            if X("WQPF", "0") == "1":
                lnp = a.uid("a_nopf")
                a("s_cmp_ge_u32 s3, 6"); a(f"s_cbranch_scc1 {lnp}")
                a("s_lshl_b32 s10, s3, 6"); a("s_add_u32 s10, s10, 128")
                a("s_add_u32 s11, s10, 128"); a("s_cmp_ge_u32 s3, 3"); a("s_cselect_b32 s10, s11, s10")
                a("v_add_u32 v150, s10, v0"); a("v_mul_u32_u24 v150, 1280, v150")
                a("s_mul_i32 s10, s4, 160")
                a("buffer_load_dword v151, v150, s[32:35], s10 offen")
                a("buffer_load_dword v152, v150, s[32:35], s10 offen offset:128")
                a.label(lnp)
                npf = 0
        for i in range(20):
            a(f"v_dot2_f32_bf16 v17, v{R+i}, v16, v17")
            a(f"v_dot2_f32_bf16 v18, v{R+i}, v{R+i}, v18")
        for sh in (8, 4, 2, 1):
            a("s_nop 1")
            a(f"v_add_f32_dpp v17, v17, v17 row_ror:{sh} row_mask:0xf bank_mask:0xf")
            a(f"v_add_f32_dpp v18, v18, v18 row_ror:{sh} row_mask:0xf bank_mask:0xf")
        a("s_nop 0")
        a(f"v_mul_f32 v17, {f2u(1/640.):#x}, v17")
        a(f"v_mul_f32 v18, {f2u(1/640.):#x}, v18")
        a("v_fma_f32 v18, -v17, v17, v18")
        a("v_max_f32 v18, 0, v18")
        a(f"v_add_f32 v18, {f2u(1e-5):#x}, v18")
        a("v_rsq_f32 v18, v18")
        a("s_nop 0")
        a(f"v_mul_f32 v18, {f2u(LOG2E):#x}, v18")
        a("v_mul_f32 v19, v17, v18")
        for j in range(5):
            for i in range(4):
                r = R + 4*j + i
                t = 20 + 2*(i & 1)
                a(f"v_lshlrev_b32 v{t}, 16, v{r}")
                a(f"v_and_b32 v{t+1}, 0xffff0000, v{r}")
                a(f"v_fma_f32 v{t}, v{t}, v18, -v19")
                a(f"v_fma_f32 v{t+1}, v{t+1}, v18, -v19")
                a(f"v_cvt_pk_bf16_f32 v{r}, v{t}, v{t+1}")
            a(f"ds_write_b128 v14, v[{R+4*j}:{R+4*j+3}] offset:{j*16*XC + ps*64}")
    a("s_waitcnt lgkmcnt(0)")
    hstamp(a, "A", 5)
    a("s_barrier")
    hstamp(a, "A", 6)
    nstamp(a, 2)
    dbg_mark(a, 0, 1, vt=160, nl=2, sreg=78)
    if prio is not None: a(f"s_setprio {prio}")
    a("v_lshrrev_b32 v16, 5, v0")
    a("v_and_b32 v17, 31, v0")
    a(f"v_mul_u32_u24 v10, {XC}, v16")
    a("v_lshl_add_u32 v10, v17, 4, v10")
    a(f"s_mul_i32 s10, s7, {20*XKS}")
    a("v_add_u32 v10, s10, v10")
    a(f"v_add_u32 v11, {XT}, v10")
    a("v_and_b32 v17, 15, v0"); a("v_lshrrev_b32 v18, 2, v17")
    a("v_lshl_add_u32 v18, v16, 3, v18")
    a("s_lshl_b32 s10, s7, 6"); a("v_add_u32 v18, s10, v18")
    a("v_mul_u32_u24 v18, 160, v18")
    a("v_bfe_u32 v19, v0, 4, 1"); a("v_lshl_add_u32 v18, v19, 5, v18")
    a("v_and_b32 v19, 3, v17"); a("v_lshl_add_u32 v18, v19, 3, v18")
    a("s_lshr_b32 s10, s3, 1"); a("s_mul_i32 s10, s10, 40")
    a("v_add_u32 v18, s10, v18")
    for b in range(3): a(f"v_add_u32 v{12+b}, {SB[b]}, v18")
    D0, D1 = S
    AQ = 88; BQ = (104, 136)
    def bread(st):
        b = BQ[st & 1]
        for kk in range(4):
            ks = 4*st + kk
            a(f"ds_read_b128 v[{b+8*kk}:{b+8*kk+3}], v10 offset:{ks*XKS}")
            a(f"ds_read_b128 v[{b+8*kk+4}:{b+8*kk+7}], v11 offset:{ks*XKS}")
    bread(0)
    for st in range(5):
        if st > 0: a("s_barrier")
        if st > 0: hstamp(a, "Q", st + 1)
        vb = 12 + STAGE_BUF[st]
        for kk in range(4):
            a(f"ds_read_b64_tr_b16 v[{AQ+4*kk}:{AQ+4*kk+1}], v{vb} offset:{kk*16*160}")
            a(f"ds_read_b64_tr_b16 v[{AQ+4*kk+2}:{AQ+4*kk+3}], v{vb} offset:{kk*16*160 + 640}")
        b = BQ[st & 1]
        for kk in range(4):
            ks = 4*st + kk
            nxt = 8 if (st < 4 and kk >= 1) else 0
            a(f"s_waitcnt lgkmcnt({min(15, 2*(3 - kk) + nxt)})")
            a(mfma32(D0, AQ + 4*kk, b + 8*kk, None if ks == 0 else D0))
            a(mfma32(D1, AQ + 4*kk, b + 8*kk + 4, None if ks == 0 else D1))
            if kk == 0 and st < 4: bread(st + 1)
        if st < 4: a("s_waitcnt lgkmcnt(0)")
    a("s_mul_i32 s44, s3, 3072")
    a(f"s_add_u32 s44, s44, {QXL}")
    a("v_add_u32 v12, s44, v3")
    a("s_xor_b32 s45, s3, 1"); a("s_mul_i32 s45, s45, 3072"); a(f"s_add_u32 s45, s45, {QXL}")
    a("v_add_u32 v13, s45, v3")
    lp1, lpd = a.uid("qx1"), a.uid("qxd")
    a("s_nop 7")
    a("s_cmp_eq_u32 s7, 1"); a(f"s_cbranch_scc1 {lp1}")
    for i in range(3): a(f"ds_write_b128 v12, v[{D1+4*i}:{D1+4*i+3}] offset:{i*1024}")
    a(f"s_branch {lpd}")
    a.label(lp1)
    for i in range(3): a(f"ds_write_b128 v12, v[{D0+4*i}:{D0+4*i+3}] offset:{i*1024}")
    a("s_waitcnt lgkmcnt(0)")
    for r in range(12): a(f"v_mov_b32 v{D0+r}, v{D1+r}")
    a.label(lpd)
    a("s_waitcnt lgkmcnt(0)")
    a("s_barrier")
    hstamp(a, "Q", 6)
    dbg_mark(a, 0, 2, vt=160, nl=2, sreg=78)
    for i in range(3): a(f"ds_read_b128 v[{D1+4*i}:{D1+4*i+3}], v13 offset:{i*1024}")
    a("v_cmp_gt_u32 vcc, 32, v0")
    a("s_waitcnt lgkmcnt(0)")
    D = D0
    for r in range(12): a(f"v_add_f32 v{D+r}, v{D+r}, v{D1+r}")
    for r in range(8, 12): a(f"v_cndmask_b32 v{D+r}, 0, v{D+r}, vcc")
    a(f"s_mov_b32 s45, {f2u(QSCALE):#x}")
    for r in range(12): a(f"v_mul_f32 v{D+r}, s45, v{D+r}")
    a(f"v_mul_f32 v136, v{D}, v{D}")
    for r in range(1, 12): a(f"v_fmac_f32 v136, v{D+r}, v{D+r}")
    for r in range(4): a(f"v_cvt_pk_bf16_f32 v{Q1+r}, v{D+2*r}, v{D+2*r+1}")
    for r in range(2): a(f"v_cvt_pk_bf16_f32 v{Q2+r}, v{D+8+2*r}, v{D+8+2*r+1}")
    a("v_mov_b32 v137, v136"); a("s_nop 1")
    a("v_permlane32_swap_b32 v136, v137"); a("s_nop 1")
    a("v_add_f32 v136, v136, v137")
    for r in range(16): a(f"v_mov_b32 v{O+r}, 0")
    for r in range(8): a(f"v_mov_b32 v{P+r}, 0")
    for r in range(8): a(f"v_mov_b32 v{E+r}, 0")
    for r in range(4): a(f"v_mov_b32 v{VB[1][1]+r}, 0")
    nstamp(a, 3)
    lw, lwp = a.uid("a_gw"), a.uid("a_gp")
    a("s_cmp_lg_u32 s3, 0"); a(f"s_cbranch_scc1 {lw}")
    a(f"v_mov_b32 v140, {NONCE_L}")
    a("ds_read_b32 v141, v140")
    spin_timeout(a, 42)
    a(f"s_mov_b32 s43, {GFL}")
    a("s_waitcnt lgkmcnt(0)")
    a("v_readfirstlane_b32 s44, v141")
    a.label(lwp)
    a("buffer_load_dwordx4 v[140:143], v3, s[36:39], s43 offen sc1")
    a("buffer_load_dwordx4 v[144:147], v3, s[36:39], s43 offen offset:1024 sc1")
    a("s_waitcnt vmcnt(0)")
    for r in range(140, 148): a(f"v_xor_b32 v{r}, s44, v{r}")
    for r in range(141, 148): a(f"v_or_b32 v140, v140, v{r}")
    a("v_cmp_ne_u32 vcc, 0, v140")
    a("s_sub_u32 s42, s42, 1")
    a("s_nop 3")
    a(f"s_cbranch_vccz {lw}")
    a("s_cmp_eq_u32 s42, 0"); a(f"s_cbranch_scc1 {lw}")
    a(f"s_sleep {X('GSLEEP', '4')}")
    a(f"s_branch {lwp}")
    a.label(lw)
    a("s_barrier")
    dbg_mark(a, 0, 3, vt=160, nl=2, sreg=78)
    a(f"s_mov_b32 s43, {KMX}")
    a(f"buffer_load_dwordx4 v[140:143], v3, s[36:39], s43 offen sc1")
    a("s_waitcnt vmcnt(0)")
    a("v_max_f32 v140, v140, v142")
    a("v_max_f32 v141, v141, v143")
    for sh in (8, 4, 2, 1):
        a("s_nop 1")
        a(f"v_max_f32_dpp v140, v140, v140 row_ror:{sh} row_mask:0xf bank_mask:0xf")
        a(f"v_max_f32_dpp v141, v141, v141 row_ror:{sh} row_mask:0xf bank_mask:0xf")
    for sw in ("16", "32"):
        a("v_mov_b32 v142, v140"); a("v_mov_b32 v143, v141"); a("s_nop 1")
        a(f"v_permlane{sw}_swap_b32 v140, v142"); a(f"v_permlane{sw}_swap_b32 v141, v143"); a("s_nop 1")
        a("v_max_f32 v140, v140, v142"); a("v_max_f32 v141, v141, v143")
    a("v_add_f32 v140, v140, v141")
    a("v_mul_f32 v136, v136, v140")
    a(f"s_mov_b32 s45, {f2u(THR*THR):#x}")
    a("v_cmp_nle_f32 vcc, v136, s45")
    lfast = a.uid("attn_fast")
    a("s_nop 4")
    a(f"s_cbranch_vccz {lfast}")
    lm = a.uid("attn_maxloop")
    M = 136; TK = 140
    a(f"v_mov_b32 v{M}, 0xff800000")
    a("s_mov_b32 s46, 0")
    a(f"v_lshlrev_b32 v{M+1}, 3, v0")
    a.label(lm)
    a(f"buffer_load_dwordx4 v[{TK}:{TK+3}], v3, s[28:31], s46 offen sc1")
    a(f"buffer_load_dwordx2 v[{TK+4}:{TK+5}], v{M+1}, s[28:31], s46 offen offset:1024 sc1")
    a("s_waitcnt vmcnt(0)")
    a(mfma32(S[1], TK, Q1, None))
    a(mfma8(S[1], TK+4, Q2, S[1]))
    a("s_add_u32 s46, s46, 4096")
    a("s_nop 15")
    for r in range(0, 16, 2): a(f"v_max3_f32 v{M}, v{M}, v{S[1]+r}, v{S[1]+r+1}")
    a(f"s_cmp_lt_u32 s46, {64*4096}")
    a(f"s_cbranch_scc1 {lm}")
    a(f"v_mov_b32 v{M+2}, v{M}"); a("s_nop 1")
    a(f"v_permlane32_swap_b32 v{M}, v{M+2}"); a("s_nop 1")
    a(f"v_max_f32 v{M}, v{M}, v{M+2}")
    a(f"v_xor_b32 v{M}, 0x80000000, v{M}")
    a(f"v_and_b32 v{M+1}, 0xffff0000, v{M}")
    a(f"v_sub_f32 v{M+2}, v{M}, v{M+1}")
    a(f"v_and_b32 v{M+3}, 0xffff0000, v{M+2}")
    a(f"v_sub_f32 v{M+2}, v{M+2}, v{M+3}")
    a(f"v_lshrrev_b32 v{M+2}, 16, v{M+2}")
    a(f"v_lshrrev_b32 v{M+1}, 16, v{M+1}")
    a(f"v_or_b32 v{M+1}, v{M+1}, v{M+3}")
    a("v_cmp_lt_u32 vcc, 31, v0")
    a("s_nop 1")
    a(f"v_cndmask_b32 v{Q2}, v{Q2}, v{M+1}, vcc")
    a(f"v_cndmask_b32 v{Q2+1}, v{Q2+1}, v{M+2}, vcc")
    a.label(lfast)
    a("s_barrier")
    a(f"ds_read_b128 v[{KB[0][0]}:{KB[0][0]+3}], v1 offset:0")
    a(f"ds_read_b64 v[{KB[0][1]}:{KB[0][1]+1}], v2 offset:1024")
    a("s_waitcnt lgkmcnt(0)")
    a(mfma32(S[0], KB[0][0], Q1, None))
    a(mfma8(S[0], KB[0][1], Q2, S[0]))
    a(f"ds_read_b128 v[{KB[1][0]}:{KB[1][0]+3}], v1 offset:{4096}")
    a(f"ds_read_b64 v[{KB[1][1]}:{KB[1][1]+1}], v2 offset:{4096+1024}")
    a(f"ds_read_b128 v[{VB[0][0]}:{VB[0][0]+3}], v1 offset:2048")
    a(f"ds_read_b128 v[{VB[0][1]}:{VB[0][1]+3}], v1 offset:3072")
    a("s_nop 7")
    nstamp(a, 4)
    dbg_mark(a, 0, 4, vt=160, nl=2, sreg=78)
    a("s_mov_b32 s47, 4")
    lp = a.uid("attn_loop")
    body = Asm()
    for t in range(16):
        if t % 4 == 0 and t > 0: body("s_barrier")
        attn_tile(body, t)
    a.label(lp)
    a.lines += body.lines
    a("s_sub_u32 s47, s47, 1")
    a("s_cmp_eq_u32 s47, 0")
    lout = a.uid("attn_out")
    a(f"s_cbranch_scc1 {lout}")
    a("s_barrier")
    a(f"s_branch {lp}")
    a.label(lout)
    nstamp(a, 5)
    dbg_mark(a, 0, 5, vt=160, nl=2, sreg=78)
    a(f"v_cvt_pk_bf16_f32 v{P+6}, v{E+4}, v{E+5}")
    a(f"v_cvt_pk_bf16_f32 v{P+7}, v{E+6}, v{E+7}")
    a("s_waitcnt lgkmcnt(0)")
    a("s_nop 0")
    a(mfma32(O, VB[1][1], P + 4, O))
    a("v_lshrrev_b32 v110, 5, v0")
    a("s_mul_i32 s48, s6, 5")
    a("v_add_u32 v111, s48, v110")
    a("v_and_b32 v112, 31, v0")
    a("v_lshlrev_b32 v112, 4, v112")
    def qoff(dst, q):
        a(f"v_lshrrev_b32 v113, 2, v{q}")
        a(f"v_lshlrev_b32 v{dst}, 10, v113")
        a(f"v_bfe_u32 v113, v{q}, 1, 1")
        a(f"v_lshl_add_u32 v{dst}, v113, 9, v{dst}")
        a(f"v_and_b32 v113, 1, v{q}")
        a(f"v_lshl_add_u32 v{dst}, v113, 3, v{dst}")
        a(f"v_add_u32 v{dst}, v{dst}, v112")
    qoff(114, 111)
    a("v_add_u32 v111, 2, v111")
    qoff(115, 111)
    a("s_add_u32 s48, s48, 4")
    a("v_mov_b32 v111, s48")
    qoff(116, 111)
    a("s_lshl_b32 s49, s5, 1")
    a("s_add_u32 s49, s49, s7")
    a("s_mul_i32 s49, s49, 40960")
    a(f"s_add_u32 s49, s49, {OF}")
    a(f"v_mov_b32 v118, v{O+8}")
    a(f"v_mov_b32 v119, v{O+8}")
    a("s_nop 1")
    a("v_permlane32_swap_b32 v118, v119")
    a("s_nop 1")
    a("v_rcp_f32 v119, v119")
    a("s_nop 0")
    for r in range(12): a(f"v_mul_f32 v{O+r}, v{O+r}, v119")
    for r in range(6): a(f"v_cvt_pk_bf16_f32 v{120+r}, v{O+2*r}, v{O+2*r+1}")
    a("buffer_store_dwordx2 v[120:121], v114, s[36:39], s49 offen" + ST)
    a("buffer_store_dwordx2 v[122:123], v115, s[36:39], s49 offen" + ST)
    a("v_cmp_gt_u32 vcc, 32, v0")
    a("s_and_saveexec_b64 s[50:51], vcc")
    a("buffer_store_dwordx2 v[124:125], v116, s[36:39], s49 offen" + ST)
    a("s_mov_b64 exec, s[50:51]")
    dbg_mark(a, 0, 6, vt=160, nl=2, sreg=78)
    nstamp(a, 6); stamp_rt(a, 7)
    stamp_store(a, 8)
    a("s_endpgm")
    return check_hazards(body.lines + body.lines, name + ":loop")

def tr_addr(a, dst, base_s, hm, delta):
    a(f"v_lshrrev_b32 v{dst}, 5, v0"); a(f"v_mul_lo_u32 v{dst}, v{dst}, {hm}")
    a(f"v_and_b32 v{dst+1}, 15, v0"); a(f"v_lshrrev_b32 v{dst+2}, 2, v{dst+1}"); a(f"v_add_u32 v{dst}, v{dst}, v{dst+2}")
    a(f"v_lshlrev_b32 v{dst}, 7, v{dst}")
    a(f"v_bfe_u32 v{dst+2}, v0, 4, 1"); a(f"v_lshl_add_u32 v{dst}, v{dst+2}, 5, v{dst}")
    a(f"v_and_b32 v{dst+2}, 3, v{dst+1}"); a(f"v_lshl_add_u32 v{dst}, v{dst+2}, 3, v{dst}")
    a(f"v_add_u32 v{dst}, {base_s}, v{dst}")
    a(f"v_add_u32 v{dst+1}, {delta}, v{dst}")

def gen_ffn_head(a, name):
    if not X("PRIOX"): a("s_setprio 3")
    srd(a, 28, 20, KV_SZ, KV)
    srd(a, 36, 20, YF + YF_SZ)
    lkvw, lcommon = a.uid("h_kvw"), a.uid("h_common")
    a("s_cmp_lt_u32 s6, 2"); a(f"s_cbranch_scc1 {lkvw}")
    srd(a, 32, 8, 640*640*2)
    l3, lq = a.uid("h_w3"), a.uid("h_wq")
    a("s_cmp_eq_u32 s6, 3"); a(f"s_cbranch_scc1 {l3}")
    lwo, lgo = a.uid("h_jo"), a.uid("h_jg")
    a("s_cmp_ge_u32 s2, 216"); a(f"s_cbranch_scc1 {lwo}")
    srd(a, 24, 16, 640*1728*2)
    a(f"s_mul_hi_u32 s54, s2, {(1 << 32)//27 + 1}")
    a("s_mul_i32 s55, s54, 27"); a("s_sub_u32 s55, s2, s55")
    a("s_mov_b32 s48, 3456")
    a(f"s_mul_i32 s49, s54, {80*3456}"); a("s_lshl_b32 s43, s55, 7"); a("s_add_u32 s49, s49, s43")
    a(f"s_mul_i32 s50, s55, {2*40*1024}"); a("s_mul_i32 s43, s54, 5120"); a("s_add_u32 s50, s50, s43"); a(f"s_add_u32 s50, s50, {W1F}")
    a(f"s_branch {lgo}")
    a.label(lwo)
    srd(a, 24, 14, 640*640*2)
    a("s_sub_u32 s42, s2, 216")
    a(f"s_mul_hi_u32 s54, s42, {(1 << 32)//10 + 1}")
    a("s_mul_i32 s55, s54, 10"); a("s_sub_u32 s55, s42, s55")
    a("s_mov_b32 s48, 1280")
    a(f"s_mul_i32 s49, s54, {80*1280}"); a("s_lshl_b32 s43, s55, 7"); a("s_add_u32 s49, s49, s43")
    a(f"s_mul_i32 s50, s55, {2*40*1024}"); a("s_mul_i32 s43, s54, 5120"); a("s_add_u32 s50, s50, s43"); a(f"s_add_u32 s50, s50, {WOF}")
    a.label(lgo)
    a("v_lshrrev_b32 v4, 3, v0"); a("v_mul_lo_u32 v4, v4, s48")
    a("v_and_b32 v5, 7, v0"); a("v_lshl_add_u32 v4, v5, 4, v4")
    a("v_mov_b32 v8, v4")
    a(f"s_branch {lq}")
    a.label(l3)
    if X("CODEPF", "1") == "1":
        lcp = a.uid("h_nocp")
        a("s_cmp_ge_u32 s2, 8"); a(f"s_cbranch_scc1 {lcp}")
        a("s_getpc_b64 s[54:55]")
        a.label(f"{name}_pc0")
        a(f"s_sub_u32 s54, s54, {name}_pc0-{name}"); a("s_subb_u32 s55, s55, 0")
        a("v_lshlrev_b32 v4, 7, v0")
        for i in range(CODE_PF_KB // 8):
            a(f"global_load_dword v{160+i}, v4, s[54:55]")
            a("s_add_u32 s54, s54, 8192"); a("s_addc_u32 s55, s55, 0")
        a.label(lcp)
    a("s_cmp_lg_u32 s2, 0"); a(f"s_cbranch_scc1 {lq}")
    a("s_memrealtime s[54:55]")
    a("s_waitcnt lgkmcnt(0)")
    a("s_or_b32 s54, s54, 1")
    a("v_mov_b32 v4, 0"); a("v_mov_b32 v5, s54")
    a("s_mov_b64 exec, 1")
    a("global_store_dword v4, v5, s[90:91] sc1")
    a("s_mov_b64 exec, -1")
    a.label(lq)
    WQ = 148
    a("s_sub_u32 s56, s6, 2")
    a(f"v_mul_u32_u24 v4, 26, v0"); a("v_lshrrev_b32 v4, 8, v4")
    for l_ in range(64): assert (l_*26) >> 8 == l_//10
    a("v_mul_u32_u24 v5, 10, v4"); a("v_sub_u32 v5, v0, v5")
    a("v_mul_u32_u24 v4, 1280, v4")
    a(f"v_lshl_add_u32 v{WQ}, v5, 4, v4")
    a("s_mul_i32 s57, s4, 160")
    a(f"s_mul_i32 s58, s56, {320*1280}"); a("s_add_u32 s58, s58, s57")
    a("s_mul_i32 s59, s56, 10240")
    a("s_mov_b32 s76, -1"); a("s_mov_b32 s77, 0x0fffffff")
    a("s_mov_b32 s78, -1"); a("s_mov_b32 s79, 0xff")
    NWQ = 11
    def wq_stage(st):
        a(f"s_add_u32 s41, s58, {st*64*1280}")
        a("s_mov_b64 exec, s[76:77]")
        for i in range(NWQ):
            if i == NWQ - 1: a("s_mov_b64 exec, s[78:79]")
            a(f"s_add_u32 m0, s59, {SB[STAGE_BUF[st]] + i*960}")
            a("s_nop 0")
            a(f"buffer_load_dwordx4 v{WQ}, s[32:35], s41 offen lds")
            if i < NWQ - 1: a("s_add_u32 s41, s41, 7680")
        a("s_mov_b64 exec, -1")
    if X("B0", "1") == "1": a("s_barrier")
    wq_stage(0); wq_stage(1)
    if X("PRIOX"): a("s_setprio 3")
    lw3, lbln = a.uid("h_w3b"), a.uid("h_bln")
    a("s_cmp_eq_u32 s6, 3"); a(f"s_cbranch_scc1 {lw3}")
    a("s_lshl_b32 s43, s48, 3")
    for i in range(10):
        a(f"s_mov_b32 m0, {J3L + i*1024}")
        a("s_nop 0")
        a("buffer_load_dwordx4 v8, s[24:27], s49 offen lds")
        a("s_add_u32 s49, s49, s43")
    j3b_params(a)
    tr_addr(a, 5, J3L, 8, 512)
    hstamp(a, "F", 2)
    a("s_waitcnt vmcnt(21)")
    hstamp(a, "F", 3)
    a("s_barrier")
    hstamp(a, "F", 4)
    a("s_waitcnt vmcnt(0)")
    hstamp(a, "F", 5)
    for nt in range(2):
        for kk in range(5):
            r = 16 + 4*(nt*5+kk)
            a(f"ds_read_b64_tr_b16 v[{r}:{r+1}], v5 offset:{nt*64 + kk*2048}")
            a(f"ds_read_b64_tr_b16 v[{r+2}:{r+3}], v6 offset:{nt*64 + kk*2048}")
        a("s_waitcnt lgkmcnt(0)")
        for kk in range(5):
            r = 16 + 4*(nt*5+kk)
            a(f"s_add_u32 s42, s50, {kk*1024 + nt*40960}")
            a(f"buffer_store_dwordx4 v[{r}:{r+3}], v3, s[36:39], s42 offen sc1")
    a(f"s_branch {lbln}")
    a.label(lw3)
    j3b_params(a)
    hstamp(a, "K", 2)
    a("s_waitcnt vmcnt(11)")
    a("s_barrier")
    lp, lpd = a.uid("h_np"), a.uid("h_npd")
    spin_timeout(a, 42)
    a("v_mov_b32 v4, 0")
    a.label(lp)
    a("global_load_dword v5, v4, s[90:91] sc1")
    a("s_waitcnt vmcnt(0)")
    a("v_readfirstlane_b32 s43, v5")
    a("s_sub_u32 s42, s42, 1")
    a("s_cmp_lg_u32 s43, 0"); a(f"s_cbranch_scc1 {lpd}")
    a("s_cmp_eq_u32 s42, 0"); a(f"s_cbranch_scc1 {lpd}")
    a("s_sleep 1")
    a(f"s_branch {lp}")
    a.label(lpd)
    hstamp(a, "K", 3)
    a(f"v_mov_b32 v4, {NONCE_L}")
    a("ds_write_b32 v4, v5")
    a("s_waitcnt lgkmcnt(0)")
    hstamp(a, "K", 4)
    a.label(lbln)
    hstamp(a, "F", 6)
    a("s_barrier")
    wq_stage(2); wq_stage(3)
    a(f"v_mov_b32 v4, {NONCE_L}")
    a("ds_read_b32 v5, v4")
    a("s_waitcnt lgkmcnt(0)")
    a(f"v_readfirstlane_b32 s{NONCE}, v5")
    a("s_waitcnt vmcnt(11)")
    a("s_barrier")
    wq_stage(4)
    lj2o, lj2g = a.uid("h_j2so"), a.uid("h_j2sg")
    a("s_cmp_eq_u32 s99, 512"); a(f"s_cbranch_scc1 {lj2o}")
    srd(a, 24, 18, 1728*640*2)
    a(f"s_branch {lj2g}")
    a.label(lj2o)
    srd(a, 24, 14, 640*640*2)
    a.label(lj2g)
    a("v_lshrrev_b32 v4, 3, v0"); a("v_mul_u32_u24 v4, 1280, v4")
    a("v_and_b32 v5, 7, v0"); a("v_lshl_add_u32 v4, v5, 4, v4")
    a("s_mul_i32 s48, s56, 61440"); a("s_add_u32 s48, s48, s92")
    a("s_mul_i32 s49, s56, 6144")
    for i in range(6):
        a(f"s_add_u32 m0, s49, {J3L + i*1024}")
        a("s_nop 0")
        a("buffer_load_dwordx4 v4, s[24:27], s48 offen lds")
        if i < 5: a("s_add_u32 s48, s48, 10240")
    lnf, lw2 = a.uid("h_nf"), a.uid("h_w2f")
    ldone = a.uid("h_done")
    a("v_mov_b32 v4, 0"); a(f"v_mov_b32 v5, s{NONCE}")
    a("s_cmp_eq_u32 s6, 3"); a(f"s_cbranch_scc1 {lnf}")
    a("s_lshl_b32 s42, s2, 2"); a(f"s_add_u32 s42, s42, {GFL + 1024}")
    a("s_mov_b64 exec, 1")
    a("buffer_store_dword v5, v4, s[36:39], s42 offen sc1")
    a("s_mov_b64 exec, -1")
    a("s_waitcnt vmcnt(18)"); a("s_barrier")
    a("s_waitcnt vmcnt(1)"); a("s_barrier")
    a(f"s_branch {ldone}")
    a.label(lnf)
    a("s_waitcnt vmcnt(17)"); a("s_barrier")
    a("s_lshl_b32 s42, s2, 2"); a(f"s_add_u32 s42, s42, {GFL}")
    a("s_mov_b64 exec, 1")
    a("buffer_store_dword v5, v4, s[36:39], s42 offen sc1")
    a("s_mov_b64 exec, -1")
    a("s_waitcnt vmcnt(1)"); a("s_barrier")
    a(f"s_branch {ldone}")
    a.label(lkvw)
    lv, lkv = a.uid("h_isv"), a.uid("h_kv")
    a("s_and_b32 s7, s4, 1")
    a("s_cmp_eq_u32 s7, 1"); a(f"s_cbranch_scc1 {lv}")
    srd(a, 44, 10, 25600)
    a(f"s_branch {lkv}")
    a.label(lv)
    srd(a, 44, 12, 25600)
    a.label(lkv)
    if X("B0", "1") == "1": a("s_barrier")
    a("s_lshr_b32 s42, s2, 3"); a("s_and_b32 s42, s42, 31"); a("s_mul_i32 s42, s42, 43"); a("s_lshr_b32 s42, s42, 7")
    a("s_lshl_b32 s40, s6, 10")
    for j in range(12):
        a(f"s_add_u32 s43, s42, {j}"); a("s_sub_u32 s41, s43, 12"); a("s_cmp_ge_u32 s43, 12"); a("s_cselect_b32 s43, s41, s43")
        a("s_lshl_b32 s43, s43, 11"); a("s_add_u32 s41, s43, s40")
        a(f"s_add_u32 m0, s41, {WKVL}")
        a("s_nop 0")
        a("buffer_load_dwordx4 v3, s[44:47], s41 offen lds")
    l24 = a.uid("h_no24")
    a("s_cmp_lg_u32 s6, 0"); a(f"s_cbranch_scc1 {l24}")
    a(f"s_mov_b32 m0, {WKVL + 24576}")
    a("s_movk_i32 s41, 24576")
    a("buffer_load_dwordx4 v3, s[44:47], s41 offen lds")
    a.label(l24)
    if X("PRIOX"): a("s_setprio 3")
    j3b_params(a)
    XF, WF, D = 4, 84, 164
    a("s_lshr_b32 s48, s4, 1")
    a("v_lshrrev_b32 v4, 4, v0")
    a("v_and_b32 v5, 15, v0")
    a("s_and_b32 s49, s48, 1"); a("s_lshl_b32 s50, s49, 4")
    a("v_add_u32 v6, s50, v5")
    a(f"v_mul_u32_u24 v1, {XC}, v4"); a("v_lshl_add_u32 v1, v6, 4, v1")
    a("s_lshr_b32 s51, s48, 1"); a(f"s_mul_i32 s51, s51, {XT}")
    a("v_add_u32 v1, s51, v1")
    a("v_lshrrev_b32 v2, 2, v5"); a("v_lshl_add_u32 v2, v4, 3, v2"); a("v_mul_u32_u24 v2, 40, v2")
    a("v_and_b32 v7, 3, v5"); a("v_lshl_add_u32 v2, v7, 3, v2")
    a("s_lshl_b32 s51, s6, 5"); a(f"s_add_u32 s51, s51, {WKVL}")
    a("v_add_u32 v2, s51, v2")
    a("s_lshl_b32 s52, s5, 1"); a("s_lshr_b32 s53, s48, 1"); a("s_add_u32 s52, s52, s53")
    a("s_lshl_b32 s52, s52, 12"); a(f"s_add_u32 s52, s52, {KV}")
    a("s_lshl_b32 s53, s5, 2"); a("s_add_u32 s53, s53, s48")
    hstamp(a, "K", 2)
    a("s_waitcnt vmcnt(0)")
    hstamp(a, "K", 3)
    rstamp(a, 2)
    a("s_barrier")
    hstamp(a, "K", 4)
    rstamp(a, 3)
    lvm, lmd = a.uid("h_vm"), a.uid("h_md")
    for ks in range(20):
        a(f"ds_read_b128 v[{XF+4*ks}:{XF+4*ks+3}], v1 offset:{ks*2*XKS}")
        a(f"ds_read_b64_tr_b16 v[{WF+4*ks}:{WF+4*ks+1}], v2 offset:{ks*1280}")
        a(f"ds_read_b64_tr_b16 v[{WF+4*ks+2}:{WF+4*ks+3}], v2 offset:{ks*1280+160}")
        if ks % 4 == 3: a("s_waitcnt lgkmcnt(3)")
    a("s_waitcnt lgkmcnt(0)")
    hstamp(a, "K", 5)
    a("s_barrier")
    hstamp(a, "K", 6)
    a(f"v_mov_b32 v1, {NONCE_L}")
    a("ds_read_b32 v2, v1")
    def kvmm(isv):
        for k in range(20):
            c = "0" if k == 0 else f"v[{D}:{D+3}]"
            x, w = f"v[{XF+4*k}:{XF+4*k+3}]", f"v[{WF+4*k}:{WF+4*k+3}]"
            a(f"v_mfma_f32_16x16x32_bf16 v[{D}:{D+3}], {x if isv else w}, {w if isv else x}, {c}")
    a("s_cmp_eq_u32 s7, 1"); a(f"s_cbranch_scc1 {lvm}")
    kvmm(False)
    a(f"s_branch {lmd}")
    a.label(lvm)
    kvmm(True)
    a.label(lmd)
    a("s_waitcnt lgkmcnt(0)")
    a(f"v_readfirstlane_b32 s{NONCE}, v2")
    a("v_lshrrev_b32 v88, 4, v0")
    a("v_and_b32 v89, 15, v0")
    a("v_add_u32 v90, s50, v89")
    a("v_and_b32 v93, 1, v88")
    a("v_lshrrev_b32 v94, 1, v88")
    a("s_nop 7")
    for r in range(4): a(f"v_mul_f32 v{D+r}, {f2u(LN2):#x}, v{D+r}")
    a(f"v_cvt_pk_bf16_f32 v96, v{D}, v{D+1}")
    a(f"v_cvt_pk_bf16_f32 v97, v{D+2}, v{D+3}")
    l0, l1, l2, l3v, lst = (a.uid("h_ep") for _ in range(5))
    a("s_lshl_b32 s54, s7, 1"); a("s_add_u32 s54, s54, s6")
    a("s_cmp_eq_u32 s54, 0"); a(f"s_cbranch_scc1 {l0}")
    a("s_cmp_eq_u32 s54, 1"); a(f"s_cbranch_scc1 {l1}")
    a("s_cmp_eq_u32 s54, 2"); a(f"s_cbranch_scc1 {l2}")
    a(f"s_branch {l3v}")
    def knorm(slot):
        a(f"v_mul_f32 v98, v{D}, v{D}")
        for r in range(1, 4): a(f"v_fmac_f32 v98, v{D+r}, v{D+r}")
        if slot == 1:
            a("v_cmp_eq_u32 vcc, 0, v88")
            a("s_nop 1")
            a("v_cndmask_b32 v98, 0, v98, vcc")
        for sw in ("32", "16"):
            a("v_mov_b32 v99, v98"); a("s_nop 1")
            a(f"v_permlane{sw}_swap_b32 v98, v99"); a("s_nop 1")
            a("v_add_f32 v98, v98, v99")
        for sh in (8, 4, 2, 1):
            a("s_nop 1")
            a(f"v_max_f32_dpp v98, v98, v98 row_ror:{sh} row_mask:0xf bank_mask:0xf")
        a("s_lshl_b32 s55, s53, 3"); a(f"s_add_u32 s55, s55, {KMX + 4*slot}")
        a("v_mov_b32 v99, 0")
        a("s_mov_b64 exec, 1")
        a("buffer_store_dword v98, v99, s[36:39], s55 offen sc1")
        a("s_mov_b64 exec, -1")
    a.label(l0)
    a("v_lshl_add_u32 v95, v93, 5, v90"); a("v_lshlrev_b32 v95, 4, v95"); a("v_lshl_add_u32 v95, v94, 3, v95")
    a("buffer_store_dwordx2 v[96:97], v95, s[36:39], s52 offen sc1")
    knorm(0)
    a(f"s_branch {lst}")
    a.label(l1)
    a("v_cmp_eq_u32 vcc, 1, v88")
    a("v_mov_b32 v98, 0x3f803f80"); a("v_mov_b32 v99, 0x00003f80")
    a("v_cndmask_b32 v96, v96, v98, vcc"); a("v_cndmask_b32 v97, v97, v99, vcc")
    a("v_lshl_add_u32 v95, v88, 5, v90"); a("v_lshlrev_b32 v95, 3, v95"); a("v_add_u32 v95, 1024, v95")
    a("v_cmp_gt_u32 vcc, 2, v88")
    a("s_and_saveexec_b64 s[54:55], vcc")
    a("buffer_store_dwordx2 v[96:97], v95, s[36:39], s52 offen sc1")
    a("s_mov_b64 exec, s[54:55]")
    knorm(1)
    a(f"s_branch {lst}")
    a.label(l3v)
    a("v_cmp_gt_u32 vcc, 4, v89"); a("s_nop 1")
    a("v_cndmask_b32 v96, 0, v96, vcc"); a("v_cndmask_b32 v97, 0, v97, vcc")
    a("v_cmp_eq_u32 vcc, 4, v89"); a("v_mov_b32 v98, 0x3f803f80"); a("s_nop 0")
    a("v_cndmask_b32 v96, v96, v98, vcc"); a("v_cndmask_b32 v97, v97, v98, vcc")
    a("v_add_u32 v89, 16, v89")
    a.label(l2)
    a("v_lshl_add_u32 v95, v93, 5, v89"); a("v_lshlrev_b32 v95, 4, v95"); a("v_lshl_add_u32 v95, v94, 3, v95")
    a("s_lshl_b32 s55, s49, 10"); a("s_add_u32 s55, s55, s52"); a("s_add_u32 s55, s55, 2048")
    a("buffer_store_dwordx2 v[96:97], v95, s[36:39], s55 offen sc1")
    a.label(lst)
    a("s_barrier")
    rstamp(a, 4)
    a("s_waitcnt vmcnt(0)")
    rstamp(a, 5)
    a("s_barrier")
    a("s_barrier")
    a.label(ldone)
    a("s_setprio 0")

def gen_main(name="main_kernel", ffn=True, prio_attn=None, prio_ffn=None):
    a = Asm()
    a(f".globl {name}\n.p2align 8\n.type {name},@function")
    a.label(name)
    a("s_cmp_ge_u32 s2, 256")
    a(f"s_cbranch_scc1 {name}_end")
    stamp_rt(a, 0); stamp(a, 1)
    dbg_mark(a, 0, 0, first=True, vt=160, nl=2, sreg=78)
    a("s_load_dwordx2 s[22:23], s[0:1], 0")
    a("s_load_dwordx8 s[8:15], s[0:1], 8")
    a("s_load_dwordx4 s[16:19], s[0:1], 48")
    a("s_load_dwordx2 s[90:91], s[0:1], 72")
    a("s_load_dwordx2 s[20:21], s[0:1], 80")
    a("v_lshrrev_b32 v1, 6, v0")
    a("v_and_b32 v0, 63, v0")
    a("v_readfirstlane_b32 s3, v1")
    a("v_lshlrev_b32 v3, 4, v0")
    a("s_lshr_b32 s4, s2, 3"); a("s_and_b32 s4, s4, 7")
    a("s_lshr_b32 s5, s2, 6"); a("s_lshl_b32 s5, s5, 3"); a("s_and_b32 s6, s2, 7"); a("s_add_u32 s5, s5, s6")
    a("s_waitcnt lgkmcnt(0)")
    lffn = f"{name}_ffn"
    a("s_cmp_ge_u32 s3, 8")
    a(f"s_cbranch_scc1 {lffn}")
    errs = gen_attn(a, name, prio_attn)
    a.label(lffn)
    a("s_sub_u32 s6, s3, 8")
    gen_ffn_head(a, name)
    import kfffn
    errs += kfffn.gen_ffn_main(a, name, prio_ffn, ffn)
    a.label(f"{name}_end")
    a("s_endpgm")
    errs += check_hazards(a.lines, name)
    return a.text(), kd(name, 168, 102), errs

def kernels(which):
    k2.PROF = bool(os.environ.get("PROF"))
    t, d, e = gen_main("main_kernel", ffn=(which != "attn"), prio_attn=X("PRIOA"), prio_ffn=X("PRIOF"))
    return [("main_kernel", t, d, e, 256, 768, LDS_MAIN)]
```

```python
from asmlib import *
from layout import *
from k0 import srd
import k2
from k2 import mfma32, stamp, stamp_rt, stamp_store, X, ST
from kf import KVL, XT, XC, XKS, NONCE, HS, J3L

VX0, VX1 = 164, 165
VT = 160

class VM:
    def __init__(self, a): self.a = a; self.q = []
    def issue(self, tag, maybe=False): self.q.append((tag, maybe))
    def wait(self, tag, extra=""):
        hits = [i for i, t in enumerate(self.q) if t[0] == tag]
        if not hits:
            if extra: self.a("s_waitcnt" + extra)
            return
        idx = max(hits)
        n = sum(1 for t in self.q[idx + 1:] if not t[1])
        assert n <= 63
        self.a(f"s_waitcnt vmcnt({n}){extra}")
        self.q = self.q[idx + 1:]
    def clone(self, a):
        v = VM(a); v.q = list(self.q); return v

def kv_dma(a, vm, c):
    if c > 15: return
    a(f"s_add_u32 m0, s41, {(c % 4)*16384}")
    a(f"s_add_u32 s15, s40, {c*16384}")
    for i in range(4):
        a(f"buffer_load_dwordx4 v3, s[28:31], s15 offen offset:{i*1024} sc1 lds"); vm.issue(("kv", c))

BARS = ["B4", "HQ", "S1"] + [f"C{i}" for i in range(16)]
def bstamp(a, name):
    if not X("BSTAMP"): return
    i = BARS.index(name)
    a("s_memtime s[96:97]"); a("s_waitcnt lgkmcnt(0)"); a(f"s_mov_b32 s{64+i}, s96")
def bstamp_store(a):
    if not X("BSTAMP"): return
    a("s_memtime s[96:97]"); a("s_waitcnt lgkmcnt(0)"); a("s_mov_b32 s85, s96")
    a("s_lshl_b32 s58, s2, 2"); a("s_add_u32 s58, s58, s6"); a("s_lshl_b32 s58, s58, 7")
    a(f"s_add_u32 s56, s20, 0x8400000"); a("s_addc_u32 s57, s21, 0")
    a("v_mov_b32 v160, s58")
    for i in range(22):
        a(f"v_mov_b32 v161, s{64+i}")
        a(f"global_store_dword v160, v161, s[56:57] offset:{4*i}")
        a("s_nop 1")
def barrier(a, vm, name):
    if name == "B4":
        pass
    elif name == "HQ":
        a("s_barrier")
    elif name == "S1":
        a("s_barrier")
        for c in range(2): kv_dma(a, vm, c)
    else:
        c = int(name[1:])
        vm.wait(("kv", c + 1))
        if c == 0: vm.wait("j3st")
        a("s_barrier")
        if c == 0: kv_dma(a, vm, 2)
        kv_dma(a, vm, c + 3)
    bstamp(a, name)

VPRIO = int(X("VPRIO", "2"))
def hi(a):
    if VPRIO: a(f"s_setprio {VPRIO}")
def lo(a):
    if VPRIO: a("s_setprio 0")
def interleave(a, steps, fill):
    nslots = sum(len(s) for s in steps)
    out = []; done = 0; used = 0
    for s in steps:
        grp = []
        for slot in s:
            done += 1
            tgt = (len(fill)*done + nslots - 1)//nslots if nslots else 0
            mine = fill[used:tgt]; used = max(used, tgt)
            grp.append((slot, mine))
        def emit(grp=grp):
            for slot, mine in grp:
                slot()
                if mine and VPRIO: a(f"s_setprio {VPRIO}")
                for f in mine:
                    f() if callable(f) else a(f)
                if mine and VPRIO: a("s_setprio 0")
        out.append(emit)
    return out

def gen_ffn_main(a, name, prio, ffn=True):
    lend = f"{name}_end"
    vm0 = VM(a)
    a("s_lshl_b32 s40, s6, 12")
    a(f"s_add_u32 s41, s40, {KVL}")
    if not ffn:
        for b in BARS: barrier(a, vm0, b)
        a(f"s_branch {lend}")
        return []
    srd(a, 44, 20, W1F_SZ, W1F)
    srd(a, 48, 20, W2F_SZ, W2F)
    a("s_lshr_b32 s8, s4, 1"); a("s_and_b32 s9, s4, 1")
    a("s_lshl_b32 s7, s4, 2"); a("s_add_u32 s7, s7, s6")
    a("s_mul_i32 s12, s8, 5"); a("s_mul_i32 s13, s9, 3"); a("s_add_u32 s12, s12, s13")
    a("s_lshl_b32 s14, s5, 8"); a(f"s_add_u32 s14, s14, {FLG}")
    a("s_lshl_b32 s13, s7, 2"); a("s_add_u32 s16, s14, s13")
    a(f"s_mul_i32 s17, s5, {2*108*1024}"); a(f"s_add_u32 s17, s17, {HF}")
    a(f"v_lshrrev_b32 v{VX0}, 5, v0"); a(f"v_mul_u32_u24 v{VX0}, {XC}, v{VX0}")
    a(f"v_and_b32 v{VX1}, 31, v0"); a(f"v_lshl_add_u32 v{VX0}, v{VX1}, 4, v{VX0}")
    a(f"v_add_u32 v{VX1}, {XT}, v{VX0}")
    if prio is not None: a(f"s_setprio {prio}")
    def set_flag(vm, stage):
        a(f"v_mov_b32 v{VT+2}, 0"); a(f"v_mov_b32 v{VT+3}, s{NONCE}")
        a("s_mov_b64 exec, 1")
        a(f"buffer_store_dword v{VT+3}, v{VT+2}, s[36:39], s16 offen offset:{128*stage} sc1"); vm.issue("flag")
        a("s_mov_b64 exec, -1")
    def poll_issue(vm, stage):
        a(f"v_and_b32 v{VT}, 31, v0"); a(f"v_lshlrev_b32 v{VT}, 2, v{VT}")
        a(f"buffer_load_dword v{VT+1}, v{VT}, s[36:39], s14 offen offset:{128*stage} sc1"); vm.issue(("poll", stage))
    def poll_check(vm, stage):
        lp, ld = a.uid("poll"), a.uid("polld")
        vm.wait(("poll", stage))
        a(f"v_cmp_ne_u32 vcc, s{NONCE}, v{VT+1}")
        a("s_mov_b32 s13, 0x4000")
        a("s_nop 3")
        a(f"s_cbranch_vccz {ld}")
        a.label(lp)
        a(f"buffer_load_dword v{VT+1}, v{VT}, s[36:39], s14 offen offset:{128*stage} sc1")
        a("s_waitcnt vmcnt(0)")
        a(f"v_cmp_ne_u32 vcc, s{NONCE}, v{VT+1}")
        a("s_sub_u32 s13, s13, 1")
        a("s_nop 3")
        a(f"s_cbranch_vccz {ld}")
        a("s_cmp_eq_u32 s13, 0"); a(f"s_cbranch_scc1 {ld}")
        a("s_sleep 2")
        a(f"s_branch {lp}")
        a.label(ld)
    T0 = 4; AR = 68; BR = 100; DA = 8
    ACC = 4; AR2 = 100

    def path(n):
        vm = vm0.clone(a)
        full_b = (n == 2)
        def silu(tiles, T, sbase, tag, maybe=False):
            L = []
            for (tb_, delta) in tiles:
                for half in range(2):
                    base = tb_ + 8*half
                    L += [f"v_exp_f32 v{T+i}, -v{base+i}" for i in range(8)]
                    L += [f"v_add_f32 v{T+i}, 1.0, v{T+i}" for i in range(8)]
                    L += [f"v_rcp_f32 v{T+i}, v{T+i}" for i in range(8)]
                    L += [f"v_mul_f32 v{base+i}, v{base+i}, v{T+i}" for i in range(8)]
                    L += [f"v_cvt_pk_bf16_f32 v{base+p}, v{base+2*p}, v{base+2*p+1}" for p in range(4)]
                    def st(base=base, off=delta + half*1024):
                        a(f"s_add_u32 s15, s{sbase}, {off}")
                        a(f"buffer_store_dwordx4 v[{base}:{base+3}], v3, s[36:39], s15 offen sc1"); vm.issue(tag, maybe)
                    L.append(st)
            return L
        a("s_mul_i32 s18, s7, 40960")
        a("s_lshl_b32 s13, s7, 11"); a("s_add_u32 s10, s17, s13")
        if full_b:
            a("s_lshl_b32 s13, s8, 2"); a("s_add_u32 s13, s13, s6"); a("s_add_u32 s13, s13, 32")
            a("s_lshl_b32 s11, s13, 11"); a("s_add_u32 s11, s11, s17")
        else:
            a("s_lshr_b32 s13, s6, 1"); a("s_add_u32 s13, s13, s4"); a("s_add_u32 s13, s13, 48")
            a("s_and_b32 s15, s6, 1"); a("s_mul_i32 s15, s15, 110592")
            a("s_lshl_b32 s11, s13, 11"); a("s_add_u32 s11, s11, s17"); a("s_add_u32 s11, s11, s15")
            a("s_lshl_b32 s15, s6, 11"); a(f"s_add_u32 s15, s15, {DUM}")
            a("s_cmp_eq_u32 s4, 6"); a("s_cselect_b32 s11, s15, s11")
            a("s_and_b32 s15, s6, 1"); a(f"s_mul_i32 s15, s15, {XT}")
            a(f"v_add_u32 v{VT+6}, s15, v{VX0}")
        a("s_mul_i32 s19, s13, 40960")
        def a1_load(i):
            if i >= 80: return
            if X("NOLD1") and i >= DA: return
            r = AR + 4*(i % DA)
            if i == 40: a("s_mov_b32 s18, s19")
            elif i % 4 == 0 and i > 0: a("s_add_u32 s18, s18, 4096")
            a(f"buffer_load_dwordx4 v[{r}:{r+3}], v3, s[44:47], s18 offen offset:{(i%4)*1024} sc1"); vm.issue(("a1", i))
        DB = 3
        def b1_load(i):
            if i >= 80: return
            ks = i % 40; r = BR + 8*(i % DB)
            if i < 40 or full_b:
                a(f"ds_read_b128 v[{r}:{r+3}], v{VX0} offset:{ks*XKS}")
                a(f"ds_read_b128 v[{r+4}:{r+7}], v{VX1} offset:{ks*XKS}")
            else:
                a(f"ds_read_b128 v[{r}:{r+3}], v{VT+6} offset:{ks*XKS}")
        nb = lambda i: 0 if i >= 80 else (2 if (i < 40 or full_b) else 1)
        def f1(i):
            st_, ks = divmod(i, 40)
            ra = AR + 4*(i % DA); rb = BR + 8*(i % DB)
            d0 = T0 + 32*st_; d1 = d0 + 16
            two = (st_ == 0 or full_b)
            def s0():
                vm.wait(("a1", i), f" lgkmcnt({nb(i + 1)})")
                a(mfma32(d0, ra, rb, None if ks == 0 else d0))
                if not two:
                    b1_load(i + 2); a1_load(i + DA)
            def s1():
                a(mfma32(d1, ra, rb + 4, None if ks == 0 else d1))
                b1_load(i + 2)
                a1_load(i + DA)
            return [s0, s1] if two else [s0]
        P1 = [f1(i) for i in range(40)]
        P2 = [f1(i) for i in range(40, 80)]
        sl0 = silu([(T0, 0), (T0 + 16, 110592)], 124, 10, "hst0")
        lead = 3 if full_b else 5
        nfill = int(X("NFILL%d" % n, "22" if full_b else "26"))
        steps = interleave(a, P1, []) + interleave(a, P2[:lead], []) + interleave(a, P2[lead:nfill], sl0) + interleave(a, P2[nfill:], [])
        npub0 = min(80, 40 + nfill + (5 if full_b else 4))
        NF = n + 2; DEP = 3; NS = 27; NA = 16
        def setup2():
            a("s_lshl_b32 s13, s6, 14")
            a(f"s_mul_i32 s8, s12, {W2K*1024}")
            a("s_mul_i32 s15, s6, 11264"); a("s_add_u32 s15, s15, 65536")
            a("s_add_u32 s9, s8, s15"); a("s_add_u32 s8, s8, s13")
            a("s_add_u32 s19, s17, s15"); a("s_add_u32 s18, s17, s13")
        def ld_ops(s):
            if s >= NS or (X("NOLD2") and s >= DEP): return []
            sa, sb, i = (8, 18, s) if s < NA else (9, 19, s - NA)
            r = AR2 + 4*NF*(s % DEP)
            hi, lo = (i // 4)*4096, (i % 4)*1024
            ops = []
            for j in range(n):
                def f(j=j):
                    a(f"s_add_u32 s15, s{sa}, {j*W2K*1024 + hi}")
                    a(f"buffer_load_dwordx4 v[{r+4*j}:{r+4*j+3}], v3, s[48:51], s15 offen offset:{lo} sc1"); vm.issue(("l2", s))
                ops.append(f)
            for tt in range(2):
                def f(tt=tt):
                    a(f"s_add_u32 s15, s{sb}, {tt*110592 + hi}")
                    a(f"buffer_load_dwordx4 v[{r+4*(n+tt)}:{r+4*(n+tt)+3}], v3, s[36:39], s15 offen offset:{lo} sc1"); vm.issue(("l2", s))
                ops.append(f)
            return ops
        def f2(s):
            def fn():
                vm.wait(("l2", s))
                r = AR2 + 4*NF*(s % DEP)
                if s + DEP == NA: poll_check(vm, 1)
                nxt = ld_ops(s + DEP)
                mf = []
                for j in range(n):
                    for tt in ((0, 1) if j % 2 == 0 else (1, 0)):
                        d = ACC + 16*(2*j + tt)
                        mf.append((mfma32(d, r + 4*j, r + 4*(n + tt), None if s == 0 else d), j))
                for x, (m, j) in enumerate(mf):
                    if not X("NOMF2"): a(m)
                    if x % 2 == 1 and nxt and j < n - 1: nxt[j]()
                if nxt:
                    for f in nxt[n-1:]: f()
                if s + DEP == NA - 2: poll_issue(vm, 1)
                if s == 1:
                    vm.wait("hst1"); set_flag(vm, 1)
            return fn
        NT = 2*n; OWN = AR2
        def red_write():
            a("s_mul_i32 s13, s6, 18432")
            a(f"v_add_u32 v{VX0}, s13, v3")
            ld = a.uid("rw_done"); ls = [a.uid("rw") for _ in range(4)]
            for w in range(4):
                if w < 3:
                    a(f"s_cmp_lg_u32 s6, {w}"); a(f"s_cbranch_scc1 {ls[w]}")
                a("s_nop 15")
                for T in range(NT):
                    for i in range(4):
                        if i == w: continue
                        ip = (i - w - 1) % 4
                        r = ACC + 16*T + 4*i
                        a(f"ds_write_b128 v{VX0}, v[{r}:{r+3}] offset:{(T*3 + ip)*1024}")
                for T in range(NT):
                    for x in range(4): a(f"v_mov_b32 v{OWN+4*T+x}, v{ACC+16*T+4*w+x}")
                if w < 3:
                    a(f"s_branch {ld}"); a.label(ls[w])
            a.label(ld)
            a("s_waitcnt lgkmcnt(0)")
        def red_read():
            R = ACC
            for d in range(1, 4):
                a(f"s_add_u32 s13, s6, {d}"); a("s_and_b32 s13, s13, 3"); a("s_mul_i32 s13, s13, 18432")
                a(f"v_add_u32 v{VX1}, s13, v3")
                for T in range(NT):
                    r = R + 4*((d-1)*6 + T)
                    a(f"ds_read_b128 v[{r}:{r+3}], v{VX1} offset:{(T*3 + 3 - d)*1024}")
            a("s_lshl_b32 s13, s5, 3"); a("s_add_u32 s13, s13, s4"); a("s_mul_i32 s13, s13, 12288")
            a("s_lshl_b32 s15, s6, 9"); a("s_add_u32 s13, s13, s15"); a(f"s_add_u32 s13, s13, {YF}")
            a(f"v_lshlrev_b32 v{VT}, 3, v0")
            a(f"s_mov_b32 s8, {f2u(LN2):#x}")
            a("s_waitcnt lgkmcnt(0)")
            for T in range(NT):
                y = OWN + 4*T
                for d in range(1, 4):
                    r = R + 4*((d-1)*6 + T)
                    for x in range(4): a(f"v_add_f32 v{y+x}, v{y+x}, v{r+x}")
                for x in range(4): a(f"v_mul_f32 v{y+x}, s8, v{y+x}")
                a(f"v_cvt_pk_bf16_f32 v{y}, v{y}, v{y+1}")
                a(f"v_cvt_pk_bf16_f32 v{y+1}, v{y+2}, v{y+3}")
                a(f"s_add_u32 s15, s13, {T*2048}")
                a(f"buffer_store_dwordx2 v[{y}:{y+1}], v{VT}, s[36:39], s15 offen" + ST); vm.issue("y")
        def mid():
            setup2()
            poll_issue(vm, 0)
            g2_issue()
            a("s_nop 7")
            tiles = [(T0 + 32, 0), (T0 + 48, 110592)] if full_b else [(T0 + 32, 0)]
            hi(a)
            for f in silu(tiles, 68, 11, "hst1"): f() if callable(f) else a(f)
            poll_check(vm, 0)
            g2_check()
            for st_ in range(DEP):
                for f in ld_ops(st_): f()
            lo(a)
        segs = {b: [] for b in BARS}
        def j3_in():
            a("v_lshrrev_b32 v147, 3, v0"); a("v_mul_u32_u24 v147, 1280, v147")
            a("v_and_b32 v146, 7, v0"); a("v_lshl_add_u32 v147, v146, 4, v147")
            a("s_mul_i32 s13, s6, 30720"); a("s_add_u32 s13, s13, s92")
            a("s_mul_i32 s15, s6, 3072")
            for i in range(3):
                a(f"s_add_u32 m0, s15, {J3L + i*1024}")
                a("s_nop 0")
                a("buffer_load_dwordx4 v147, s[24:27], s13 offen lds"); vm.issue("j3in")
                if i < 2: a("s_add_u32 s13, s13, 10240")
        def j3_out():
            a("v_lshrrev_b32 v144, 5, v0"); a("v_mul_lo_u32 v144, v144, s95")
            a("v_and_b32 v145, 15, v0"); a("v_lshrrev_b32 v146, 2, v145"); a("v_add_u32 v144, v144, v146")
            a("v_lshlrev_b32 v144, 7, v144")
            a("v_bfe_u32 v146, v0, 4, 1"); a("v_lshl_add_u32 v144, v146, 5, v144")
            a("v_and_b32 v146, 3, v145"); a("v_lshl_add_u32 v144, v146, 3, v144")
            a("s_lshr_b32 s13, s6, 1"); a("s_lshl_b32 s15, s13, 6")
            a("s_mul_i32 s13, s13, s94"); a("s_add_u32 s13, s13, s93")
            a("s_and_b32 s43, s6, 1"); a("s_mul_i32 s43, s43, 3")
            a("s_lshl_b32 s42, s43, 11"); a("s_add_u32 s15, s15, s42"); a(f"s_add_u32 s15, s15, {J3L}")
            a("s_lshl_b32 s43, s43, 10"); a("s_add_u32 s13, s13, s43")
            a("v_add_u32 v144, s15, v144")
            a("v_add_u32 v145, s99, v144")
            for i in range(3):
                a(f"ds_read_b64_tr_b16 v[{132+4*i}:{133+4*i}], v144 offset:{i*2048}")
                a(f"ds_read_b64_tr_b16 v[{134+4*i}:{135+4*i}], v145 offset:{i*2048}")
            a("s_waitcnt lgkmcnt(0)")
            for i in range(3):
                a(f"buffer_store_dwordx4 v[{132+4*i}:{135+4*i}], v3, s[36:39], s13 offen offset:{i*1024} sc1"); vm.issue("j3st")
        def g2_flag():
            l = a.uid("g2f")
            a("s_cmp_lg_u32 s6, 3"); a(f"s_cbranch_scc1 {l}")
            a("s_lshl_b32 s13, s2, 2"); a(f"s_add_u32 s13, s13, {GFL + 3072}")
            a(f"v_mov_b32 v{VT+2}, 0"); a(f"v_mov_b32 v{VT+3}, s{NONCE}")
            a("s_mov_b64 exec, 1")
            a(f"buffer_store_dword v{VT+3}, v{VT+2}, s[36:39], s13 offen sc1"); vm.issue("g2f", True)
            a("s_mov_b64 exec, -1")
            a.label(l)
        def g2_issue():
            a(f"s_mov_b32 s13, {GFL + 3072}")
            a("buffer_load_dwordx4 v[132:135], v3, s[36:39], s13 offen sc1"); vm.issue("g2p")
        def g2_check():
            lp, ld = a.uid("g2p"), a.uid("g2d")
            vm.wait("g2p")
            a("s_mov_b32 s43, 0x4000")
            a(f"s_mov_b32 s13, {GFL + 3072}")
            a.label(lp)
            for r in range(132, 136): a(f"v_xor_b32 v{r}, s{NONCE}, v{r}")
            a("v_or_b32 v132, v132, v133"); a("v_or_b32 v134, v134, v135"); a("v_or_b32 v132, v132, v134")
            a("v_cmp_ne_u32 vcc, 0, v132")
            a("s_sub_u32 s43, s43, 1")
            a("s_nop 3")
            a(f"s_cbranch_vccz {ld}")
            a("s_cmp_eq_u32 s43, 0"); a(f"s_cbranch_scc1 {ld}")
            a("s_sleep 2")
            a("buffer_load_dwordx4 v[132:135], v3, s[36:39], s13 offen sc1")
            a("s_waitcnt vmcnt(0)")
            a(f"s_branch {lp}")
            a.label(ld)
        def gw1_wait():
            lp, ld = a.uid("gw1p"), a.uid("gw1d")
            a("s_mov_b32 s43, 0x8000")
            a(f"s_mov_b32 s13, {GFL + 1024}")
            a.label(lp)
            a("buffer_load_dwordx4 v[132:135], v3, s[36:39], s13 offen sc1")
            a("s_waitcnt vmcnt(0)")
            for r in range(132, 136): a(f"v_xor_b32 v{r}, s{NONCE}, v{r}")
            a("v_or_b32 v132, v132, v133"); a("v_or_b32 v134, v134, v135"); a("v_or_b32 v132, v132, v134")
            a("v_cmp_ne_u32 vcc, 0, v132")
            a("s_sub_u32 s43, s43, 1")
            a("s_nop 3")
            a(f"s_cbranch_vccz {ld}")
            a("s_cmp_eq_u32 s43, 0"); a(f"s_cbranch_scc1 {ld}")
            a("s_sleep 4")
            a(f"s_branch {lp}")
            a.label(ld)
            vm.q = []
        segs["B4"] += [j3_out]
        segs["S1"] += [lambda: [a1_load(i) for i in range(DA)], lambda: (b1_load(0), b1_load(1))]
        segs["C0"] += [g2_flag]
        n1 = [int(x) for x in X("F1SCHED%d" % n, "0,0,10,15,15,10,10,10,10" if full_b else "0,0,10,15,15,14,13,13").split(",")]
        order = BARS
        k = 0
        for b, m in zip(order, n1):
            for e in steps[k:k + m]:
                segs[b].append(e)
                k += 1
                if k == npub0: segs[b].append(lambda: (vm.wait("hst0"), set_flag(vm, 0)))
        assert k == 80
        last1 = order[len(n1) - 1]
        bmid = order[len(n1)]
        segs[bmid].append(mid)
        n2 = [int(x) for x in X("F2SCHED%d" % n, "4,4,4,4,4,4,3" if full_b else "4,4,4,3,3,3,3,3").split(",")]
        F2 = [f2(s) for s in range(NS)]
        k = 0
        for b, m in zip(order[len(n1) + 1:], n2):
            segs[b] += F2[k:k + m]; k += m
        assert k == NS and order[len(n1) + len(n2)] in ("C13",), (order[len(n1) + len(n2)])
        segs["C14"] += [lambda: hi(a), red_write]
        segs["C15"] += [red_read]
        for b in BARS:
            barrier(a, vm, b)
            if b == "B4" and not HS: stamp(a, 2)
            if b == bmid and not HS: stamp(a, 3)
            if b == order[len(n1) + 1] and not HS: stamp(a, 4)
            if b == "C14" and not HS: stamp(a, 5)
            for fn in segs[b]: fn()
        if not HS: stamp(a, 6)
        if HS == "G": stamp(a, 6)
        stamp_rt(a, 7); stamp_store(a, 8)
        bstamp_store(a)
        a(f"s_branch {lend}")
    lodd = f"{name}_ffn_odd"
    a("s_cmp_eq_u32 s9, 1")
    a(f"s_cbranch_scc1 {lodd}")
    path(3)
    a.label(lodd)
    path(2)
    return []
```

```python
from asmlib import *
from layout import *
from k0 import srd, kd
import os
import k2
from k2 import X, ST, mfma32, mfma8, attn_tile, Q1, Q2, KB, VB, P, S, O, E, THR, stamp, stamp_rt, stamp_store

XT = 42240; XC = 528; XKS = 1056
KVL = 84480
WKVL = KVL
SB = (KVL + 25600, KVL + 46080, KVL)
STAGE_BUF = (0, 1, 0, 2, 1)
J3L = KVL + 66560
QXL = KVL
NONCE_L = 163824
LDS_MAIN = 163840
CODE_PF_KB = 40
NONCE = 98

HS = X("HSTAMP")
def hstamp(a, who, i):
    if HS == who: stamp(a, i)
def nstamp(a, i):
    if not HS: stamp(a, i)
def rstamp(a, i):
    if HS == "R": stamp_rt(a, i)
def spin_timeout(a, sreg): a(f"s_mov_b32 s{sreg}, 0x8000")

def j3b_params(a):
    lo2, lg2 = a.uid("h_j2o"), a.uid("h_j2g")
    a("s_sub_u32 s83, s2, 220"); a("s_cmp_ge_u32 s2, 220"); a("s_cselect_b32 s83, s83, s2")
    a("s_cmp_ge_u32 s83, 180"); a(f"s_cbranch_scc1 {lo2}")
    a(f"s_mul_hi_u32 s80, s83, {(1 << 32)//10 + 1}")
    a("s_mul_i32 s81, s80, 10"); a("s_sub_u32 s81, s83, s81")
    a(f"s_mul_i32 s92, s80, {96*1280}"); a("s_lshl_b32 s82, s81, 7"); a("s_add_u32 s92, s92, s82")
    a(f"s_mul_i32 s93, s81, {2*W2K*1024}"); a("s_mul_i32 s82, s80, 6144"); a("s_add_u32 s93, s93, s82"); a(f"s_add_u32 s93, s93, {W2F}")
    a(f"s_mov_b32 s94, {W2K*1024}"); a("s_mov_b32 s95, 4"); a("s_movk_i32 s99, 1024")
    a(f"s_branch {lg2}")
    a.label(lo2)
    a("s_sub_u32 s83, s83, 180")
    a(f"s_mul_hi_u32 s80, s83, {(1 << 32)//10 + 1}")
    a("s_mul_i32 s81, s80, 10"); a("s_sub_u32 s81, s83, s81")
    a("s_mul_i32 s80, s80, 5"); a("s_add_u32 s80, s80, 20"); a("s_min_u32 s80, s80, 34")
    a(f"s_mul_i32 s92, s80, {16*1280}"); a("s_lshl_b32 s82, s81, 7"); a("s_add_u32 s92, s92, s82")
    a(f"s_mul_i32 s93, s81, {2*40*1024}"); a("s_lshl_b32 s82, s80, 10"); a("s_add_u32 s93, s93, s82"); a(f"s_add_u32 s93, s93, {WOF}")
    a("s_mov_b32 s94, 40960"); a("s_mov_b32 s95, 8"); a("s_movk_i32 s99, 512")
    a.label(lg2)


def tail_setup(a):
    srd(a, 52, 20, WOF_SZ, WOF)
    srd(a, 56, 20, OF_SZ, OF)
    a("s_mul_i32 s80, s3, 43"); a("s_lshr_b32 s80, s80, 7")
    for w_ in range(12): assert (w_*43) >> 7 == w_//3
    a("s_mul_i32 s81, s80, 3"); a("s_sub_u32 s81, s3, s81")
    a("s_lshr_b32 s82, s4, 1"); a("s_mul_i32 s82, s82, 5"); a("s_and_b32 s83, s4, 1"); a("s_mul_i32 s84, s83, 3"); a("s_add_u32 s82, s82, s84")
    a("s_add_u32 s82, s82, s81"); a("s_mul_i32 s84, s82, 40960")
    a("s_mul_i32 s82, s80, 10240"); a("s_add_u32 s84, s84, s82")
    a("s_lshl_b32 s86, s80, 0"); a("s_mul_i32 s86, s80, 10240")
    a("s_cmp_eq_u32 s81, 2"); a("s_cselect_b32 s85, s83, 0"); a("s_xor_b32 s85, s85, 1")

def tail_wo_loads(a, reg):
    for k in range(10):
        a(f"s_add_u32 s80, s84, {(k//4)*4096}")
        a(f"buffer_load_dwordx4 v[{reg+4*k}:{reg+4*k+3}], v3, s[52:55], s80 offen offset:{(k%4)*1024} sc1")

def tail_gemm(a, wo, acc, br):
    for i in range(4):
        a(f"s_add_u32 s80, s3, {12*i}")
        a("s_mul_i32 s81, s80, 52429"); a("s_lshr_b32 s81, s81, 18")
        a("s_mul_i32 s82, s81, 5"); a("s_sub_u32 s82, s80, s82")
        a("s_mul_i32 s81, s81, 10240"); a("s_lshl_b32 s82, s82, 10")
        a(f"s_add_u32 s{92+i}, s81, s82")
    a("s_mul_i32 s83, s5, 81920")
    l4 = [a.uid("t_no4"), a.uid("t_no4")]
    for st in range(2):
        for i in range(4):
            if i == 3:
                a("s_cmp_ge_u32 s3, 4"); a(f"s_cbranch_scc1 {l4[st]}")
            a(f"s_add_u32 m0, s{92+i}, {st*5120}")
            a("s_add_u32 s80, m0, s83")
            a("buffer_load_dwordx4 v3, s[56:59], s80 offen sc1 lds")
        a.label(l4[st])
    a(f"v_add_u32 v1, s86, v3"); a("v_add_u32 v2, 40960, v1")
    lskip, ldone = a.uid("t_skip"), a.uid("t_done")
    lw4, lwd = a.uid("t_w4"), a.uid("t_wd")
    a("s_cmp_lt_u32 s3, 4"); a(f"s_cbranch_scc1 {lw4}")
    a("s_waitcnt vmcnt(3)"); a(f"s_branch {lwd}")
    a.label(lw4); a("s_waitcnt vmcnt(4)")
    a.label(lwd)
    a("s_barrier")
    hstamp(a, "T", 5)
    def bl(k):
        r = br + 8*(k % 4)
        a(f"ds_read_b128 v[{r}:{r+3}], v1 offset:{k*1024}")
        a(f"ds_read_b128 v[{r+4}:{r+7}], v2 offset:{k*1024}")
    def half(h):
        k0 = 5*h
        for k in range(k0, k0 + 3): bl(k)
        for k in range(k0, k0 + 5):
            if k + 3 < k0 + 5: bl(k + 3)
            a(f"s_waitcnt lgkmcnt({2*min(3, k0 + 4 - k)})")
            r = br + 8*(k % 4)
            a(mfma32(acc, wo + 4*k, r, None if k == 0 else acc))
            a(mfma32(acc + 16, wo + 4*k, r + 4, None if k == 0 else acc + 16))
    a("s_cmp_eq_u32 s85, 0"); a(f"s_cbranch_scc1 {lskip}")
    half(0)
    a("s_waitcnt vmcnt(0)")
    a("s_barrier")
    half(1)
    a("s_barrier")
    a("s_lshl_b32 s80, s3, 13"); a("v_add_u32 v1, s80, v3")
    a("s_nop 7")
    for tt in range(2):
        for i in range(4):
            a(f"ds_write_b128 v1, v[{acc+16*tt+4*i}:{acc+16*tt+4*i+3}] offset:{(tt*4+i)*1024}")
    a("s_waitcnt lgkmcnt(0)")
    a(f"s_branch {ldone}")
    a.label(lskip)
    a("s_waitcnt vmcnt(0)")
    a("s_barrier")
    a("s_barrier")
    a.label(ldone)
    a("s_barrier")

def gen_attn(a, name, prio):
    if X("PRIOX"): a("s_setprio 3")
    srd(a, 24, 22, X_SZ)
    srd(a, 28, 20, KV_SZ, KV)
    srd(a, 36, 20, YF + YF_SZ)
    srd(a, 32, 8, 640*640*2)
    a("s_lshr_b32 s6, s3, 1")
    a("s_lshl_b32 s7, s4, 2")
    a("s_add_u32 s6, s6, s7")
    a("s_and_b32 s7, s3, 1")
    XR = (88, 108)
    a("v_lshrrev_b32 v10, 4, v0")
    a("v_and_b32 v11, 15, v0")
    a("s_and_b32 s11, s4, 6"); a("s_add_u32 s11, s11, s3"); a("s_and_b32 s11, s11, 7")
    a("s_lshl_b32 s8, s11, 3")
    a("v_add_u32 v12, s8, v10")
    a("s_lshl_b32 s9, s5, 6")
    a("v_add_u32 v13, s9, v12")
    a("v_mul_u32_u24 v13, 1280, v13")
    a("v_lshl_add_u32 v13, v11, 4, v13")
    for ps in range(2):
        a(f"s_mov_b32 s10, {ps*4*1280}")
        for j in range(5):
            a(f"buffer_load_dwordx4 v[{XR[ps]+4*j}:{XR[ps]+4*j+3}], v13, s[24:27], s10 offen offset:{256*j}")
    if X("TOUCH", "1") == "1":
        lt, ltb = a.uid("a_notouch"), a.uid("a_touchb")
        a("s_cmp_lt_u32 s3, 4"); a(f"s_cbranch_scc1 {lt}")
        a("s_cmp_ge_u32 s3, 6"); a(f"s_cbranch_scc1 {ltb}")
        a("s_lshr_b32 s10, s5, 3"); a("s_mul_i32 s10, s10, 96")
        a("s_sub_u32 s42, s3, 4"); a("s_lshl_b32 s42, s42, 6"); a("s_add_u32 s10, s10, s42")
        a("v_add_u32 v150, s10, v0")
        a("v_cmp_gt_u32 vcc, 192, v150")
        a("v_add_u32 v151, 128, v150"); a("v_add_u32 v152, 256, v150")
        a("v_cndmask_b32 v151, v152, v151, vcc")
        a("v_mul_u32_u24 v151, 1280, v151")
        a("s_mul_i32 s10, s4, 160")
        a("s_cmp_eq_u32 s3, 5"); a("s_cselect_b32 exec_hi, 0, -1")
        a("buffer_load_dword v153, v151, s[32:35], s10 offen")
        a("buffer_load_dword v154, v151, s[32:35], s10 offen offset:128")
        a("s_mov_b64 exec, -1")
        a(f"s_branch {lt}")
        a.label(ltb)
        j3b_params(a)
        lt2o, lt2g = a.uid("a_t2o"), a.uid("a_t2g")
        a("s_cmp_eq_u32 s99, 512"); a(f"s_cbranch_scc1 {lt2o}")
        srd(a, 32, 18, 1728*640*2)
        a(f"s_branch {lt2g}")
        a.label(lt2o)
        srd(a, 32, 14, 640*640*2)
        a.label(lt2g)
        a("s_sub_u32 s42, s3, 6"); a("s_mul_i32 s42, s42, 81920"); a("s_add_u32 s42, s42, s92")
        a("v_mul_u32_u24 v151, 1280, v0")
        a("s_cmp_eq_u32 s3, 7"); a("s_cselect_b32 exec_hi, 0, -1")
        a("buffer_load_dword v153, v151, s[32:35], s42 offen")
        a("s_mov_b64 exec, -1")
        a.label(lt)
    if X("PRIOX"): a("s_setprio 0")
    if X("B0", "1") == "1": a("s_barrier")
    a("s_lshr_b32 s10, s11, 2"); a(f"s_mul_i32 s10, s10, {XT}")
    a("v_and_b32 v14, 31, v12")
    a("v_lshlrev_b32 v14, 4, v14")
    a(f"v_mul_u32_u24 v15, {XC}, v11")
    a("v_add3_u32 v14, v14, v15, s10")
    a(f"v_add_u32 v1, {KVL}, v3")
    a("v_lshlrev_b32 v2, 3, v0")
    a(f"v_add_u32 v2, {KVL}, v2")
    a("v_mov_b32 v16, 0x3f803f80")
    for ps in range(2):
        R = XR[ps]
        a("v_mov_b32 v17, 0"); a("v_mov_b32 v18, 0")
        if ps == 0: hstamp(a, "A", 2)
        base = 5 if ps == 0 else 0
        if X("TOUCH", "1") == "1":
            l0, l1, l2 = a.uid("a_wx"), a.uid("a_wx"), a.uid("a_wx")
            a("s_cmp_lt_u32 s3, 4"); a(f"s_cbranch_scc1 {l0}")
            a("s_cmp_lt_u32 s3, 6"); a(f"s_cbranch_scc1 {l1}")
            a(f"s_waitcnt vmcnt({base + 1})"); a(f"s_branch {l2}")
            a.label(l1); a(f"s_waitcnt vmcnt({base + 2})"); a(f"s_branch {l2}")
            a.label(l0); a(f"s_waitcnt vmcnt({base})")
            a.label(l2)
        else:
            a(f"s_waitcnt vmcnt({base})")
        hstamp(a, "A", 3 + ps)
        if ps == 1:
            npf = 0
            if X("WQPF", "0") == "1":
                lnp = a.uid("a_nopf")
                a("s_cmp_ge_u32 s3, 6"); a(f"s_cbranch_scc1 {lnp}")
                a("s_lshl_b32 s10, s3, 6"); a("s_add_u32 s10, s10, 128")
                a("s_add_u32 s11, s10, 128"); a("s_cmp_ge_u32 s3, 3"); a("s_cselect_b32 s10, s11, s10")
                a("v_add_u32 v150, s10, v0"); a("v_mul_u32_u24 v150, 1280, v150")
                a("s_mul_i32 s10, s4, 160")
                a("buffer_load_dword v151, v150, s[32:35], s10 offen")
                a("buffer_load_dword v152, v150, s[32:35], s10 offen offset:128")
                a.label(lnp)
                npf = 0
        for i in range(20):
            a(f"v_dot2_f32_bf16 v17, v{R+i}, v16, v17")
            a(f"v_dot2_f32_bf16 v18, v{R+i}, v{R+i}, v18")
        for sh in (8, 4, 2, 1):
            a("s_nop 1")
            a(f"v_add_f32_dpp v17, v17, v17 row_ror:{sh} row_mask:0xf bank_mask:0xf")
            a(f"v_add_f32_dpp v18, v18, v18 row_ror:{sh} row_mask:0xf bank_mask:0xf")
        a("s_nop 0")
        a(f"v_mul_f32 v17, {f2u(1/640.):#x}, v17")
        a(f"v_mul_f32 v18, {f2u(1/640.):#x}, v18")
        a("v_fma_f32 v18, -v17, v17, v18")
        a("v_max_f32 v18, 0, v18")
        a(f"v_add_f32 v18, {f2u(1e-5):#x}, v18")
        a("v_rsq_f32 v18, v18")
        a("s_nop 0")
        a(f"v_mul_f32 v18, {f2u(LOG2E):#x}, v18")
        a("v_mul_f32 v19, v17, v18")
        for j in range(5):
            for i in range(4):
                r = R + 4*j + i
                t = 20 + 2*(i & 1)
                a(f"v_lshlrev_b32 v{t}, 16, v{r}")
                a(f"v_and_b32 v{t+1}, 0xffff0000, v{r}")
                a(f"v_fma_f32 v{t}, v{t}, v18, -v19")
                a(f"v_fma_f32 v{t+1}, v{t+1}, v18, -v19")
                a(f"v_cvt_pk_bf16_f32 v{r}, v{t}, v{t+1}")
            a(f"ds_write_b128 v14, v[{R+4*j}:{R+4*j+3}] offset:{j*16*XC + ps*64}")
    a("s_waitcnt lgkmcnt(0)")
    hstamp(a, "A", 5)
    a("s_barrier")
    hstamp(a, "A", 6)
    nstamp(a, 2)
    dbg_mark(a, 0, 1, vt=160, nl=2, sreg=78)
    if prio is not None: a(f"s_setprio {prio}")
    a("v_lshrrev_b32 v16, 5, v0")
    a("v_and_b32 v17, 31, v0")
    a(f"v_mul_u32_u24 v10, {XC}, v16")
    a("v_lshl_add_u32 v10, v17, 4, v10")
    a(f"s_mul_i32 s10, s7, {20*XKS}")
    a("v_add_u32 v10, s10, v10")
    a(f"v_add_u32 v11, {XT}, v10")
    a("v_and_b32 v17, 15, v0"); a("v_lshrrev_b32 v18, 2, v17")
    a("v_lshl_add_u32 v18, v16, 3, v18")
    a("s_lshl_b32 s10, s7, 6"); a("v_add_u32 v18, s10, v18")
    a("v_mul_u32_u24 v18, 160, v18")
    a("v_bfe_u32 v19, v0, 4, 1"); a("v_lshl_add_u32 v18, v19, 5, v18")
    a("v_and_b32 v19, 3, v17"); a("v_lshl_add_u32 v18, v19, 3, v18")
    a("s_lshr_b32 s10, s3, 1"); a("s_mul_i32 s10, s10, 40")
    a("v_add_u32 v18, s10, v18")
    for b in range(3): a(f"v_add_u32 v{12+b}, {SB[b]}, v18")
    D0, D1 = S
    AQ = 88; BQ = (104, 136)
    def bread(st):
        b = BQ[st & 1]
        for kk in range(4):
            ks = 4*st + kk
            a(f"ds_read_b128 v[{b+8*kk}:{b+8*kk+3}], v10 offset:{ks*XKS}")
            a(f"ds_read_b128 v[{b+8*kk+4}:{b+8*kk+7}], v11 offset:{ks*XKS}")
    bread(0)
    for st in range(5):
        if st > 0: a("s_barrier")
        if st > 0: hstamp(a, "Q", st + 1)
        vb = 12 + STAGE_BUF[st]
        for kk in range(4):
            a(f"ds_read_b64_tr_b16 v[{AQ+4*kk}:{AQ+4*kk+1}], v{vb} offset:{kk*16*160}")
            a(f"ds_read_b64_tr_b16 v[{AQ+4*kk+2}:{AQ+4*kk+3}], v{vb} offset:{kk*16*160 + 640}")
        b = BQ[st & 1]
        for kk in range(4):
            ks = 4*st + kk
            nxt = 8 if (st < 4 and kk >= 1) else 0
            a(f"s_waitcnt lgkmcnt({min(15, 2*(3 - kk) + nxt)})")
            a(mfma32(D0, AQ + 4*kk, b + 8*kk, None if ks == 0 else D0))
            a(mfma32(D1, AQ + 4*kk, b + 8*kk + 4, None if ks == 0 else D1))
            if kk == 0 and st < 4: bread(st + 1)
        if st < 4: a("s_waitcnt lgkmcnt(0)")
    a("s_mul_i32 s44, s3, 3072")
    a(f"s_add_u32 s44, s44, {QXL}")
    a("v_add_u32 v12, s44, v3")
    a("s_xor_b32 s45, s3, 1"); a("s_mul_i32 s45, s45, 3072"); a(f"s_add_u32 s45, s45, {QXL}")
    a("v_add_u32 v13, s45, v3")
    lp1, lpd = a.uid("qx1"), a.uid("qxd")
    a("s_nop 7")
    a("s_cmp_eq_u32 s7, 1"); a(f"s_cbranch_scc1 {lp1}")
    for i in range(3): a(f"ds_write_b128 v12, v[{D1+4*i}:{D1+4*i+3}] offset:{i*1024}")
    a(f"s_branch {lpd}")
    a.label(lp1)
    for i in range(3): a(f"ds_write_b128 v12, v[{D0+4*i}:{D0+4*i+3}] offset:{i*1024}")
    a("s_waitcnt lgkmcnt(0)")
    for r in range(12): a(f"v_mov_b32 v{D0+r}, v{D1+r}")
    a.label(lpd)
    a("s_waitcnt lgkmcnt(0)")
    a("s_barrier")
    hstamp(a, "Q", 6)
    dbg_mark(a, 0, 2, vt=160, nl=2, sreg=78)
    for i in range(3): a(f"ds_read_b128 v[{D1+4*i}:{D1+4*i+3}], v13 offset:{i*1024}")
    a("v_cmp_gt_u32 vcc, 32, v0")
    a("s_waitcnt lgkmcnt(0)")
    D = D0
    for r in range(12): a(f"v_add_f32 v{D+r}, v{D+r}, v{D1+r}")
    for r in range(8, 12): a(f"v_cndmask_b32 v{D+r}, 0, v{D+r}, vcc")
    a(f"s_mov_b32 s45, {f2u(QSCALE):#x}")
    for r in range(12): a(f"v_mul_f32 v{D+r}, s45, v{D+r}")
    a(f"v_mul_f32 v136, v{D}, v{D}")
    for r in range(1, 12): a(f"v_fmac_f32 v136, v{D+r}, v{D+r}")
    for r in range(4): a(f"v_cvt_pk_bf16_f32 v{Q1+r}, v{D+2*r}, v{D+2*r+1}")
    for r in range(2): a(f"v_cvt_pk_bf16_f32 v{Q2+r}, v{D+8+2*r}, v{D+8+2*r+1}")
    a("v_mov_b32 v137, v136"); a("s_nop 1")
    a("v_permlane32_swap_b32 v136, v137"); a("s_nop 1")
    a("v_add_f32 v136, v136, v137")
    for r in range(16): a(f"v_mov_b32 v{O+r}, 0")
    for r in range(8): a(f"v_mov_b32 v{P+r}, 0")
    for r in range(8): a(f"v_mov_b32 v{E+r}, 0")
    for r in range(4): a(f"v_mov_b32 v{VB[1][1]+r}, 0")
    nstamp(a, 3)
    lw, lwp = a.uid("a_gw"), a.uid("a_gp")
    a("s_cmp_lg_u32 s3, 0"); a(f"s_cbranch_scc1 {lw}")
    a(f"v_mov_b32 v140, {NONCE_L}")
    a("ds_read_b32 v141, v140")
    spin_timeout(a, 42)
    a(f"s_mov_b32 s43, {GFL}")
    a("s_waitcnt lgkmcnt(0)")
    a("v_readfirstlane_b32 s44, v141")
    a.label(lwp)
    a("buffer_load_dwordx4 v[140:143], v3, s[36:39], s43 offen sc1")
    a("buffer_load_dwordx4 v[144:147], v3, s[36:39], s43 offen offset:1024 sc1")
    a("s_waitcnt vmcnt(0)")
    for r in range(140, 148): a(f"v_xor_b32 v{r}, s44, v{r}")
    for r in range(141, 148): a(f"v_or_b32 v140, v140, v{r}")
    a("v_cmp_ne_u32 vcc, 0, v140")
    a("s_sub_u32 s42, s42, 1")
    a("s_nop 3")
    a(f"s_cbranch_vccz {lw}")
    a("s_cmp_eq_u32 s42, 0"); a(f"s_cbranch_scc1 {lw}")
    a(f"s_sleep {X('GSLEEP', '4')}")
    a(f"s_branch {lwp}")
    a.label(lw)
    a("s_barrier")
    dbg_mark(a, 0, 3, vt=160, nl=2, sreg=78)
    a(f"s_mov_b32 s43, {KMX}")
    a(f"buffer_load_dwordx4 v[140:143], v3, s[36:39], s43 offen sc1")
    a("s_waitcnt vmcnt(0)")
    a("v_max_f32 v140, v140, v142")
    a("v_max_f32 v141, v141, v143")
    for sh in (8, 4, 2, 1):
        a("s_nop 1")
        a(f"v_max_f32_dpp v140, v140, v140 row_ror:{sh} row_mask:0xf bank_mask:0xf")
        a(f"v_max_f32_dpp v141, v141, v141 row_ror:{sh} row_mask:0xf bank_mask:0xf")
    for sw in ("16", "32"):
        a("v_mov_b32 v142, v140"); a("v_mov_b32 v143, v141"); a("s_nop 1")
        a(f"v_permlane{sw}_swap_b32 v140, v142"); a(f"v_permlane{sw}_swap_b32 v141, v143"); a("s_nop 1")
        a("v_max_f32 v140, v140, v142"); a("v_max_f32 v141, v141, v143")
    a("v_add_f32 v140, v140, v141")
    a("v_mul_f32 v136, v136, v140")
    a(f"s_mov_b32 s45, {f2u(THR*THR):#x}")
    a("v_cmp_nle_f32 vcc, v136, s45")
    lfast = a.uid("attn_fast")
    a("s_nop 4")
    a(f"s_cbranch_vccz {lfast}")
    lm = a.uid("attn_maxloop")
    M = 136; TK = 140
    a(f"v_mov_b32 v{M}, 0xff800000")
    a("s_mov_b32 s46, 0")
    a(f"v_lshlrev_b32 v{M+1}, 3, v0")
    a.label(lm)
    a(f"buffer_load_dwordx4 v[{TK}:{TK+3}], v3, s[28:31], s46 offen sc1")
    a(f"buffer_load_dwordx2 v[{TK+4}:{TK+5}], v{M+1}, s[28:31], s46 offen offset:1024 sc1")
    a("s_waitcnt vmcnt(0)")
    a(mfma32(S[1], TK, Q1, None))
    a(mfma8(S[1], TK+4, Q2, S[1]))
    a("s_add_u32 s46, s46, 4096")
    a("s_nop 15")
    for r in range(0, 16, 2): a(f"v_max3_f32 v{M}, v{M}, v{S[1]+r}, v{S[1]+r+1}")
    a(f"s_cmp_lt_u32 s46, {64*4096}")
    a(f"s_cbranch_scc1 {lm}")
    a(f"v_mov_b32 v{M+2}, v{M}"); a("s_nop 1")
    a(f"v_permlane32_swap_b32 v{M}, v{M+2}"); a("s_nop 1")
    a(f"v_max_f32 v{M}, v{M}, v{M+2}")
    a(f"v_xor_b32 v{M}, 0x80000000, v{M}")
    a(f"v_and_b32 v{M+1}, 0xffff0000, v{M}")
    a(f"v_sub_f32 v{M+2}, v{M}, v{M+1}")
    a(f"v_and_b32 v{M+3}, 0xffff0000, v{M+2}")
    a(f"v_sub_f32 v{M+2}, v{M+2}, v{M+3}")
    a(f"v_lshrrev_b32 v{M+2}, 16, v{M+2}")
    a(f"v_lshrrev_b32 v{M+1}, 16, v{M+1}")
    a(f"v_or_b32 v{M+1}, v{M+1}, v{M+3}")
    a("v_cmp_lt_u32 vcc, 31, v0")
    a("s_nop 1")
    a(f"v_cndmask_b32 v{Q2}, v{Q2}, v{M+1}, vcc")
    a(f"v_cndmask_b32 v{Q2+1}, v{Q2+1}, v{M+2}, vcc")
    a.label(lfast)
    a("s_barrier")
    a(f"ds_read_b128 v[{KB[0][0]}:{KB[0][0]+3}], v1 offset:0")
    a(f"ds_read_b64 v[{KB[0][1]}:{KB[0][1]+1}], v2 offset:1024")
    a("s_waitcnt lgkmcnt(0)")
    a(mfma32(S[0], KB[0][0], Q1, None))
    a(mfma8(S[0], KB[0][1], Q2, S[0]))
    a(f"ds_read_b128 v[{KB[1][0]}:{KB[1][0]+3}], v1 offset:{4096}")
    a(f"ds_read_b64 v[{KB[1][1]}:{KB[1][1]+1}], v2 offset:{4096+1024}")
    a(f"ds_read_b128 v[{VB[0][0]}:{VB[0][0]+3}], v1 offset:2048")
    a(f"ds_read_b128 v[{VB[0][1]}:{VB[0][1]+3}], v1 offset:3072")
    a("s_nop 7")
    nstamp(a, 4)
    dbg_mark(a, 0, 4, vt=160, nl=2, sreg=78)
    tail_setup(a)
    a("s_mov_b32 s47, 4")
    lp = a.uid("attn_loop")
    body = Asm()
    WOR = 104
    for t in range(16):
        if t % 4 == 0 and t > 0: body("s_barrier")
        if t == 12:
            lw = body.uid("nowo")
            body("s_cmp_lg_u32 s47, 1"); body(f"s_cbranch_scc1 {lw}")
            tail_wo_loads(body, WOR)
            body.label(lw)
        attn_tile(body, t)
    a.label(lp)
    a.lines += body.lines
    a("s_sub_u32 s47, s47, 1")
    a("s_cmp_eq_u32 s47, 0")
    lout = a.uid("attn_out")
    a(f"s_cbranch_scc1 {lout}")
    a("s_barrier")
    a(f"s_branch {lp}")
    a.label(lout)
    nstamp(a, 5)
    hstamp(a, "T", 1)
    dbg_mark(a, 0, 5, vt=160, nl=2, sreg=78)
    a(f"v_cvt_pk_bf16_f32 v{P+6}, v{E+4}, v{E+5}")
    a(f"v_cvt_pk_bf16_f32 v{P+7}, v{E+6}, v{E+7}")
    a("s_waitcnt lgkmcnt(0)")
    a("s_nop 0")
    a(mfma32(O, VB[1][1], P + 4, O))
    a("v_lshrrev_b32 v144, 5, v0")
    a("s_mul_i32 s48, s6, 5")
    a("v_add_u32 v145, s48, v144")
    a("v_and_b32 v146, 31, v0")
    a("v_lshlrev_b32 v146, 4, v146")
    def qoff(dst, q):
        a(f"v_lshrrev_b32 v147, 2, v{q}")
        a(f"v_lshlrev_b32 v{dst}, 10, v147")
        a(f"v_bfe_u32 v147, v{q}, 1, 1")
        a(f"v_lshl_add_u32 v{dst}, v147, 9, v{dst}")
        a(f"v_and_b32 v147, 1, v{q}")
        a(f"v_lshl_add_u32 v{dst}, v147, 3, v{dst}")
        a(f"v_add_u32 v{dst}, v{dst}, v146")
    qoff(148, 145)
    a("v_add_u32 v145, 2, v145")
    qoff(149, 145)
    a("s_add_u32 s48, s48, 4")
    a("v_mov_b32 v145, s48")
    qoff(150, 145)
    a("s_lshl_b32 s49, s5, 1")
    a("s_add_u32 s49, s49, s7")
    a("s_mul_i32 s49, s49, 40960")
    a(f"s_add_u32 s49, s49, {OF}")
    a(f"v_mov_b32 v152, v{O+8}")
    a(f"v_mov_b32 v153, v{O+8}")
    a("s_nop 1")
    a("v_permlane32_swap_b32 v152, v153")
    a("s_nop 1")
    a("v_rcp_f32 v153, v153")
    a("s_nop 0")
    for r in range(12): a(f"v_mul_f32 v{O+r}, v{O+r}, v153")
    for r in range(6): a(f"v_cvt_pk_bf16_f32 v{154+r}, v{O+2*r}, v{O+2*r+1}")
    a("buffer_store_dwordx2 v[154:155], v148, s[36:39], s49 offen" + ST)
    a("buffer_store_dwordx2 v[156:157], v149, s[36:39], s49 offen" + ST)
    a("v_cmp_gt_u32 vcc, 32, v0")
    a("s_and_saveexec_b64 s[50:51], vcc")
    a("buffer_store_dwordx2 v[158:159], v150, s[36:39], s49 offen" + ST)
    a("s_mov_b64 exec, s[50:51]")
    hstamp(a, "T", 2)
    a("s_waitcnt vmcnt(0)")
    hstamp(a, "T", 3)
    a("s_barrier")
    a("s_barrier")
    hstamp(a, "T", 4)
    tail_gemm(a, WOR, S[0], 64)
    dbg_mark(a, 0, 6, vt=160, nl=1, sreg=78)
    nstamp(a, 6); hstamp(a, "T", 6); stamp_rt(a, 7)
    stamp_store(a, 8)
    a("s_endpgm")
    return check_hazards(body.lines + body.lines, name + ":loop")

def tr_addr(a, dst, base_s, hm, delta):
    a(f"v_lshrrev_b32 v{dst}, 5, v0"); a(f"v_mul_lo_u32 v{dst}, v{dst}, {hm}")
    a(f"v_and_b32 v{dst+1}, 15, v0"); a(f"v_lshrrev_b32 v{dst+2}, 2, v{dst+1}"); a(f"v_add_u32 v{dst}, v{dst}, v{dst+2}")
    a(f"v_lshlrev_b32 v{dst}, 7, v{dst}")
    a(f"v_bfe_u32 v{dst+2}, v0, 4, 1"); a(f"v_lshl_add_u32 v{dst}, v{dst+2}, 5, v{dst}")
    a(f"v_and_b32 v{dst+2}, 3, v{dst+1}"); a(f"v_lshl_add_u32 v{dst}, v{dst+2}, 3, v{dst}")
    a(f"v_add_u32 v{dst}, {base_s}, v{dst}")
    a(f"v_add_u32 v{dst+1}, {delta}, v{dst}")

def gen_ffn_head(a, name):
    if not X("PRIOX"): a("s_setprio 3")
    srd(a, 28, 20, KV_SZ, KV)
    srd(a, 36, 20, YF + YF_SZ)
    lkvw, lcommon = a.uid("h_kvw"), a.uid("h_common")
    a("s_cmp_lt_u32 s6, 2"); a(f"s_cbranch_scc1 {lkvw}")
    srd(a, 32, 8, 640*640*2)
    l3, lq = a.uid("h_w3"), a.uid("h_wq")
    a("s_cmp_eq_u32 s6, 3"); a(f"s_cbranch_scc1 {l3}")
    lwo, lgo = a.uid("h_jo"), a.uid("h_jg")
    a("s_cmp_ge_u32 s2, 216"); a(f"s_cbranch_scc1 {lwo}")
    srd(a, 24, 16, 640*1728*2)
    a(f"s_mul_hi_u32 s54, s2, {(1 << 32)//27 + 1}")
    a("s_mul_i32 s55, s54, 27"); a("s_sub_u32 s55, s2, s55")
    a("s_mov_b32 s48, 3456")
    a(f"s_mul_i32 s49, s54, {80*3456}"); a("s_lshl_b32 s43, s55, 7"); a("s_add_u32 s49, s49, s43")
    a(f"s_mul_i32 s50, s55, {2*40*1024}"); a("s_mul_i32 s43, s54, 5120"); a("s_add_u32 s50, s50, s43"); a(f"s_add_u32 s50, s50, {W1F}")
    a(f"s_branch {lgo}")
    a.label(lwo)
    srd(a, 24, 14, 640*640*2)
    a("s_sub_u32 s42, s2, 216")
    a(f"s_mul_hi_u32 s54, s42, {(1 << 32)//10 + 1}")
    a("s_mul_i32 s55, s54, 10"); a("s_sub_u32 s55, s42, s55")
    a("s_mov_b32 s48, 1280")
    a(f"s_mul_i32 s49, s54, {80*1280}"); a("s_lshl_b32 s43, s55, 7"); a("s_add_u32 s49, s49, s43")
    a(f"s_mul_i32 s50, s55, {2*40*1024}"); a("s_mul_i32 s43, s54, 5120"); a("s_add_u32 s50, s50, s43"); a(f"s_add_u32 s50, s50, {WOF}")
    a.label(lgo)
    a("v_lshrrev_b32 v4, 3, v0"); a("v_mul_lo_u32 v4, v4, s48")
    a("v_and_b32 v5, 7, v0"); a("v_lshl_add_u32 v4, v5, 4, v4")
    a("v_mov_b32 v8, v4")
    a(f"s_branch {lq}")
    a.label(l3)
    if X("CODEPF", "0") == "1":
        lcp = a.uid("h_nocp")
        a("s_cmp_ge_u32 s2, 8"); a(f"s_cbranch_scc1 {lcp}")
        a("s_getpc_b64 s[54:55]")
        a.label(f"{name}_pc0")
        a(f"s_sub_u32 s54, s54, {name}_pc0-{name}"); a("s_subb_u32 s55, s55, 0")
        a("v_lshlrev_b32 v4, 7, v0")
        for i in range(CODE_PF_KB // 8):
            a(f"global_load_dword v{160+i}, v4, s[54:55]")
            a("s_add_u32 s54, s54, 8192"); a("s_addc_u32 s55, s55, 0")
        a.label(lcp)
    a("s_cmp_lg_u32 s2, 0"); a(f"s_cbranch_scc1 {lq}")
    a("s_memrealtime s[54:55]")
    a("s_waitcnt lgkmcnt(0)")
    a("s_or_b32 s54, s54, 1")
    a("v_mov_b32 v4, 0"); a("v_mov_b32 v5, s54")
    a("s_mov_b64 exec, 1")
    a("global_store_dword v4, v5, s[90:91] sc1")
    a("s_mov_b64 exec, -1")
    a.label(lq)
    WQ = 148
    a("s_sub_u32 s56, s6, 2")
    a(f"v_mul_u32_u24 v4, 26, v0"); a("v_lshrrev_b32 v4, 8, v4")
    for l_ in range(64): assert (l_*26) >> 8 == l_//10
    a("v_mul_u32_u24 v5, 10, v4"); a("v_sub_u32 v5, v0, v5")
    a("v_mul_u32_u24 v4, 1280, v4")
    a(f"v_lshl_add_u32 v{WQ}, v5, 4, v4")
    a("s_mul_i32 s57, s4, 160")
    a(f"s_mul_i32 s58, s56, {320*1280}"); a("s_add_u32 s58, s58, s57")
    a("s_mul_i32 s59, s56, 10240")
    a("s_mov_b32 s76, -1"); a("s_mov_b32 s77, 0x0fffffff")
    a("s_mov_b32 s78, -1"); a("s_mov_b32 s79, 0xff")
    NWQ = 11
    def wq_stage(st):
        a(f"s_add_u32 s41, s58, {st*64*1280}")
        a("s_mov_b64 exec, s[76:77]")
        for i in range(NWQ):
            if i == NWQ - 1: a("s_mov_b64 exec, s[78:79]")
            a(f"s_add_u32 m0, s59, {SB[STAGE_BUF[st]] + i*960}")
            a("s_nop 0")
            a(f"buffer_load_dwordx4 v{WQ}, s[32:35], s41 offen lds")
            if i < NWQ - 1: a("s_add_u32 s41, s41, 7680")
        a("s_mov_b64 exec, -1")
    if X("B0", "1") == "1": a("s_barrier")
    wq_stage(0); wq_stage(1)
    if X("PRIOX"): a("s_setprio 3")
    lw3, lbln = a.uid("h_w3b"), a.uid("h_bln")
    a("s_cmp_eq_u32 s6, 3"); a(f"s_cbranch_scc1 {lw3}")
    a("s_lshl_b32 s43, s48, 3")
    for i in range(10):
        a(f"s_mov_b32 m0, {J3L + i*1024}")
        a("s_nop 0")
        a("buffer_load_dwordx4 v8, s[24:27], s49 offen lds")
        a("s_add_u32 s49, s49, s43")
    j3b_params(a)
    tr_addr(a, 5, J3L, 8, 512)
    hstamp(a, "F", 2)
    a("s_waitcnt vmcnt(21)")
    hstamp(a, "F", 3)
    a("s_barrier")
    hstamp(a, "F", 4)
    a("s_waitcnt vmcnt(0)")
    hstamp(a, "F", 5)
    for nt in range(2):
        for kk in range(5):
            r = 16 + 4*(nt*5+kk)
            a(f"ds_read_b64_tr_b16 v[{r}:{r+1}], v5 offset:{nt*64 + kk*2048}")
            a(f"ds_read_b64_tr_b16 v[{r+2}:{r+3}], v6 offset:{nt*64 + kk*2048}")
        a("s_waitcnt lgkmcnt(0)")
        for kk in range(5):
            r = 16 + 4*(nt*5+kk)
            a(f"s_add_u32 s42, s50, {kk*1024 + nt*40960}")
            a(f"buffer_store_dwordx4 v[{r}:{r+3}], v3, s[36:39], s42 offen sc1")
    a(f"s_branch {lbln}")
    a.label(lw3)
    j3b_params(a)
    hstamp(a, "K", 2)
    a("s_waitcnt vmcnt(11)")
    a("s_barrier")
    lp, lpd = a.uid("h_np"), a.uid("h_npd")
    spin_timeout(a, 42)
    a("v_mov_b32 v4, 0")
    a.label(lp)
    a("global_load_dword v5, v4, s[90:91] sc1")
    a("s_waitcnt vmcnt(0)")
    a("v_readfirstlane_b32 s43, v5")
    a("s_sub_u32 s42, s42, 1")
    a("s_cmp_lg_u32 s43, 0"); a(f"s_cbranch_scc1 {lpd}")
    a("s_cmp_eq_u32 s42, 0"); a(f"s_cbranch_scc1 {lpd}")
    a("s_sleep 1")
    a(f"s_branch {lp}")
    a.label(lpd)
    hstamp(a, "K", 3)
    a(f"v_mov_b32 v4, {NONCE_L}")
    a("ds_write_b32 v4, v5")
    a("s_waitcnt lgkmcnt(0)")
    hstamp(a, "K", 4)
    a.label(lbln)
    hstamp(a, "F", 6)
    a("s_barrier")
    wq_stage(2); wq_stage(3)
    a(f"v_mov_b32 v4, {NONCE_L}")
    a("ds_read_b32 v5, v4")
    a("s_waitcnt lgkmcnt(0)")
    a(f"v_readfirstlane_b32 s{NONCE}, v5")
    a("s_waitcnt vmcnt(11)")
    a("s_barrier")
    wq_stage(4)
    lj2o, lj2g = a.uid("h_j2so"), a.uid("h_j2sg")
    a("s_cmp_eq_u32 s99, 512"); a(f"s_cbranch_scc1 {lj2o}")
    srd(a, 24, 18, 1728*640*2)
    a(f"s_branch {lj2g}")
    a.label(lj2o)
    srd(a, 24, 14, 640*640*2)
    a.label(lj2g)
    a("v_lshrrev_b32 v4, 3, v0"); a("v_mul_u32_u24 v4, 1280, v4")
    a("v_and_b32 v5, 7, v0"); a("v_lshl_add_u32 v4, v5, 4, v4")
    a("s_mul_i32 s48, s56, 61440"); a("s_add_u32 s48, s48, s92")
    a("s_mul_i32 s49, s56, 6144")
    for i in range(6):
        a(f"s_add_u32 m0, s49, {J3L + i*1024}")
        a("s_nop 0")
        a("buffer_load_dwordx4 v4, s[24:27], s48 offen lds")
        if i < 5: a("s_add_u32 s48, s48, 10240")
    lnf, lw2 = a.uid("h_nf"), a.uid("h_w2f")
    ldone = a.uid("h_done")
    a("v_mov_b32 v4, 0"); a(f"v_mov_b32 v5, s{NONCE}")
    a("s_cmp_eq_u32 s6, 3"); a(f"s_cbranch_scc1 {lnf}")
    a("s_lshl_b32 s42, s2, 2"); a(f"s_add_u32 s42, s42, {GFL + 1024}")
    a("s_mov_b64 exec, 1")
    a("buffer_store_dword v5, v4, s[36:39], s42 offen sc1")
    a("s_mov_b64 exec, -1")
    a("s_waitcnt vmcnt(18)"); a("s_barrier")
    a("s_waitcnt vmcnt(1)"); a("s_barrier")
    a(f"s_branch {ldone}")
    a.label(lnf)
    a("s_waitcnt vmcnt(17)"); a("s_barrier")
    a("s_lshl_b32 s42, s2, 2"); a(f"s_add_u32 s42, s42, {GFL}")
    a("s_mov_b64 exec, 1")
    a("buffer_store_dword v5, v4, s[36:39], s42 offen sc1")
    a("s_mov_b64 exec, -1")
    a("s_waitcnt vmcnt(1)"); a("s_barrier")
    a(f"s_branch {ldone}")
    a.label(lkvw)
    lv, lkv = a.uid("h_isv"), a.uid("h_kv")
    a("s_and_b32 s7, s4, 1")
    a("s_cmp_eq_u32 s7, 1"); a(f"s_cbranch_scc1 {lv}")
    srd(a, 44, 10, 25600)
    a(f"s_branch {lkv}")
    a.label(lv)
    srd(a, 44, 12, 25600)
    a.label(lkv)
    if X("B0", "1") == "1": a("s_barrier")
    a("s_lshr_b32 s42, s2, 3"); a("s_and_b32 s42, s42, 31"); a("s_mul_i32 s42, s42, 43"); a("s_lshr_b32 s42, s42, 7")
    a("s_lshl_b32 s40, s6, 10")
    for j in range(12):
        a(f"s_add_u32 s43, s42, {j}"); a("s_sub_u32 s41, s43, 12"); a("s_cmp_ge_u32 s43, 12"); a("s_cselect_b32 s43, s41, s43")
        a("s_lshl_b32 s43, s43, 11"); a("s_add_u32 s41, s43, s40")
        a(f"s_add_u32 m0, s41, {WKVL}")
        a("s_nop 0")
        a("buffer_load_dwordx4 v3, s[44:47], s41 offen lds")
    l24 = a.uid("h_no24")
    a("s_cmp_lg_u32 s6, 0"); a(f"s_cbranch_scc1 {l24}")
    a(f"s_mov_b32 m0, {WKVL + 24576}")
    a("s_movk_i32 s41, 24576")
    a("buffer_load_dwordx4 v3, s[44:47], s41 offen lds")
    a.label(l24)
    if X("PRIOX"): a("s_setprio 3")
    j3b_params(a)
    XF, WF, D = 4, 84, 164
    a("s_lshr_b32 s48, s4, 1")
    a("v_lshrrev_b32 v4, 4, v0")
    a("v_and_b32 v5, 15, v0")
    a("s_and_b32 s49, s48, 1"); a("s_lshl_b32 s50, s49, 4")
    a("v_add_u32 v6, s50, v5")
    a(f"v_mul_u32_u24 v1, {XC}, v4"); a("v_lshl_add_u32 v1, v6, 4, v1")
    a("s_lshr_b32 s51, s48, 1"); a(f"s_mul_i32 s51, s51, {XT}")
    a("v_add_u32 v1, s51, v1")
    a("v_lshrrev_b32 v2, 2, v5"); a("v_lshl_add_u32 v2, v4, 3, v2"); a("v_mul_u32_u24 v2, 40, v2")
    a("v_and_b32 v7, 3, v5"); a("v_lshl_add_u32 v2, v7, 3, v2")
    a("s_lshl_b32 s51, s6, 5"); a(f"s_add_u32 s51, s51, {WKVL}")
    a("v_add_u32 v2, s51, v2")
    a("s_lshl_b32 s52, s5, 1"); a("s_lshr_b32 s53, s48, 1"); a("s_add_u32 s52, s52, s53")
    a("s_lshl_b32 s52, s52, 12"); a(f"s_add_u32 s52, s52, {KV}")
    a("s_lshl_b32 s53, s5, 2"); a("s_add_u32 s53, s53, s48")
    hstamp(a, "K", 2)
    a("s_waitcnt vmcnt(0)")
    hstamp(a, "K", 3)
    rstamp(a, 2)
    a("s_barrier")
    hstamp(a, "K", 4)
    rstamp(a, 3)
    lvm, lmd = a.uid("h_vm"), a.uid("h_md")
    for ks in range(20):
        a(f"ds_read_b128 v[{XF+4*ks}:{XF+4*ks+3}], v1 offset:{ks*2*XKS}")
        a(f"ds_read_b64_tr_b16 v[{WF+4*ks}:{WF+4*ks+1}], v2 offset:{ks*1280}")
        a(f"ds_read_b64_tr_b16 v[{WF+4*ks+2}:{WF+4*ks+3}], v2 offset:{ks*1280+160}")
        if ks % 4 == 3: a("s_waitcnt lgkmcnt(3)")
    a("s_waitcnt lgkmcnt(0)")
    hstamp(a, "K", 5)
    a("s_barrier")
    hstamp(a, "K", 6)
    a(f"v_mov_b32 v1, {NONCE_L}")
    a("ds_read_b32 v2, v1")
    def kvmm(isv):
        for k in range(20):
            c = "0" if k == 0 else f"v[{D}:{D+3}]"
            x, w = f"v[{XF+4*k}:{XF+4*k+3}]", f"v[{WF+4*k}:{WF+4*k+3}]"
            a(f"v_mfma_f32_16x16x32_bf16 v[{D}:{D+3}], {x if isv else w}, {w if isv else x}, {c}")
    a("s_cmp_eq_u32 s7, 1"); a(f"s_cbranch_scc1 {lvm}")
    kvmm(False)
    a(f"s_branch {lmd}")
    a.label(lvm)
    kvmm(True)
    a.label(lmd)
    a("s_waitcnt lgkmcnt(0)")
    a(f"v_readfirstlane_b32 s{NONCE}, v2")
    a("v_lshrrev_b32 v88, 4, v0")
    a("v_and_b32 v89, 15, v0")
    a("v_add_u32 v90, s50, v89")
    a("v_and_b32 v93, 1, v88")
    a("v_lshrrev_b32 v94, 1, v88")
    a("s_nop 7")
    for r in range(4): a(f"v_mul_f32 v{D+r}, {f2u(LN2):#x}, v{D+r}")
    a(f"v_cvt_pk_bf16_f32 v96, v{D}, v{D+1}")
    a(f"v_cvt_pk_bf16_f32 v97, v{D+2}, v{D+3}")
    l0, l1, l2, l3v, lst = (a.uid("h_ep") for _ in range(5))
    a("s_lshl_b32 s54, s7, 1"); a("s_add_u32 s54, s54, s6")
    a("s_cmp_eq_u32 s54, 0"); a(f"s_cbranch_scc1 {l0}")
    a("s_cmp_eq_u32 s54, 1"); a(f"s_cbranch_scc1 {l1}")
    a("s_cmp_eq_u32 s54, 2"); a(f"s_cbranch_scc1 {l2}")
    a(f"s_branch {l3v}")
    def knorm(slot):
        a(f"v_mul_f32 v98, v{D}, v{D}")
        for r in range(1, 4): a(f"v_fmac_f32 v98, v{D+r}, v{D+r}")
        if slot == 1:
            a("v_cmp_eq_u32 vcc, 0, v88")
            a("s_nop 1")
            a("v_cndmask_b32 v98, 0, v98, vcc")
        for sw in ("32", "16"):
            a("v_mov_b32 v99, v98"); a("s_nop 1")
            a(f"v_permlane{sw}_swap_b32 v98, v99"); a("s_nop 1")
            a("v_add_f32 v98, v98, v99")
        for sh in (8, 4, 2, 1):
            a("s_nop 1")
            a(f"v_max_f32_dpp v98, v98, v98 row_ror:{sh} row_mask:0xf bank_mask:0xf")
        a("s_lshl_b32 s55, s53, 3"); a(f"s_add_u32 s55, s55, {KMX + 4*slot}")
        a("v_mov_b32 v99, 0")
        a("s_mov_b64 exec, 1")
        a("buffer_store_dword v98, v99, s[36:39], s55 offen sc1")
        a("s_mov_b64 exec, -1")
    a.label(l0)
    a("v_lshl_add_u32 v95, v93, 5, v90"); a("v_lshlrev_b32 v95, 4, v95"); a("v_lshl_add_u32 v95, v94, 3, v95")
    a("buffer_store_dwordx2 v[96:97], v95, s[36:39], s52 offen sc1")
    knorm(0)
    a(f"s_branch {lst}")
    a.label(l1)
    a("v_cmp_eq_u32 vcc, 1, v88")
    a("v_mov_b32 v98, 0x3f803f80"); a("v_mov_b32 v99, 0x00003f80")
    a("v_cndmask_b32 v96, v96, v98, vcc"); a("v_cndmask_b32 v97, v97, v99, vcc")
    a("v_lshl_add_u32 v95, v88, 5, v90"); a("v_lshlrev_b32 v95, 3, v95"); a("v_add_u32 v95, 1024, v95")
    a("v_cmp_gt_u32 vcc, 2, v88")
    a("s_and_saveexec_b64 s[54:55], vcc")
    a("buffer_store_dwordx2 v[96:97], v95, s[36:39], s52 offen sc1")
    a("s_mov_b64 exec, s[54:55]")
    knorm(1)
    a(f"s_branch {lst}")
    a.label(l3v)
    a("v_cmp_gt_u32 vcc, 4, v89"); a("s_nop 1")
    a("v_cndmask_b32 v96, 0, v96, vcc"); a("v_cndmask_b32 v97, 0, v97, vcc")
    a("v_cmp_eq_u32 vcc, 4, v89"); a("v_mov_b32 v98, 0x3f803f80"); a("s_nop 0")
    a("v_cndmask_b32 v96, v96, v98, vcc"); a("v_cndmask_b32 v97, v97, v98, vcc")
    a("v_add_u32 v89, 16, v89")
    a.label(l2)
    a("v_lshl_add_u32 v95, v93, 5, v89"); a("v_lshlrev_b32 v95, 4, v95"); a("v_lshl_add_u32 v95, v94, 3, v95")
    a("s_lshl_b32 s55, s49, 10"); a("s_add_u32 s55, s55, s52"); a("s_add_u32 s55, s55, 2048")
    a("buffer_store_dwordx2 v[96:97], v95, s[36:39], s55 offen sc1")
    a.label(lst)
    a("s_barrier")
    rstamp(a, 4)
    a("s_waitcnt vmcnt(0)")
    rstamp(a, 5)
    a("s_barrier")
    a("s_barrier")
    a.label(ldone)
    a("s_setprio 0")

def gen_main(name="main_kernel", ffn=True, prio_attn=None, prio_ffn=None):
    a = Asm()
    a(f".globl {name}\n.p2align 8\n.type {name},@function")
    a.label(name)
    a("s_cmp_ge_u32 s2, 256")
    a(f"s_cbranch_scc1 {name}_end")
    stamp_rt(a, 0); stamp(a, 1)
    dbg_mark(a, 0, 0, first=True, vt=160, nl=2, sreg=78)
    a("s_load_dwordx2 s[22:23], s[0:1], 0")
    a("s_load_dwordx8 s[8:15], s[0:1], 8")
    a("s_load_dwordx4 s[16:19], s[0:1], 48")
    a("s_load_dwordx2 s[90:91], s[0:1], 72")
    a("s_load_dwordx2 s[20:21], s[0:1], 80")
    a("s_load_dwordx2 s[88:89], s[0:1], 64")
    a("v_lshrrev_b32 v1, 6, v0")
    a("v_and_b32 v0, 63, v0")
    a("v_readfirstlane_b32 s3, v1")
    a("v_lshlrev_b32 v3, 4, v0")
    a("s_lshr_b32 s4, s2, 3"); a("s_and_b32 s4, s4, 7")
    a("s_lshr_b32 s5, s2, 6"); a("s_lshl_b32 s5, s5, 3"); a("s_and_b32 s6, s2, 7"); a("s_add_u32 s5, s5, s6")
    a("s_waitcnt lgkmcnt(0)")
    lffn = f"{name}_ffn"
    a("s_cmp_ge_u32 s3, 8")
    a(f"s_cbranch_scc1 {lffn}")
    errs = gen_attn(a, name, prio_attn)
    a.label(lffn)
    a("s_sub_u32 s6, s3, 8")
    gen_ffn_head(a, name)
    import kfffn
    errs += kfffn.gen_ffn_main(a, name, prio_ffn, ffn)
    a.label(f"{name}_end")
    a("s_endpgm")
    errs += check_hazards(a.lines, name)
    return a.text(), kd(name, 168, 102), errs

def kernels(which):
    k2.PROF = bool(os.environ.get("PROF"))
    KN = "parallel_sum__grouped_kv_mqa__dense_activation_silu__prompt_kernel"
    t, d, e = gen_main(KN, ffn=(which != "attn"), prio_attn=X("PRIOA"), prio_ffn=X("PRIOF"))
    return [(KN, t, d, e, 256, 768, LDS_MAIN)]
```

```python
from asmlib import *
from layout import *
from k0 import srd
import k2
from k2 import mfma32, stamp, stamp_rt, stamp_store, X, ST
from kf import KVL, XT, XC, XKS, NONCE, HS, J3L, tail_setup, tail_wo_loads, tail_gemm

VX0, VX1 = 164, 165
VT = 160

class VM:
    def __init__(self, a): self.a = a; self.q = []
    def issue(self, tag, maybe=False): self.q.append((tag, maybe))
    def wait(self, tag, extra=""):
        hits = [i for i, t in enumerate(self.q) if t[0] == tag]
        if not hits:
            if extra: self.a("s_waitcnt" + extra)
            return
        idx = max(hits)
        n = sum(1 for t in self.q[idx + 1:] if not t[1])
        assert n <= 63
        self.a(f"s_waitcnt vmcnt({n}){extra}")
        self.q = self.q[idx + 1:]
    def clone(self, a):
        v = VM(a); v.q = list(self.q); return v

def kv_dma(a, vm, c):
    if c > 15: return
    a(f"s_add_u32 m0, s41, {(c % 4)*16384}")
    a(f"s_add_u32 s15, s40, {c*16384}")
    for i in range(4):
        a(f"buffer_load_dwordx4 v3, s[28:31], s15 offen offset:{i*1024} sc1 lds"); vm.issue(("kv", c))

BARS = ["B4", "HQ", "S1"] + [f"C{i}" for i in range(16)]
def bstamp(a, name):
    if not X("BSTAMP"): return
    i = BARS.index(name)
    a("s_memtime s[96:97]"); a("s_waitcnt lgkmcnt(0)"); a(f"s_mov_b32 s{64+i}, s96")
def bstamp_store(a):
    if not X("BSTAMP"): return
    a("s_memtime s[96:97]"); a("s_waitcnt lgkmcnt(0)"); a("s_mov_b32 s85, s96")
    a("s_lshl_b32 s58, s2, 2"); a("s_add_u32 s58, s58, s6"); a("s_lshl_b32 s58, s58, 7")
    a(f"s_add_u32 s56, s20, 0x8400000"); a("s_addc_u32 s57, s21, 0")
    a("v_mov_b32 v160, s58")
    for i in range(22):
        a(f"v_mov_b32 v161, s{64+i}")
        a(f"global_store_dword v160, v161, s[56:57] offset:{4*i}")
        a("s_nop 1")
def barrier(a, vm, name):
    if name == "B4":
        pass
    elif name == "HQ":
        a("s_barrier")
    elif name == "S1":
        a("s_barrier")
        for c in range(2): kv_dma(a, vm, c)
    else:
        c = int(name[1:])
        vm.wait(("kv", c + 1))
        if c == 0: vm.wait("j3st")
        a("s_barrier")
        if c == 0: kv_dma(a, vm, 2)
        kv_dma(a, vm, c + 3)
    bstamp(a, name)

VPRIO = int(X("VPRIO", "2"))
def hi(a):
    if VPRIO: a(f"s_setprio {VPRIO}")
def lo(a):
    if VPRIO: a("s_setprio 0")
def interleave(a, steps, fill):
    nslots = sum(len(s) for s in steps)
    out = []; done = 0; used = 0
    for s in steps:
        grp = []
        for slot in s:
            done += 1
            tgt = (len(fill)*done + nslots - 1)//nslots if nslots else 0
            mine = fill[used:tgt]; used = max(used, tgt)
            grp.append((slot, mine))
        def emit(grp=grp):
            for slot, mine in grp:
                slot()
                if mine and VPRIO: a(f"s_setprio {VPRIO}")
                for f in mine:
                    f() if callable(f) else a(f)
                if mine and VPRIO: a("s_setprio 0")
        out.append(emit)
    return out

def gen_ffn_main(a, name, prio, ffn=True):
    lend = f"{name}_end"
    vm0 = VM(a)
    a("s_lshl_b32 s40, s6, 12")
    a(f"s_add_u32 s41, s40, {KVL}")
    if not ffn:
        for b in BARS: barrier(a, vm0, b)
        a(f"s_branch {lend}")
        return []
    srd(a, 44, 20, W1F_SZ, W1F)
    srd(a, 48, 20, W2F_SZ, W2F)
    a("s_lshr_b32 s8, s4, 1"); a("s_and_b32 s9, s4, 1")
    a("s_lshl_b32 s7, s4, 2"); a("s_add_u32 s7, s7, s6")
    a("s_mul_i32 s12, s8, 5"); a("s_mul_i32 s13, s9, 3"); a("s_add_u32 s12, s12, s13")
    a("s_lshl_b32 s14, s5, 8"); a(f"s_add_u32 s14, s14, {FLG}")
    a("s_lshl_b32 s13, s7, 2"); a("s_add_u32 s16, s14, s13")
    a(f"s_mul_i32 s17, s5, {2*108*1024}"); a(f"s_add_u32 s17, s17, {HF}")
    a(f"v_lshrrev_b32 v{VX0}, 5, v0"); a(f"v_mul_u32_u24 v{VX0}, {XC}, v{VX0}")
    a(f"v_and_b32 v{VX1}, 31, v0"); a(f"v_lshl_add_u32 v{VX0}, v{VX1}, 4, v{VX0}")
    a(f"v_add_u32 v{VX1}, {XT}, v{VX0}")
    if prio is not None: a(f"s_setprio {prio}")
    def set_flag(vm, stage):
        a(f"v_mov_b32 v{VT+2}, 0"); a(f"v_mov_b32 v{VT+3}, s{NONCE}")
        a("s_mov_b64 exec, 1")
        a(f"buffer_store_dword v{VT+3}, v{VT+2}, s[36:39], s16 offen offset:{128*stage} sc1"); vm.issue("flag")
        a("s_mov_b64 exec, -1")
    def poll_issue(vm, stage):
        a(f"v_and_b32 v{VT}, 31, v0"); a(f"v_lshlrev_b32 v{VT}, 2, v{VT}")
        a(f"buffer_load_dword v{VT+1}, v{VT}, s[36:39], s14 offen offset:{128*stage} sc1"); vm.issue(("poll", stage))
    def poll_check(vm, stage):
        lp, ld = a.uid("poll"), a.uid("polld")
        vm.wait(("poll", stage))
        a(f"v_cmp_ne_u32 vcc, s{NONCE}, v{VT+1}")
        a("s_mov_b32 s13, 0x4000")
        a("s_nop 3")
        a(f"s_cbranch_vccz {ld}")
        a.label(lp)
        a(f"buffer_load_dword v{VT+1}, v{VT}, s[36:39], s14 offen offset:{128*stage} sc1")
        a("s_waitcnt vmcnt(0)")
        a(f"v_cmp_ne_u32 vcc, s{NONCE}, v{VT+1}")
        a("s_sub_u32 s13, s13, 1")
        a("s_nop 3")
        a(f"s_cbranch_vccz {ld}")
        a("s_cmp_eq_u32 s13, 0"); a(f"s_cbranch_scc1 {ld}")
        a("s_sleep 2")
        a(f"s_branch {lp}")
        a.label(ld)
    T0 = 4; AR = 68; BR = 100; DA = 8
    ACC = 4; AR2 = 100

    def path(n):
        vm = vm0.clone(a)
        full_b = (n == 2)
        def silu(tiles, T, sbase, tag, maybe=False):
            L = []
            for (tb_, delta) in tiles:
                for half in range(2):
                    base = tb_ + 8*half
                    L += [f"v_exp_f32 v{T+i}, -v{base+i}" for i in range(8)]
                    L += [f"v_add_f32 v{T+i}, 1.0, v{T+i}" for i in range(8)]
                    L += [f"v_rcp_f32 v{T+i}, v{T+i}" for i in range(8)]
                    L += [f"v_mul_f32 v{base+i}, v{base+i}, v{T+i}" for i in range(8)]
                    L += [f"v_cvt_pk_bf16_f32 v{base+p}, v{base+2*p}, v{base+2*p+1}" for p in range(4)]
                    def st(base=base, off=delta + half*1024):
                        a(f"s_add_u32 s15, s{sbase}, {off}")
                        a(f"buffer_store_dwordx4 v[{base}:{base+3}], v3, s[36:39], s15 offen sc1"); vm.issue(tag, maybe)
                    L.append(st)
            return L
        a("s_mul_i32 s18, s7, 40960")
        a("s_lshl_b32 s13, s7, 11"); a("s_add_u32 s10, s17, s13")
        if full_b:
            a("s_lshl_b32 s13, s8, 2"); a("s_add_u32 s13, s13, s6"); a("s_add_u32 s13, s13, 32")
            a("s_lshl_b32 s11, s13, 11"); a("s_add_u32 s11, s11, s17")
        else:
            a("s_lshr_b32 s13, s6, 1"); a("s_add_u32 s13, s13, s4"); a("s_add_u32 s13, s13, 48")
            a("s_and_b32 s15, s6, 1"); a("s_mul_i32 s15, s15, 110592")
            a("s_lshl_b32 s11, s13, 11"); a("s_add_u32 s11, s11, s17"); a("s_add_u32 s11, s11, s15")
            a("s_lshl_b32 s15, s6, 11"); a(f"s_add_u32 s15, s15, {DUM}")
            a("s_cmp_eq_u32 s4, 6"); a("s_cselect_b32 s11, s15, s11")
            a("s_and_b32 s15, s6, 1"); a(f"s_mul_i32 s15, s15, {XT}")
            a(f"v_add_u32 v{VT+6}, s15, v{VX0}")
        a("s_mul_i32 s19, s13, 40960")
        def a1_load(i):
            if i >= 80: return
            if X("NOLD1") and i >= DA: return
            r = AR + 4*(i % DA)
            if i == 40: a("s_mov_b32 s18, s19")
            elif i % 4 == 0 and i > 0: a("s_add_u32 s18, s18, 4096")
            a(f"buffer_load_dwordx4 v[{r}:{r+3}], v3, s[44:47], s18 offen offset:{(i%4)*1024} sc1"); vm.issue(("a1", i))
        DB = 3
        def b1_load(i):
            if i >= 80: return
            ks = i % 40; r = BR + 8*(i % DB)
            if i < 40 or full_b:
                a(f"ds_read_b128 v[{r}:{r+3}], v{VX0} offset:{ks*XKS}")
                a(f"ds_read_b128 v[{r+4}:{r+7}], v{VX1} offset:{ks*XKS}")
            else:
                a(f"ds_read_b128 v[{r}:{r+3}], v{VT+6} offset:{ks*XKS}")
        nb = lambda i: 0 if i >= 80 else (2 if (i < 40 or full_b) else 1)
        def f1(i):
            st_, ks = divmod(i, 40)
            ra = AR + 4*(i % DA); rb = BR + 8*(i % DB)
            d0 = T0 + 32*st_; d1 = d0 + 16
            two = (st_ == 0 or full_b)
            def s0():
                vm.wait(("a1", i), f" lgkmcnt({nb(i + 1)})")
                a(mfma32(d0, ra, rb, None if ks == 0 else d0))
                if not two:
                    b1_load(i + 2); a1_load(i + DA)
            def s1():
                a(mfma32(d1, ra, rb + 4, None if ks == 0 else d1))
                b1_load(i + 2)
                a1_load(i + DA)
            return [s0, s1] if two else [s0]
        P1 = [f1(i) for i in range(40)]
        P2 = [f1(i) for i in range(40, 80)]
        sl0 = silu([(T0, 0), (T0 + 16, 110592)], 124, 10, "hst0")
        lead = 3 if full_b else 5
        nfill = int(X("NFILL%d" % n, "22" if full_b else "26"))
        steps = interleave(a, P1, []) + interleave(a, P2[:lead], []) + interleave(a, P2[lead:nfill], sl0) + interleave(a, P2[nfill:], [])
        npub0 = min(80, 40 + nfill + (5 if full_b else 4))
        NF = n + 2; DEP = 3; NS = 27; NA = 16
        def setup2():
            a("s_lshl_b32 s13, s6, 14")
            a(f"s_mul_i32 s8, s12, {W2K*1024}")
            a("s_mul_i32 s15, s6, 11264"); a("s_add_u32 s15, s15, 65536")
            a("s_add_u32 s9, s8, s15"); a("s_add_u32 s8, s8, s13")
            a("s_add_u32 s19, s17, s15"); a("s_add_u32 s18, s17, s13")
        def ld_ops(s):
            if s >= NS or (X("NOLD2") and s >= DEP): return []
            sa, sb, i = (8, 18, s) if s < NA else (9, 19, s - NA)
            r = AR2 + 4*NF*(s % DEP)
            hi, lo = (i // 4)*4096, (i % 4)*1024
            ops = []
            for j in range(n):
                def f(j=j):
                    a(f"s_add_u32 s15, s{sa}, {j*W2K*1024 + hi}")
                    a(f"buffer_load_dwordx4 v[{r+4*j}:{r+4*j+3}], v3, s[48:51], s15 offen offset:{lo} sc1"); vm.issue(("l2", s))
                ops.append(f)
            for tt in range(2):
                def f(tt=tt):
                    a(f"s_add_u32 s15, s{sb}, {tt*110592 + hi}")
                    a(f"buffer_load_dwordx4 v[{r+4*(n+tt)}:{r+4*(n+tt)+3}], v3, s[36:39], s15 offen offset:{lo} sc1"); vm.issue(("l2", s))
                ops.append(f)
            return ops
        def f2(s):
            def fn():
                vm.wait(("l2", s))
                r = AR2 + 4*NF*(s % DEP)
                if s + DEP == NA: poll_check(vm, 1)
                nxt = ld_ops(s + DEP)
                mf = []
                for j in range(n):
                    for tt in ((0, 1) if j % 2 == 0 else (1, 0)):
                        d = ACC + 16*(2*j + tt)
                        mf.append((mfma32(d, r + 4*j, r + 4*(n + tt), None if s == 0 else d), j))
                for x, (m, j) in enumerate(mf):
                    if not X("NOMF2"): a(m)
                    if x % 2 == 1 and nxt and j < n - 1: nxt[j]()
                if nxt:
                    for f in nxt[n-1:]: f()
                if s + DEP == NA - 2: poll_issue(vm, 1)
                if s == 1:
                    vm.wait("hst1"); set_flag(vm, 1)
            return fn
        NT = 2*n; OWN = AR2
        def xload():
            srd(a, 44, 22, X_SZ)
            a(f"v_and_b32 v166, 31, v0"); a("s_lshl_b32 s13, s5, 6"); a(f"v_add_u32 v166, s13, v166")
            a(f"v_mul_u32_u24 v166, 1280, v166")
            a(f"v_lshrrev_b32 v{VT+1}, 5, v0"); a(f"v_lshl_add_u32 v166, v{VT+1}, 3, v166")
            a("s_lshl_b32 s13, s12, 6"); a("s_lshl_b32 s15, s6, 4"); a("s_add_u32 s13, s13, s15")
            a("v_add_u32 v166, s13, v166")
            for T in range(NT):
                j, tt = T >> 1, T & 1
                a(f"s_mov_b32 s15, {tt*32*1280 + j*64}")
                a(f"buffer_load_dwordx2 v[{OWN+24+2*T}:{OWN+24+2*T+1}], v166, s[44:47], s15 offen"); vm.issue("x")
        def red_write():
            xload()
            a("s_mul_i32 s13, s6, 18432")
            a(f"v_add_u32 v{VX0}, s13, v3")
            ld = a.uid("rw_done"); ls = [a.uid("rw") for _ in range(4)]
            for w in range(4):
                if w < 3:
                    a(f"s_cmp_lg_u32 s6, {w}"); a(f"s_cbranch_scc1 {ls[w]}")
                a("s_nop 15")
                for T in range(NT):
                    for i in range(4):
                        if i == w: continue
                        ip = (i - w - 1) % 4
                        r = ACC + 16*T + 4*i
                        a(f"ds_write_b128 v{VX0}, v[{r}:{r+3}] offset:{(T*3 + ip)*1024}")
                for T in range(NT):
                    for x in range(4): a(f"v_mov_b32 v{OWN+4*T+x}, v{ACC+16*T+4*w+x}")
                if w < 3:
                    a(f"s_branch {ld}"); a.label(ls[w])
            a.label(ld)
            a("s_waitcnt lgkmcnt(0)")
        def red_read():
            R = ACC
            for d in range(1, 4):
                a(f"s_add_u32 s13, s6, {d}"); a("s_and_b32 s13, s13, 3"); a("s_mul_i32 s13, s13, 18432")
                a(f"v_add_u32 v{VX1}, s13, v3")
                for T in range(NT):
                    r = R + 4*((d-1)*6 + T)
                    a(f"ds_read_b128 v[{r}:{r+3}], v{VX1} offset:{(T*3 + 3 - d)*1024}")
            a(f"s_mov_b32 s8, {f2u(LN2):#x}")
            vm.wait("x", " lgkmcnt(0)")
            for T in range(NT):
                y = OWN + 4*T; xr = OWN + 24 + 2*T; t = ACC + 72
                for d in range(1, 4):
                    r = R + 4*((d-1)*6 + T)
                    for x in range(4): a(f"v_add_f32 v{y+x}, v{y+x}, v{r+x}")
                a(f"v_lshlrev_b32 v{t}, 16, v{xr}"); a(f"v_and_b32 v{t+1}, 0xffff0000, v{xr}")
                a(f"v_lshlrev_b32 v{t+2}, 16, v{xr+1}"); a(f"v_and_b32 v{t+3}, 0xffff0000, v{xr+1}")
                for x in range(4): a(f"v_fma_f32 v{y+x}, v{y+x}, s8, v{t+x}")
            lo(a)
            tail_setup(a)
            tail_wo_loads(a, 4)
        def tail():
            a("s_waitcnt vmcnt(0)")
            a("s_lshl_b32 s13, s5, 7"); a(f"s_add_u32 s13, s13, {OFL}")
            a("s_lshl_b32 s15, s4, 2"); a("s_add_u32 s15, s15, s13")
            a(f"v_mov_b32 v{VT+2}, 0"); a(f"v_mov_b32 v{VT+3}, s{NONCE}")
            a(f"v_and_b32 v{VT}, 7, v0"); a(f"v_lshlrev_b32 v{VT}, 2, v{VT}")
            a("s_mov_b32 s43, 0x8000")
            a("s_barrier")
            lw, lp = a.uid("t_w"), a.uid("t_p")
            a("s_cmp_lg_u32 s6, 3"); a(f"s_cbranch_scc1 {lw}")
            a("s_mov_b64 exec, 1")
            a(f"buffer_store_dword v{VT+3}, v{VT+2}, s[36:39], s15 offen sc1")
            a("s_mov_b64 exec, -1")
            a.label(lp)
            a(f"buffer_load_dword v{VT+1}, v{VT}, s[36:39], s13 offen sc1")
            a("s_waitcnt vmcnt(0)")
            a(f"v_cmp_ne_u32 vcc, s{NONCE}, v{VT+1}")
            a("s_sub_u32 s43, s43, 1")
            a("s_nop 3")
            a(f"s_cbranch_vccz {lw}")
            a("s_cmp_eq_u32 s43, 0"); a(f"s_cbranch_scc1 {lw}")
            a(f"s_branch {lp}")
            a.label(lw)
            a("s_barrier")
            tail_gemm(a, 4, 44, 124)
            srd(a, 44, 88, X_SZ)
            a("s_lshl_b32 s13, s6, 10"); a("v_add_u32 v1, s13, v3"); a("v_add_u32 v2, 49152, v1")
            R = 4
            for T in range(NT):
                j, tt = T >> 1, T & 1
                for kq in range(4):
                    w = j + 3*kq
                    off = w*8192 + tt*4096
                    r = R + 4*(4*T + kq)
                    a(f"ds_read_b128 v[{r}:{r+3}], v{1 if off < 49152 else 2} offset:{off % 49152}")
                if T % 2 == 1: a("s_waitcnt lgkmcnt(0)")
            for T in range(NT):
                j, tt = T >> 1, T & 1
                y = OWN + 4*T
                for kq in range(4):
                    r = R + 4*(4*T + kq)
                    for x in range(4): a(f"v_add_f32 v{y+x}, v{y+x}, v{r+x}")
                a(f"v_cvt_pk_bf16_f32 v{y}, v{y}, v{y+1}")
                a(f"v_cvt_pk_bf16_f32 v{y+1}, v{y+2}, v{y+3}")
                a(f"s_mov_b32 s15, {tt*32*1280 + j*64}")
                a(f"buffer_store_dwordx2 v[{y}:{y+1}], v166, s[44:47], s15 offen")
        def mid():
            setup2()
            poll_issue(vm, 0)
            g2_issue()
            a("s_nop 7")
            tiles = [(T0 + 32, 0), (T0 + 48, 110592)] if full_b else [(T0 + 32, 0)]
            hi(a)
            for f in silu(tiles, 68, 11, "hst1"): f() if callable(f) else a(f)
            poll_check(vm, 0)
            g2_check()
            for st_ in range(DEP):
                for f in ld_ops(st_): f()
            lo(a)
        segs = {b: [] for b in BARS}
        def j3_in():
            a("v_lshrrev_b32 v147, 3, v0"); a("v_mul_u32_u24 v147, 1280, v147")
            a("v_and_b32 v146, 7, v0"); a("v_lshl_add_u32 v147, v146, 4, v147")
            a("s_mul_i32 s13, s6, 30720"); a("s_add_u32 s13, s13, s92")
            a("s_mul_i32 s15, s6, 3072")
            for i in range(3):
                a(f"s_add_u32 m0, s15, {J3L + i*1024}")
                a("s_nop 0")
                a("buffer_load_dwordx4 v147, s[24:27], s13 offen lds"); vm.issue("j3in")
                if i < 2: a("s_add_u32 s13, s13, 10240")
        def j3_out():
            a("v_lshrrev_b32 v144, 5, v0"); a("v_mul_lo_u32 v144, v144, s95")
            a("v_and_b32 v145, 15, v0"); a("v_lshrrev_b32 v146, 2, v145"); a("v_add_u32 v144, v144, v146")
            a("v_lshlrev_b32 v144, 7, v144")
            a("v_bfe_u32 v146, v0, 4, 1"); a("v_lshl_add_u32 v144, v146, 5, v144")
            a("v_and_b32 v146, 3, v145"); a("v_lshl_add_u32 v144, v146, 3, v144")
            a("s_lshr_b32 s13, s6, 1"); a("s_lshl_b32 s15, s13, 6")
            a("s_mul_i32 s13, s13, s94"); a("s_add_u32 s13, s13, s93")
            a("s_and_b32 s43, s6, 1"); a("s_mul_i32 s43, s43, 3")
            a("s_lshl_b32 s42, s43, 11"); a("s_add_u32 s15, s15, s42"); a(f"s_add_u32 s15, s15, {J3L}")
            a("s_lshl_b32 s43, s43, 10"); a("s_add_u32 s13, s13, s43")
            a("v_add_u32 v144, s15, v144")
            a("v_add_u32 v145, s99, v144")
            for i in range(3):
                a(f"ds_read_b64_tr_b16 v[{132+4*i}:{133+4*i}], v144 offset:{i*2048}")
                a(f"ds_read_b64_tr_b16 v[{134+4*i}:{135+4*i}], v145 offset:{i*2048}")
            a("s_waitcnt lgkmcnt(0)")
            for i in range(3):
                a(f"buffer_store_dwordx4 v[{132+4*i}:{135+4*i}], v3, s[36:39], s13 offen offset:{i*1024} sc1"); vm.issue("j3st")
        def g2_flag():
            l = a.uid("g2f")
            a("s_cmp_lg_u32 s6, 3"); a(f"s_cbranch_scc1 {l}")
            a("s_lshl_b32 s13, s2, 2"); a(f"s_add_u32 s13, s13, {GFL + 3072}")
            a(f"v_mov_b32 v{VT+2}, 0"); a(f"v_mov_b32 v{VT+3}, s{NONCE}")
            a("s_mov_b64 exec, 1")
            a(f"buffer_store_dword v{VT+3}, v{VT+2}, s[36:39], s13 offen sc1"); vm.issue("g2f", True)
            a("s_mov_b64 exec, -1")
            a.label(l)
        def g2_issue():
            a(f"s_mov_b32 s13, {GFL + 3072}")
            a("buffer_load_dwordx4 v[132:135], v3, s[36:39], s13 offen sc1"); vm.issue("g2p")
        def g2_check():
            lp, ld = a.uid("g2p"), a.uid("g2d")
            vm.wait("g2p")
            a("s_mov_b32 s43, 0x4000")
            a(f"s_mov_b32 s13, {GFL + 3072}")
            a.label(lp)
            for r in range(132, 136): a(f"v_xor_b32 v{r}, s{NONCE}, v{r}")
            a("v_or_b32 v132, v132, v133"); a("v_or_b32 v134, v134, v135"); a("v_or_b32 v132, v132, v134")
            a("v_cmp_ne_u32 vcc, 0, v132")
            a("s_sub_u32 s43, s43, 1")
            a("s_nop 3")
            a(f"s_cbranch_vccz {ld}")
            a("s_cmp_eq_u32 s43, 0"); a(f"s_cbranch_scc1 {ld}")
            a("s_sleep 2")
            a("buffer_load_dwordx4 v[132:135], v3, s[36:39], s13 offen sc1")
            a("s_waitcnt vmcnt(0)")
            a(f"s_branch {lp}")
            a.label(ld)
        def gw1_wait():
            lp, ld = a.uid("gw1p"), a.uid("gw1d")
            a("s_mov_b32 s43, 0x8000")
            a(f"s_mov_b32 s13, {GFL + 1024}")
            a.label(lp)
            a("buffer_load_dwordx4 v[132:135], v3, s[36:39], s13 offen sc1")
            a("s_waitcnt vmcnt(0)")
            for r in range(132, 136): a(f"v_xor_b32 v{r}, s{NONCE}, v{r}")
            a("v_or_b32 v132, v132, v133"); a("v_or_b32 v134, v134, v135"); a("v_or_b32 v132, v132, v134")
            a("v_cmp_ne_u32 vcc, 0, v132")
            a("s_sub_u32 s43, s43, 1")
            a("s_nop 3")
            a(f"s_cbranch_vccz {ld}")
            a("s_cmp_eq_u32 s43, 0"); a(f"s_cbranch_scc1 {ld}")
            a("s_sleep 4")
            a(f"s_branch {lp}")
            a.label(ld)
            vm.q = []
        segs["B4"] += [j3_out]
        segs["S1"] += [lambda: [a1_load(i) for i in range(DA)], lambda: (b1_load(0), b1_load(1))]
        segs["C0"] += [g2_flag]
        n1 = [int(x) for x in X("F1SCHED%d" % n, "0,0,10,15,15,10,10,10,10" if full_b else "0,0,10,15,15,14,13,13").split(",")]
        order = BARS
        k = 0
        for b, m in zip(order, n1):
            for e in steps[k:k + m]:
                segs[b].append(e)
                k += 1
                if k == npub0: segs[b].append(lambda: (vm.wait("hst0"), set_flag(vm, 0)))
        assert k == 80
        last1 = order[len(n1) - 1]
        bmid = order[len(n1)]
        segs[bmid].append(mid)
        n2 = [int(x) for x in X("F2SCHED%d" % n, "4,4,4,4,4,4,3" if full_b else "4,4,4,3,3,3,3,3").split(",")]
        F2 = [f2(s) for s in range(NS)]
        k = 0
        for b, m in zip(order[len(n1) + 1:], n2):
            segs[b] += F2[k:k + m]; k += m
        assert k == NS and order[len(n1) + len(n2)] in ("C13",), (order[len(n1) + len(n2)])
        segs["C14"] += [lambda: hi(a), red_write]
        segs["C15"] += [red_read]
        for b in BARS:
            barrier(a, vm, b)
            if b == "B4" and not HS: stamp(a, 2)
            if b == bmid and not HS: stamp(a, 3)
            if b == order[len(n1) + 1] and not HS: stamp(a, 4)
            if b == "C14" and not HS: stamp(a, 5)
            for fn in segs[b]: fn()
        tail()
        if not HS: stamp(a, 6)
        if HS == "G": stamp(a, 6)
        stamp_rt(a, 7); stamp_store(a, 8)
        bstamp_store(a)
        a(f"s_branch {lend}")
    lodd = f"{name}_ffn_odd"
    a("s_cmp_eq_u32 s9, 1")
    a(f"s_cbranch_scc1 {lodd}")
    path(3)
    a.label(lodd)
    path(2)
    return []
```

```python
from asmlib import *
from layout import *
from k0 import srd, kd
import os
import k2
from k2 import X, ST, mfma32, mfma8, attn_tile, Q1, Q2, KB, VB, P, S, O, E, THR, stamp, stamp_rt, stamp_store

XT = 42240; XC = 528; XKS = 1056
KVL = 84480
WKVL = KVL
SB = (KVL + 25600, KVL + 46080, KVL)
STAGE_BUF = (0, 1, 0, 2, 1)
J3L = KVL + 66560
QXL = KVL
NONCE_L = 163824
LDS_MAIN = 163840
CODE_PF_KB = 40
NONCE = 98

HS = X("HSTAMP")
def hstamp(a, who, i):
    if HS == who: stamp(a, i)
def nstamp(a, i):
    if not HS: stamp(a, i)
def rstamp(a, i):
    if HS == "R": stamp_rt(a, i)
def spin_timeout(a, sreg): a(f"s_mov_b32 s{sreg}, 0x8000")

def j3b_params(a):
    lo2, lg2 = a.uid("h_j2o"), a.uid("h_j2g")
    a("s_sub_u32 s83, s2, 220"); a("s_cmp_ge_u32 s2, 220"); a("s_cselect_b32 s83, s83, s2")
    a("s_cmp_ge_u32 s83, 180"); a(f"s_cbranch_scc1 {lo2}")
    a(f"s_mul_hi_u32 s80, s83, {(1 << 32)//10 + 1}")
    a("s_mul_i32 s81, s80, 10"); a("s_sub_u32 s81, s83, s81")
    a(f"s_mul_i32 s92, s80, {96*1280}"); a("s_lshl_b32 s82, s81, 7"); a("s_add_u32 s92, s92, s82")
    a(f"s_mul_i32 s93, s81, {2*W2K*1024}"); a("s_mul_i32 s82, s80, 6144"); a("s_add_u32 s93, s93, s82"); a(f"s_add_u32 s93, s93, {W2F}")
    a(f"s_mov_b32 s94, {W2K*1024}"); a("s_mov_b32 s95, 4"); a("s_movk_i32 s99, 1024")
    a(f"s_branch {lg2}")
    a.label(lo2)
    a("s_sub_u32 s83, s83, 180")
    a(f"s_mul_hi_u32 s80, s83, {(1 << 32)//10 + 1}")
    a("s_mul_i32 s81, s80, 10"); a("s_sub_u32 s81, s83, s81")
    a("s_mul_i32 s80, s80, 5"); a("s_add_u32 s80, s80, 20"); a("s_min_u32 s80, s80, 34")
    a(f"s_mul_i32 s92, s80, {16*1280}"); a("s_lshl_b32 s82, s81, 7"); a("s_add_u32 s92, s92, s82")
    a(f"s_mul_i32 s93, s81, {2*40*1024}"); a("s_lshl_b32 s82, s80, 10"); a("s_add_u32 s93, s93, s82"); a(f"s_add_u32 s93, s93, {WOF}")
    a("s_mov_b32 s94, 40960"); a("s_mov_b32 s95, 8"); a("s_movk_i32 s99, 512")
    a.label(lg2)


def tail_setup(a):
    srd(a, 52, 20, WOF_SZ, WOF)
    srd(a, 56, 20, OF_SZ, OF)
    a("s_mul_i32 s80, s3, 43"); a("s_lshr_b32 s80, s80, 7")
    for w_ in range(12): assert (w_*43) >> 7 == w_//3
    a("s_mul_i32 s81, s80, 3"); a("s_sub_u32 s81, s3, s81")
    a("s_lshr_b32 s82, s4, 1"); a("s_mul_i32 s82, s82, 5"); a("s_and_b32 s83, s4, 1"); a("s_mul_i32 s84, s83, 3"); a("s_add_u32 s82, s82, s84")
    a("s_add_u32 s82, s82, s81"); a("s_mul_i32 s84, s82, 40960")
    a("s_mul_i32 s82, s80, 10240"); a("s_add_u32 s84, s84, s82")
    a("s_lshl_b32 s86, s80, 0"); a("s_mul_i32 s86, s80, 10240")
    a("s_cmp_eq_u32 s81, 2"); a("s_cselect_b32 s85, s83, 0"); a("s_xor_b32 s85, s85, 1")

def tail_wo_loads(a, reg):
    for k in range(10):
        a(f"s_add_u32 s80, s84, {(k//4)*4096}")
        a(f"buffer_load_dwordx4 v[{reg+4*k}:{reg+4*k+3}], v3, s[52:55], s80 offen offset:{(k%4)*1024} sc1")

def tail_gemm(a, wo, acc, br):
    for i in range(4):
        a(f"s_add_u32 s80, s3, {12*i}")
        a("s_mul_i32 s81, s80, 52429"); a("s_lshr_b32 s81, s81, 18")
        a("s_mul_i32 s82, s81, 5"); a("s_sub_u32 s82, s80, s82")
        a("s_mul_i32 s81, s81, 10240"); a("s_lshl_b32 s82, s82, 10")
        a(f"s_add_u32 s{92+i}, s81, s82")
    a("s_mul_i32 s83, s5, 81920")
    l4 = [a.uid("t_no4"), a.uid("t_no4")]
    for st in range(2):
        for i in range(4):
            if i == 3:
                a("s_cmp_ge_u32 s3, 4"); a(f"s_cbranch_scc1 {l4[st]}")
            a(f"s_add_u32 m0, s{92+i}, {st*5120}")
            a("s_add_u32 s80, m0, s83")
            a("buffer_load_dwordx4 v3, s[56:59], s80 offen sc1 lds")
        a.label(l4[st])
    a(f"v_add_u32 v1, s86, v3"); a("v_add_u32 v2, 40960, v1")
    lskip, ldone = a.uid("t_skip"), a.uid("t_done")
    lw4, lwd = a.uid("t_w4"), a.uid("t_wd")
    a("s_cmp_lt_u32 s3, 4"); a(f"s_cbranch_scc1 {lw4}")
    a("s_waitcnt vmcnt(3)"); a(f"s_branch {lwd}")
    a.label(lw4); a("s_waitcnt vmcnt(4)")
    a.label(lwd)
    a("s_barrier")
    hstamp(a, "T", 5)
    def bl(k):
        r = br + 8*(k % 4)
        a(f"ds_read_b128 v[{r}:{r+3}], v1 offset:{k*1024}")
        a(f"ds_read_b128 v[{r+4}:{r+7}], v2 offset:{k*1024}")
    def half(h):
        k0 = 5*h
        for k in range(k0, k0 + 3): bl(k)
        for k in range(k0, k0 + 5):
            if k + 3 < k0 + 5: bl(k + 3)
            a(f"s_waitcnt lgkmcnt({2*min(3, k0 + 4 - k)})")
            r = br + 8*(k % 4)
            a(mfma32(acc, wo + 4*k, r, None if k == 0 else acc))
            a(mfma32(acc + 16, wo + 4*k, r + 4, None if k == 0 else acc + 16))
    a("s_cmp_eq_u32 s85, 0"); a(f"s_cbranch_scc1 {lskip}")
    half(0)
    a("s_waitcnt vmcnt(0)")
    a("s_barrier")
    half(1)
    a("s_barrier")
    a("s_lshl_b32 s80, s3, 13"); a("v_add_u32 v1, s80, v3")
    a("s_nop 7")
    for tt in range(2):
        for i in range(4):
            a(f"ds_write_b128 v1, v[{acc+16*tt+4*i}:{acc+16*tt+4*i+3}] offset:{(tt*4+i)*1024}")
    a("s_waitcnt lgkmcnt(0)")
    a(f"s_branch {ldone}")
    a.label(lskip)
    a("s_waitcnt vmcnt(0)")
    a("s_barrier")
    a("s_barrier")
    a.label(ldone)
    a("s_barrier")

def gen_attn(a, name, prio):
    if X("PRIOX"): a("s_setprio 3")
    srd(a, 24, 22, X_SZ)
    srd(a, 28, 20, KV_SZ, KV)
    srd(a, 36, 20, YF + YF_SZ)
    srd(a, 32, 8, 640*640*2)
    a("s_lshr_b32 s6, s3, 1")
    a("s_lshl_b32 s7, s4, 2")
    a("s_add_u32 s6, s6, s7")
    a("s_and_b32 s7, s3, 1")
    XR = (88, 108)
    a("v_lshrrev_b32 v10, 4, v0")
    a("v_and_b32 v11, 15, v0")
    a("s_and_b32 s11, s4, 6"); a("s_add_u32 s11, s11, s3"); a("s_and_b32 s11, s11, 7")
    a("s_lshl_b32 s8, s11, 3")
    a("v_add_u32 v12, s8, v10")
    a("s_lshl_b32 s9, s5, 6")
    a("v_add_u32 v13, s9, v12")
    a("v_mul_u32_u24 v13, 1280, v13")
    a("v_lshl_add_u32 v13, v11, 4, v13")
    for ps in range(2):
        a(f"s_mov_b32 s10, {ps*4*1280}")
        for j in range(5):
            a(f"buffer_load_dwordx4 v[{XR[ps]+4*j}:{XR[ps]+4*j+3}], v13, s[24:27], s10 offen offset:{256*j}")
    if X("TOUCH", "1") == "1":
        lt, ltb = a.uid("a_notouch"), a.uid("a_touchb")
        a("s_cmp_lt_u32 s3, 4"); a(f"s_cbranch_scc1 {lt}")
        a("s_cmp_ge_u32 s3, 6"); a(f"s_cbranch_scc1 {ltb}")
        a("s_lshr_b32 s10, s5, 3"); a("s_mul_i32 s10, s10, 96")
        a("s_sub_u32 s42, s3, 4"); a("s_lshl_b32 s42, s42, 6"); a("s_add_u32 s10, s10, s42")
        a("v_add_u32 v150, s10, v0")
        a("v_cmp_gt_u32 vcc, 192, v150")
        a("v_add_u32 v151, 128, v150"); a("v_add_u32 v152, 256, v150")
        a("v_cndmask_b32 v151, v152, v151, vcc")
        a("v_mul_u32_u24 v151, 1280, v151")
        a("s_mul_i32 s10, s4, 160")
        a("s_cmp_eq_u32 s3, 5"); a("s_cselect_b32 exec_hi, 0, -1")
        a("buffer_load_dword v153, v151, s[32:35], s10 offen")
        a("buffer_load_dword v154, v151, s[32:35], s10 offen offset:128")
        a("s_mov_b64 exec, -1")
        a(f"s_branch {lt}")
        a.label(ltb)
        j3b_params(a)
        lt2o, lt2g = a.uid("a_t2o"), a.uid("a_t2g")
        a("s_cmp_eq_u32 s99, 512"); a(f"s_cbranch_scc1 {lt2o}")
        srd(a, 32, 18, 1728*640*2)
        a(f"s_branch {lt2g}")
        a.label(lt2o)
        srd(a, 32, 14, 640*640*2)
        a.label(lt2g)
        a("s_sub_u32 s42, s3, 6"); a("s_mul_i32 s42, s42, 81920"); a("s_add_u32 s42, s42, s92")
        a("v_mul_u32_u24 v151, 1280, v0")
        a("s_cmp_eq_u32 s3, 7"); a("s_cselect_b32 exec_hi, 0, -1")
        a("buffer_load_dword v153, v151, s[32:35], s42 offen")
        a("s_mov_b64 exec, -1")
        a.label(lt)
    if X("PRIOX"): a("s_setprio 0")
    if X("B0", "1") == "1": a("s_barrier")
    a("s_lshr_b32 s10, s11, 2"); a(f"s_mul_i32 s10, s10, {XT}")
    a("v_and_b32 v14, 31, v12")
    a("v_lshlrev_b32 v14, 4, v14")
    a(f"v_mul_u32_u24 v15, {XC}, v11")
    a("v_add3_u32 v14, v14, v15, s10")
    a(f"v_add_u32 v1, {KVL}, v3")
    a("v_lshlrev_b32 v2, 3, v0")
    a(f"v_add_u32 v2, {KVL}, v2")
    a("v_mov_b32 v16, 0x3f803f80")
    for ps in range(2):
        R = XR[ps]
        a("v_mov_b32 v17, 0"); a("v_mov_b32 v18, 0")
        if ps == 0: hstamp(a, "A", 2)
        base = 5 if ps == 0 else 0
        if X("TOUCH", "1") == "1":
            l0, l1, l2 = a.uid("a_wx"), a.uid("a_wx"), a.uid("a_wx")
            a("s_cmp_lt_u32 s3, 4"); a(f"s_cbranch_scc1 {l0}")
            a("s_cmp_lt_u32 s3, 6"); a(f"s_cbranch_scc1 {l1}")
            a(f"s_waitcnt vmcnt({base + 1})"); a(f"s_branch {l2}")
            a.label(l1); a(f"s_waitcnt vmcnt({base + 2})"); a(f"s_branch {l2}")
            a.label(l0); a(f"s_waitcnt vmcnt({base})")
            a.label(l2)
        else:
            a(f"s_waitcnt vmcnt({base})")
        hstamp(a, "A", 3 + ps)
        if ps == 1:
            npf = 0
            if X("WQPF", "0") == "1":
                lnp = a.uid("a_nopf")
                a("s_cmp_ge_u32 s3, 6"); a(f"s_cbranch_scc1 {lnp}")
                a("s_lshl_b32 s10, s3, 6"); a("s_add_u32 s10, s10, 128")
                a("s_add_u32 s11, s10, 128"); a("s_cmp_ge_u32 s3, 3"); a("s_cselect_b32 s10, s11, s10")
                a("v_add_u32 v150, s10, v0"); a("v_mul_u32_u24 v150, 1280, v150")
                a("s_mul_i32 s10, s4, 160")
                a("buffer_load_dword v151, v150, s[32:35], s10 offen")
                a("buffer_load_dword v152, v150, s[32:35], s10 offen offset:128")
                a.label(lnp)
                npf = 0
        for i in range(20):
            a(f"v_dot2_f32_bf16 v17, v{R+i}, v16, v17")
            a(f"v_dot2_f32_bf16 v18, v{R+i}, v{R+i}, v18")
        for sh in (8, 4, 2, 1):
            a("s_nop 1")
            a(f"v_add_f32_dpp v17, v17, v17 row_ror:{sh} row_mask:0xf bank_mask:0xf")
            a(f"v_add_f32_dpp v18, v18, v18 row_ror:{sh} row_mask:0xf bank_mask:0xf")
        a("s_nop 0")
        a(f"v_mul_f32 v17, {f2u(1/640.):#x}, v17")
        a(f"v_mul_f32 v18, {f2u(1/640.):#x}, v18")
        a("v_fma_f32 v18, -v17, v17, v18")
        a("v_max_f32 v18, 0, v18")
        a(f"v_add_f32 v18, {f2u(1e-5):#x}, v18")
        a("v_rsq_f32 v18, v18")
        a("s_nop 0")
        a(f"v_mul_f32 v18, {f2u(LOG2E):#x}, v18")
        a("v_mul_f32 v19, v17, v18")
        for j in range(5):
            for i in range(4):
                r = R + 4*j + i
                t = 20 + 2*(i & 1)
                a(f"v_lshlrev_b32 v{t}, 16, v{r}")
                a(f"v_and_b32 v{t+1}, 0xffff0000, v{r}")
                a(f"v_fma_f32 v{t}, v{t}, v18, -v19")
                a(f"v_fma_f32 v{t+1}, v{t+1}, v18, -v19")
                a(f"v_cvt_pk_bf16_f32 v{r}, v{t}, v{t+1}")
            a(f"ds_write_b128 v14, v[{R+4*j}:{R+4*j+3}] offset:{j*16*XC + ps*64}")
    a("s_waitcnt lgkmcnt(0)")
    hstamp(a, "A", 5)
    a("s_barrier")
    hstamp(a, "A", 6)
    nstamp(a, 2)
    dbg_mark(a, 0, 1, vt=160, nl=2, sreg=78)
    if prio is not None: a(f"s_setprio {prio}")
    a("v_lshrrev_b32 v16, 5, v0")
    a("v_and_b32 v17, 31, v0")
    a(f"v_mul_u32_u24 v10, {XC}, v16")
    a("v_lshl_add_u32 v10, v17, 4, v10")
    a(f"s_mul_i32 s10, s7, {20*XKS}")
    a("v_add_u32 v10, s10, v10")
    a(f"v_add_u32 v11, {XT}, v10")
    a("v_and_b32 v17, 15, v0"); a("v_lshrrev_b32 v18, 2, v17")
    a("v_lshl_add_u32 v18, v16, 3, v18")
    a("s_lshl_b32 s10, s7, 6"); a("v_add_u32 v18, s10, v18")
    a("v_mul_u32_u24 v18, 160, v18")
    a("v_bfe_u32 v19, v0, 4, 1"); a("v_lshl_add_u32 v18, v19, 5, v18")
    a("v_and_b32 v19, 3, v17"); a("v_lshl_add_u32 v18, v19, 3, v18")
    a("s_lshr_b32 s10, s3, 1"); a("s_mul_i32 s10, s10, 40")
    a("v_add_u32 v18, s10, v18")
    for b in range(3): a(f"v_add_u32 v{12+b}, {SB[b]}, v18")
    D0, D1 = S
    AQ = 88; BQ = (104, 136)
    def bread(st):
        b = BQ[st & 1]
        for kk in range(4):
            ks = 4*st + kk
            a(f"ds_read_b128 v[{b+8*kk}:{b+8*kk+3}], v10 offset:{ks*XKS}")
            a(f"ds_read_b128 v[{b+8*kk+4}:{b+8*kk+7}], v11 offset:{ks*XKS}")
    bread(0)
    for st in range(5):
        if st > 0: a("s_barrier")
        if st > 0: hstamp(a, "Q", st + 1)
        vb = 12 + STAGE_BUF[st]
        for kk in range(4):
            a(f"ds_read_b64_tr_b16 v[{AQ+4*kk}:{AQ+4*kk+1}], v{vb} offset:{kk*16*160}")
            a(f"ds_read_b64_tr_b16 v[{AQ+4*kk+2}:{AQ+4*kk+3}], v{vb} offset:{kk*16*160 + 640}")
        b = BQ[st & 1]
        for kk in range(4):
            ks = 4*st + kk
            nxt = 8 if (st < 4 and kk >= 1) else 0
            a(f"s_waitcnt lgkmcnt({min(15, 2*(3 - kk) + nxt)})")
            a(mfma32(D0, AQ + 4*kk, b + 8*kk, None if ks == 0 else D0))
            a(mfma32(D1, AQ + 4*kk, b + 8*kk + 4, None if ks == 0 else D1))
            if kk == 0 and st < 4: bread(st + 1)
        if st < 4: a("s_waitcnt lgkmcnt(0)")
    a("s_mul_i32 s44, s3, 3072")
    a(f"s_add_u32 s44, s44, {QXL}")
    a("v_add_u32 v12, s44, v3")
    a("s_xor_b32 s45, s3, 1"); a("s_mul_i32 s45, s45, 3072"); a(f"s_add_u32 s45, s45, {QXL}")
    a("v_add_u32 v13, s45, v3")
    lp1, lpd = a.uid("qx1"), a.uid("qxd")
    a("s_nop 7")
    a("s_cmp_eq_u32 s7, 1"); a(f"s_cbranch_scc1 {lp1}")
    for i in range(3): a(f"ds_write_b128 v12, v[{D1+4*i}:{D1+4*i+3}] offset:{i*1024}")
    a(f"s_branch {lpd}")
    a.label(lp1)
    for i in range(3): a(f"ds_write_b128 v12, v[{D0+4*i}:{D0+4*i+3}] offset:{i*1024}")
    a("s_waitcnt lgkmcnt(0)")
    for r in range(12): a(f"v_mov_b32 v{D0+r}, v{D1+r}")
    a.label(lpd)
    a("s_waitcnt lgkmcnt(0)")
    a("s_barrier")
    hstamp(a, "Q", 6)
    dbg_mark(a, 0, 2, vt=160, nl=2, sreg=78)
    for i in range(3): a(f"ds_read_b128 v[{D1+4*i}:{D1+4*i+3}], v13 offset:{i*1024}")
    a("v_cmp_gt_u32 vcc, 32, v0")
    a("s_waitcnt lgkmcnt(0)")
    D = D0
    for r in range(12): a(f"v_add_f32 v{D+r}, v{D+r}, v{D1+r}")
    for r in range(8, 12): a(f"v_cndmask_b32 v{D+r}, 0, v{D+r}, vcc")
    a(f"s_mov_b32 s45, {f2u(QSCALE):#x}")
    for r in range(12): a(f"v_mul_f32 v{D+r}, s45, v{D+r}")
    a(f"v_mul_f32 v136, v{D}, v{D}")
    for r in range(1, 12): a(f"v_fmac_f32 v136, v{D+r}, v{D+r}")
    for r in range(4): a(f"v_cvt_pk_bf16_f32 v{Q1+r}, v{D+2*r}, v{D+2*r+1}")
    for r in range(2): a(f"v_cvt_pk_bf16_f32 v{Q2+r}, v{D+8+2*r}, v{D+8+2*r+1}")
    a("v_mov_b32 v137, v136"); a("s_nop 1")
    a("v_permlane32_swap_b32 v136, v137"); a("s_nop 1")
    a("v_add_f32 v136, v136, v137")
    for r in range(16): a(f"v_mov_b32 v{O+r}, 0")
    for r in range(8): a(f"v_mov_b32 v{P+r}, 0")
    for r in range(8): a(f"v_mov_b32 v{E+r}, 0")
    for r in range(4): a(f"v_mov_b32 v{VB[1][1]+r}, 0")
    nstamp(a, 3)
    lw, lwp = a.uid("a_gw"), a.uid("a_gp")
    a("s_cmp_lg_u32 s3, 0"); a(f"s_cbranch_scc1 {lw}")
    a(f"v_mov_b32 v140, {NONCE_L}")
    a("ds_read_b32 v141, v140")
    spin_timeout(a, 42)
    a(f"s_mov_b32 s43, {GFL}")
    a("s_waitcnt lgkmcnt(0)")
    a("v_readfirstlane_b32 s44, v141")
    a.label(lwp)
    a("buffer_load_dwordx4 v[140:143], v3, s[36:39], s43 offen sc1")
    a("buffer_load_dwordx4 v[144:147], v3, s[36:39], s43 offen offset:1024 sc1")
    a("s_waitcnt vmcnt(0)")
    for r in range(140, 148): a(f"v_xor_b32 v{r}, s44, v{r}")
    for r in range(141, 148): a(f"v_or_b32 v140, v140, v{r}")
    a("v_cmp_ne_u32 vcc, 0, v140")
    a("s_sub_u32 s42, s42, 1")
    a("s_nop 3")
    a(f"s_cbranch_vccz {lw}")
    a("s_cmp_eq_u32 s42, 0"); a(f"s_cbranch_scc1 {lw}")
    a(f"s_sleep {X('GSLEEP', '4')}")
    a(f"s_branch {lwp}")
    a.label(lw)
    a("s_barrier")
    dbg_mark(a, 0, 3, vt=160, nl=2, sreg=78)
    a(f"s_mov_b32 s43, {KMX}")
    a(f"buffer_load_dwordx4 v[140:143], v3, s[36:39], s43 offen sc1")
    a("s_waitcnt vmcnt(0)")
    a("v_max_f32 v140, v140, v142")
    a("v_max_f32 v141, v141, v143")
    for sh in (8, 4, 2, 1):
        a("s_nop 1")
        a(f"v_max_f32_dpp v140, v140, v140 row_ror:{sh} row_mask:0xf bank_mask:0xf")
        a(f"v_max_f32_dpp v141, v141, v141 row_ror:{sh} row_mask:0xf bank_mask:0xf")
    for sw in ("16", "32"):
        a("v_mov_b32 v142, v140"); a("v_mov_b32 v143, v141"); a("s_nop 1")
        a(f"v_permlane{sw}_swap_b32 v140, v142"); a(f"v_permlane{sw}_swap_b32 v141, v143"); a("s_nop 1")
        a("v_max_f32 v140, v140, v142"); a("v_max_f32 v141, v141, v143")
    a("v_add_f32 v140, v140, v141")
    a("v_mul_f32 v136, v136, v140")
    a(f"s_mov_b32 s45, {f2u(THR*THR):#x}")
    a("v_cmp_nle_f32 vcc, v136, s45")
    lfast = a.uid("attn_fast")
    a("s_nop 4")
    a(f"s_cbranch_vccz {lfast}")
    lm = a.uid("attn_maxloop")
    M = 136; TK = 140
    a(f"v_mov_b32 v{M}, 0xff800000")
    a("s_mov_b32 s46, 0")
    a(f"v_lshlrev_b32 v{M+1}, 3, v0")
    a.label(lm)
    a(f"buffer_load_dwordx4 v[{TK}:{TK+3}], v3, s[28:31], s46 offen sc1")
    a(f"buffer_load_dwordx2 v[{TK+4}:{TK+5}], v{M+1}, s[28:31], s46 offen offset:1024 sc1")
    a("s_waitcnt vmcnt(0)")
    a(mfma32(S[1], TK, Q1, None))
    a(mfma8(S[1], TK+4, Q2, S[1]))
    a("s_add_u32 s46, s46, 4096")
    a("s_nop 15")
    for r in range(0, 16, 2): a(f"v_max3_f32 v{M}, v{M}, v{S[1]+r}, v{S[1]+r+1}")
    a(f"s_cmp_lt_u32 s46, {64*4096}")
    a(f"s_cbranch_scc1 {lm}")
    a(f"v_mov_b32 v{M+2}, v{M}"); a("s_nop 1")
    a(f"v_permlane32_swap_b32 v{M}, v{M+2}"); a("s_nop 1")
    a(f"v_max_f32 v{M}, v{M}, v{M+2}")
    a(f"v_xor_b32 v{M}, 0x80000000, v{M}")
    a(f"v_and_b32 v{M+1}, 0xffff0000, v{M}")
    a(f"v_sub_f32 v{M+2}, v{M}, v{M+1}")
    a(f"v_and_b32 v{M+3}, 0xffff0000, v{M+2}")
    a(f"v_sub_f32 v{M+2}, v{M+2}, v{M+3}")
    a(f"v_lshrrev_b32 v{M+2}, 16, v{M+2}")
    a(f"v_lshrrev_b32 v{M+1}, 16, v{M+1}")
    a(f"v_or_b32 v{M+1}, v{M+1}, v{M+3}")
    a("v_cmp_lt_u32 vcc, 31, v0")
    a("s_nop 1")
    a(f"v_cndmask_b32 v{Q2}, v{Q2}, v{M+1}, vcc")
    a(f"v_cndmask_b32 v{Q2+1}, v{Q2+1}, v{M+2}, vcc")
    a.label(lfast)
    a("s_barrier")
    a(f"ds_read_b128 v[{KB[0][0]}:{KB[0][0]+3}], v1 offset:0")
    a(f"ds_read_b64 v[{KB[0][1]}:{KB[0][1]+1}], v2 offset:1024")
    a("s_waitcnt lgkmcnt(0)")
    a(mfma32(S[0], KB[0][0], Q1, None))
    a(mfma8(S[0], KB[0][1], Q2, S[0]))
    a(f"ds_read_b128 v[{KB[1][0]}:{KB[1][0]+3}], v1 offset:{4096}")
    a(f"ds_read_b64 v[{KB[1][1]}:{KB[1][1]+1}], v2 offset:{4096+1024}")
    a(f"ds_read_b128 v[{VB[0][0]}:{VB[0][0]+3}], v1 offset:2048")
    a(f"ds_read_b128 v[{VB[0][1]}:{VB[0][1]+3}], v1 offset:3072")
    a("s_nop 7")
    nstamp(a, 4)
    dbg_mark(a, 0, 4, vt=160, nl=2, sreg=78)
    tail_setup(a)
    a("s_mov_b32 s47, 4")
    lp = a.uid("attn_loop")
    body = Asm()
    WOR = 104
    for t in range(16):
        if t % 4 == 0 and t > 0: body("s_barrier")
        if t == 12:
            lw = body.uid("nowo")
            body("s_cmp_lg_u32 s47, 1"); body(f"s_cbranch_scc1 {lw}")
            tail_wo_loads(body, WOR)
            body.label(lw)
        attn_tile(body, t)
    a.label(lp)
    a.lines += body.lines
    a("s_sub_u32 s47, s47, 1")
    a("s_cmp_eq_u32 s47, 0")
    lout = a.uid("attn_out")
    a(f"s_cbranch_scc1 {lout}")
    a("s_barrier")
    a(f"s_branch {lp}")
    a.label(lout)
    nstamp(a, 5)
    hstamp(a, "T", 1)
    dbg_mark(a, 0, 5, vt=160, nl=2, sreg=78)
    a(f"v_cvt_pk_bf16_f32 v{P+6}, v{E+4}, v{E+5}")
    a(f"v_cvt_pk_bf16_f32 v{P+7}, v{E+6}, v{E+7}")
    a("s_waitcnt lgkmcnt(0)")
    a("s_nop 0")
    a(mfma32(O, VB[1][1], P + 4, O))
    a("v_lshrrev_b32 v144, 5, v0")
    a("s_mul_i32 s48, s6, 5")
    a("v_add_u32 v145, s48, v144")
    a("v_and_b32 v146, 31, v0")
    a("v_lshlrev_b32 v146, 4, v146")
    def qoff(dst, q):
        a(f"v_lshrrev_b32 v147, 2, v{q}")
        a(f"v_lshlrev_b32 v{dst}, 10, v147")
        a(f"v_bfe_u32 v147, v{q}, 1, 1")
        a(f"v_lshl_add_u32 v{dst}, v147, 9, v{dst}")
        a(f"v_and_b32 v147, 1, v{q}")
        a(f"v_lshl_add_u32 v{dst}, v147, 3, v{dst}")
        a(f"v_add_u32 v{dst}, v{dst}, v146")
    qoff(148, 145)
    a("v_add_u32 v145, 2, v145")
    qoff(149, 145)
    a("s_add_u32 s48, s48, 4")
    a("v_mov_b32 v145, s48")
    qoff(150, 145)
    a("s_lshl_b32 s49, s5, 1")
    a("s_add_u32 s49, s49, s7")
    a("s_mul_i32 s49, s49, 40960")
    a(f"s_add_u32 s49, s49, {OF}")
    a(f"v_mov_b32 v152, v{O+8}")
    a(f"v_mov_b32 v153, v{O+8}")
    a("s_nop 1")
    a("v_permlane32_swap_b32 v152, v153")
    a("s_nop 1")
    a("v_rcp_f32 v153, v153")
    a("s_nop 0")
    for r in range(12): a(f"v_mul_f32 v{O+r}, v{O+r}, v153")
    for r in range(6): a(f"v_cvt_pk_bf16_f32 v{154+r}, v{O+2*r}, v{O+2*r+1}")
    a("buffer_store_dwordx2 v[154:155], v148, s[36:39], s49 offen" + ST)
    a("buffer_store_dwordx2 v[156:157], v149, s[36:39], s49 offen" + ST)
    a("v_cmp_gt_u32 vcc, 32, v0")
    a("s_and_saveexec_b64 s[50:51], vcc")
    a("buffer_store_dwordx2 v[158:159], v150, s[36:39], s49 offen" + ST)
    a("s_mov_b64 exec, s[50:51]")
    hstamp(a, "T", 2)
    a("s_waitcnt vmcnt(0)")
    hstamp(a, "T", 3)
    a("s_barrier")
    a("s_barrier")
    hstamp(a, "T", 4)
    tail_gemm(a, WOR, S[0], 64)
    dbg_mark(a, 0, 6, vt=160, nl=1, sreg=78)
    nstamp(a, 6); hstamp(a, "T", 6); stamp_rt(a, 7)
    stamp_store(a, 8)
    a("s_endpgm")
    return check_hazards(body.lines + body.lines, name + ":loop")

def tr_addr(a, dst, base_s, hm, delta):
    a(f"v_lshrrev_b32 v{dst}, 5, v0"); a(f"v_mul_lo_u32 v{dst}, v{dst}, {hm}")
    a(f"v_and_b32 v{dst+1}, 15, v0"); a(f"v_lshrrev_b32 v{dst+2}, 2, v{dst+1}"); a(f"v_add_u32 v{dst}, v{dst}, v{dst+2}")
    a(f"v_lshlrev_b32 v{dst}, 7, v{dst}")
    a(f"v_bfe_u32 v{dst+2}, v0, 4, 1"); a(f"v_lshl_add_u32 v{dst}, v{dst+2}, 5, v{dst}")
    a(f"v_and_b32 v{dst+2}, 3, v{dst+1}"); a(f"v_lshl_add_u32 v{dst}, v{dst+2}, 3, v{dst}")
    a(f"v_add_u32 v{dst}, {base_s}, v{dst}")
    a(f"v_add_u32 v{dst+1}, {delta}, v{dst}")

def gen_ffn_head(a, name):
    if not X("PRIOX"): a("s_setprio 3")
    srd(a, 28, 20, KV_SZ, KV)
    srd(a, 36, 20, YF + YF_SZ)
    lkvw, lcommon = a.uid("h_kvw"), a.uid("h_common")
    a("s_cmp_lt_u32 s6, 2"); a(f"s_cbranch_scc1 {lkvw}")
    srd(a, 32, 8, 640*640*2)
    l3, lq = a.uid("h_w3"), a.uid("h_wq")
    a("s_cmp_eq_u32 s6, 3"); a(f"s_cbranch_scc1 {l3}")
    lwo, lgo = a.uid("h_jo"), a.uid("h_jg")
    a("s_cmp_ge_u32 s2, 216"); a(f"s_cbranch_scc1 {lwo}")
    srd(a, 24, 16, 640*1728*2)
    a(f"s_mul_hi_u32 s54, s2, {(1 << 32)//27 + 1}")
    a("s_mul_i32 s55, s54, 27"); a("s_sub_u32 s55, s2, s55")
    a("s_mov_b32 s48, 3456")
    a(f"s_mul_i32 s49, s54, {80*3456}"); a("s_lshl_b32 s43, s55, 7"); a("s_add_u32 s49, s49, s43")
    a(f"s_mul_i32 s50, s55, {2*40*1024}"); a("s_mul_i32 s43, s54, 5120"); a("s_add_u32 s50, s50, s43"); a(f"s_add_u32 s50, s50, {W1F}")
    a(f"s_branch {lgo}")
    a.label(lwo)
    srd(a, 24, 14, 640*640*2)
    a("s_sub_u32 s42, s2, 216")
    a(f"s_mul_hi_u32 s54, s42, {(1 << 32)//10 + 1}")
    a("s_mul_i32 s55, s54, 10"); a("s_sub_u32 s55, s42, s55")
    a("s_mov_b32 s48, 1280")
    a(f"s_mul_i32 s49, s54, {80*1280}"); a("s_lshl_b32 s43, s55, 7"); a("s_add_u32 s49, s49, s43")
    a(f"s_mul_i32 s50, s55, {2*40*1024}"); a("s_mul_i32 s43, s54, 5120"); a("s_add_u32 s50, s50, s43"); a(f"s_add_u32 s50, s50, {WOF}")
    a.label(lgo)
    a("v_lshrrev_b32 v4, 3, v0"); a("v_mul_lo_u32 v4, v4, s48")
    a("v_and_b32 v5, 7, v0"); a("v_lshl_add_u32 v4, v5, 4, v4")
    a("v_mov_b32 v8, v4")
    a(f"s_branch {lq}")
    a.label(l3)
    if X("TLBW", "0") == "1":
        a("v_lshlrev_b32 v4, 21, v0")
        a("s_mov_b64 exec, 0xffff")
        a("buffer_load_dword v162, v4, s[36:39], 0 offen")
        a("s_mov_b64 exec, 3")
        srd(a, 24, 88, X_SZ)
        a("buffer_load_dword v163, v4, s[24:27], 0 offen")
        srd(a, 24, 18, 1728*640*2)
        a("buffer_load_dword v164, v4, s[24:27], 0 offen")
        srd(a, 24, 14, 640*640*2)
        a("buffer_load_dword v165, v4, s[24:27], 0 offen")
        srd(a, 24, 16, 640*1728*2)
        a("buffer_load_dword v166, v4, s[24:27], 0 offen")
        a("s_mov_b64 exec, -1")
    if X("CODEPF", "0") == "1":
        lcp = a.uid("h_nocp")
        a("s_cmp_ge_u32 s2, 8"); a(f"s_cbranch_scc1 {lcp}")
        a("s_getpc_b64 s[54:55]")
        a.label(f"{name}_pc0")
        a(f"s_sub_u32 s54, s54, {name}_pc0-{name}"); a("s_subb_u32 s55, s55, 0")
        a("v_lshlrev_b32 v4, 7, v0")
        for i in range(CODE_PF_KB // 8):
            a(f"global_load_dword v{160+i}, v4, s[54:55]")
            a("s_add_u32 s54, s54, 8192"); a("s_addc_u32 s55, s55, 0")
        a.label(lcp)
    a("s_cmp_lg_u32 s2, 0"); a(f"s_cbranch_scc1 {lq}")
    a("s_memrealtime s[54:55]")
    a("s_waitcnt lgkmcnt(0)")
    a("s_or_b32 s54, s54, 1")
    a("v_mov_b32 v4, 0"); a("v_mov_b32 v5, s54")
    a("s_mov_b64 exec, 1")
    a("global_store_dword v4, v5, s[90:91] sc1")
    a("s_mov_b64 exec, -1")
    a.label(lq)
    WQ = 148
    a("s_sub_u32 s56, s6, 2")
    a(f"v_mul_u32_u24 v4, 26, v0"); a("v_lshrrev_b32 v4, 8, v4")
    for l_ in range(64): assert (l_*26) >> 8 == l_//10
    a("v_mul_u32_u24 v5, 10, v4"); a("v_sub_u32 v5, v0, v5")
    a("v_mul_u32_u24 v4, 1280, v4")
    a(f"v_lshl_add_u32 v{WQ}, v5, 4, v4")
    a("s_mul_i32 s57, s4, 160")
    a(f"s_mul_i32 s58, s56, {320*1280}"); a("s_add_u32 s58, s58, s57")
    a("s_mul_i32 s59, s56, 10240")
    a("s_mov_b32 s76, -1"); a("s_mov_b32 s77, 0x0fffffff")
    a("s_mov_b32 s78, -1"); a("s_mov_b32 s79, 0xff")
    NWQ = 11
    def wq_stage(st):
        a(f"s_add_u32 s41, s58, {st*64*1280}")
        a("s_mov_b64 exec, s[76:77]")
        for i in range(NWQ):
            if i == NWQ - 1: a("s_mov_b64 exec, s[78:79]")
            a(f"s_add_u32 m0, s59, {SB[STAGE_BUF[st]] + i*960}")
            a("s_nop 0")
            a(f"buffer_load_dwordx4 v{WQ}, s[32:35], s41 offen lds")
            if i < NWQ - 1: a("s_add_u32 s41, s41, 7680")
        a("s_mov_b64 exec, -1")
    if X("TOUCH0", "1") == "1":
        lt3, ltd = a.uid("h_t3"), a.uid("h_td")
        a("s_cmp_eq_u32 s6, 3"); a(f"s_cbranch_scc1 {lt3}")
        a("v_mul_lo_u32 v4, v0, s48")
        a("buffer_load_dword v160, v4, s[24:27], s49 offen")
        a("s_lshl_b32 s42, s48, 6"); a("s_add_u32 s42, s42, s49")
        a("s_mov_b64 exec, 0xffff")
        a("buffer_load_dword v161, v4, s[24:27], s42 offen")
        a("s_mov_b64 exec, -1")
        a(f"s_branch {ltd}")
        a.label(lt3)
        a("s_lshr_b32 s42, s5, 3"); a("s_and_b32 s43, s42, 1"); a("s_lshl_b32 s43, s43, 6")
        a("s_lshr_b32 s42, s42, 1"); a("s_mul_i32 s42, s42, 320"); a("s_add_u32 s42, s42, s43")
        a("v_add_u32 v4, s42, v0"); a("v_mul_u32_u24 v4, 1280, v4")
        a("buffer_load_dword v160, v4, s[32:35], s57 offen")
        a("buffer_load_dword v161, v4, s[32:35], s57 offen offset:128")
        a.label(ltd)
    if X("B0", "1") == "1": a("s_barrier")
    wq_stage(0); wq_stage(1)
    if X("PRIOX"): a("s_setprio 3")
    lw3, lbln = a.uid("h_w3b"), a.uid("h_bln")
    a("s_cmp_eq_u32 s6, 3"); a(f"s_cbranch_scc1 {lw3}")
    a("s_lshl_b32 s43, s48, 3")
    for i in range(10):
        a(f"s_mov_b32 m0, {J3L + i*1024}")
        a("s_nop 0")
        a("buffer_load_dwordx4 v8, s[24:27], s49 offen lds")
        a("s_add_u32 s49, s49, s43")
    j3b_params(a)
    tr_addr(a, 5, J3L, 8, 512)
    hstamp(a, "F", 2)
    a("s_waitcnt vmcnt(21)")
    hstamp(a, "F", 3)
    a("s_barrier")
    hstamp(a, "F", 4)
    a("s_waitcnt vmcnt(0)")
    hstamp(a, "F", 5)
    for nt in range(2):
        for kk in range(5):
            r = 16 + 4*(nt*5+kk)
            a(f"ds_read_b64_tr_b16 v[{r}:{r+1}], v5 offset:{nt*64 + kk*2048}")
            a(f"ds_read_b64_tr_b16 v[{r+2}:{r+3}], v6 offset:{nt*64 + kk*2048}")
        a("s_waitcnt lgkmcnt(0)")
        for kk in range(5):
            r = 16 + 4*(nt*5+kk)
            a(f"s_add_u32 s42, s50, {kk*1024 + nt*40960}")
            a(f"buffer_store_dwordx4 v[{r}:{r+3}], v3, s[36:39], s42 offen sc1")
    a(f"s_branch {lbln}")
    a.label(lw3)
    j3b_params(a)
    hstamp(a, "K", 2)
    a("s_waitcnt vmcnt(11)")
    a("s_barrier")
    lp, lpd = a.uid("h_np"), a.uid("h_npd")
    spin_timeout(a, 42)
    a("v_mov_b32 v4, 0")
    a.label(lp)
    a("global_load_dword v5, v4, s[90:91] sc1")
    a("s_waitcnt vmcnt(0)")
    a("v_readfirstlane_b32 s43, v5")
    a("s_sub_u32 s42, s42, 1")
    a("s_cmp_lg_u32 s43, 0"); a(f"s_cbranch_scc1 {lpd}")
    a("s_cmp_eq_u32 s42, 0"); a(f"s_cbranch_scc1 {lpd}")
    a("s_sleep 1")
    a(f"s_branch {lp}")
    a.label(lpd)
    hstamp(a, "K", 3)
    a(f"v_mov_b32 v4, {NONCE_L}")
    a("ds_write_b32 v4, v5")
    a("s_waitcnt lgkmcnt(0)")
    hstamp(a, "K", 4)
    a.label(lbln)
    hstamp(a, "F", 6)
    a("s_barrier")
    wq_stage(2); wq_stage(3)
    a(f"v_mov_b32 v4, {NONCE_L}")
    a("ds_read_b32 v5, v4")
    a("s_waitcnt lgkmcnt(0)")
    a(f"v_readfirstlane_b32 s{NONCE}, v5")
    a("s_waitcnt vmcnt(11)")
    a("s_barrier")
    wq_stage(4)
    lj2o, lj2g = a.uid("h_j2so"), a.uid("h_j2sg")
    a("s_cmp_eq_u32 s99, 512"); a(f"s_cbranch_scc1 {lj2o}")
    srd(a, 24, 18, 1728*640*2)
    a(f"s_branch {lj2g}")
    a.label(lj2o)
    srd(a, 24, 14, 640*640*2)
    a.label(lj2g)
    a("v_lshrrev_b32 v4, 3, v0"); a("v_mul_u32_u24 v4, 1280, v4")
    a("v_and_b32 v5, 7, v0"); a("v_lshl_add_u32 v4, v5, 4, v4")
    a("s_mul_i32 s48, s56, 61440"); a("s_add_u32 s48, s48, s92")
    a("s_mul_i32 s49, s56, 6144")
    for i in range(6):
        a(f"s_add_u32 m0, s49, {J3L + i*1024}")
        a("s_nop 0")
        a("buffer_load_dwordx4 v4, s[24:27], s48 offen lds")
        if i < 5: a("s_add_u32 s48, s48, 10240")
    lnf, lw2 = a.uid("h_nf"), a.uid("h_w2f")
    ldone = a.uid("h_done")
    a("v_mov_b32 v4, 0"); a(f"v_mov_b32 v5, s{NONCE}")
    a("s_cmp_eq_u32 s6, 3"); a(f"s_cbranch_scc1 {lnf}")
    a("s_lshl_b32 s42, s2, 2"); a(f"s_add_u32 s42, s42, {GFL + 1024}")
    a("s_mov_b64 exec, 1")
    a("buffer_store_dword v5, v4, s[36:39], s42 offen sc1")
    a("s_mov_b64 exec, -1")
    a("s_waitcnt vmcnt(18)"); a("s_barrier")
    a("s_waitcnt vmcnt(1)"); a("s_barrier")
    a(f"s_branch {ldone}")
    a.label(lnf)
    a("s_waitcnt vmcnt(17)"); a("s_barrier")
    a("s_lshl_b32 s42, s2, 2"); a(f"s_add_u32 s42, s42, {GFL}")
    a("s_mov_b64 exec, 1")
    a("buffer_store_dword v5, v4, s[36:39], s42 offen sc1")
    a("s_mov_b64 exec, -1")
    a("s_waitcnt vmcnt(1)"); a("s_barrier")
    a(f"s_branch {ldone}")
    a.label(lkvw)
    lv, lkv = a.uid("h_isv"), a.uid("h_kv")
    a("s_and_b32 s7, s4, 1")
    a("s_cmp_eq_u32 s7, 1"); a(f"s_cbranch_scc1 {lv}")
    srd(a, 44, 10, 25600)
    a(f"s_branch {lkv}")
    a.label(lv)
    srd(a, 44, 12, 25600)
    a.label(lkv)
    if X("TOUCH0", "1") == "1":
        lt0 = a.uid("h_t0")
        a("s_cmp_lg_u32 s6, 0"); a(f"s_cbranch_scc1 {lt0}")
        a("s_lshr_b32 s42, s4, 1"); a("s_lshr_b32 s43, s5, 3"); a("s_lshl_b32 s43, s43, 2"); a("s_add_u32 s42, s42, s43")
        a("s_mul_i32 s42, s42, 1664")
        a("v_lshlrev_b32 v4, 7, v0")
        a("s_mov_b64 exec, 0x1fff")
        a("buffer_load_dword v160, v4, s[44:47], s42 offen")
        a("s_mov_b64 exec, -1")
        a.label(lt0)
    if X("B0", "1") == "1": a("s_barrier")
    a("s_lshr_b32 s42, s2, 3"); a("s_and_b32 s42, s42, 31"); a("s_mul_i32 s42, s42, 43"); a("s_lshr_b32 s42, s42, 7")
    a("s_lshl_b32 s40, s6, 10")
    for j in range(12):
        a(f"s_add_u32 s43, s42, {j}"); a("s_sub_u32 s41, s43, 12"); a("s_cmp_ge_u32 s43, 12"); a("s_cselect_b32 s43, s41, s43")
        a("s_lshl_b32 s43, s43, 11"); a("s_add_u32 s41, s43, s40")
        a(f"s_add_u32 m0, s41, {WKVL}")
        a("s_nop 0")
        a("buffer_load_dwordx4 v3, s[44:47], s41 offen lds")
    l24 = a.uid("h_no24")
    a("s_cmp_lg_u32 s6, 0"); a(f"s_cbranch_scc1 {l24}")
    a(f"s_mov_b32 m0, {WKVL + 24576}")
    a("s_movk_i32 s41, 24576")
    a("buffer_load_dwordx4 v3, s[44:47], s41 offen lds")
    a.label(l24)
    if X("PRIOX"): a("s_setprio 3")
    j3b_params(a)
    XF, WF, D = 4, 84, 164
    a("s_lshr_b32 s48, s4, 1")
    a("v_lshrrev_b32 v4, 4, v0")
    a("v_and_b32 v5, 15, v0")
    a("s_and_b32 s49, s48, 1"); a("s_lshl_b32 s50, s49, 4")
    a("v_add_u32 v6, s50, v5")
    a(f"v_mul_u32_u24 v1, {XC}, v4"); a("v_lshl_add_u32 v1, v6, 4, v1")
    a("s_lshr_b32 s51, s48, 1"); a(f"s_mul_i32 s51, s51, {XT}")
    a("v_add_u32 v1, s51, v1")
    a("v_lshrrev_b32 v2, 2, v5"); a("v_lshl_add_u32 v2, v4, 3, v2"); a("v_mul_u32_u24 v2, 40, v2")
    a("v_and_b32 v7, 3, v5"); a("v_lshl_add_u32 v2, v7, 3, v2")
    a("s_lshl_b32 s51, s6, 5"); a(f"s_add_u32 s51, s51, {WKVL}")
    a("v_add_u32 v2, s51, v2")
    a("s_lshl_b32 s52, s5, 1"); a("s_lshr_b32 s53, s48, 1"); a("s_add_u32 s52, s52, s53")
    a("s_lshl_b32 s52, s52, 12"); a(f"s_add_u32 s52, s52, {KV}")
    a("s_lshl_b32 s53, s5, 2"); a("s_add_u32 s53, s53, s48")
    hstamp(a, "K", 2)
    a("s_waitcnt vmcnt(0)")
    hstamp(a, "K", 3)
    rstamp(a, 2)
    a("s_barrier")
    hstamp(a, "K", 4)
    rstamp(a, 3)
    lvm, lmd = a.uid("h_vm"), a.uid("h_md")
    for ks in range(20):
        a(f"ds_read_b128 v[{XF+4*ks}:{XF+4*ks+3}], v1 offset:{ks*2*XKS}")
        a(f"ds_read_b64_tr_b16 v[{WF+4*ks}:{WF+4*ks+1}], v2 offset:{ks*1280}")
        a(f"ds_read_b64_tr_b16 v[{WF+4*ks+2}:{WF+4*ks+3}], v2 offset:{ks*1280+160}")
        if ks % 4 == 3: a("s_waitcnt lgkmcnt(3)")
    a("s_waitcnt lgkmcnt(0)")
    hstamp(a, "K", 5)
    a("s_barrier")
    hstamp(a, "K", 6)
    a(f"v_mov_b32 v1, {NONCE_L}")
    a("ds_read_b32 v2, v1")
    def kvmm(isv):
        for k in range(20):
            c = "0" if k == 0 else f"v[{D}:{D+3}]"
            x, w = f"v[{XF+4*k}:{XF+4*k+3}]", f"v[{WF+4*k}:{WF+4*k+3}]"
            a(f"v_mfma_f32_16x16x32_bf16 v[{D}:{D+3}], {x if isv else w}, {w if isv else x}, {c}")
    a("s_cmp_eq_u32 s7, 1"); a(f"s_cbranch_scc1 {lvm}")
    kvmm(False)
    a(f"s_branch {lmd}")
    a.label(lvm)
    kvmm(True)
    a.label(lmd)
    a("s_waitcnt lgkmcnt(0)")
    a(f"v_readfirstlane_b32 s{NONCE}, v2")
    a("v_lshrrev_b32 v88, 4, v0")
    a("v_and_b32 v89, 15, v0")
    a("v_add_u32 v90, s50, v89")
    a("v_and_b32 v93, 1, v88")
    a("v_lshrrev_b32 v94, 1, v88")
    a("s_nop 7")
    for r in range(4): a(f"v_mul_f32 v{D+r}, {f2u(LN2):#x}, v{D+r}")
    a(f"v_cvt_pk_bf16_f32 v96, v{D}, v{D+1}")
    a(f"v_cvt_pk_bf16_f32 v97, v{D+2}, v{D+3}")
    l0, l1, l2, l3v, lst = (a.uid("h_ep") for _ in range(5))
    a("s_lshl_b32 s54, s7, 1"); a("s_add_u32 s54, s54, s6")
    a("s_cmp_eq_u32 s54, 0"); a(f"s_cbranch_scc1 {l0}")
    a("s_cmp_eq_u32 s54, 1"); a(f"s_cbranch_scc1 {l1}")
    a("s_cmp_eq_u32 s54, 2"); a(f"s_cbranch_scc1 {l2}")
    a(f"s_branch {l3v}")
    def knorm(slot):
        a(f"v_mul_f32 v98, v{D}, v{D}")
        for r in range(1, 4): a(f"v_fmac_f32 v98, v{D+r}, v{D+r}")
        if slot == 1:
            a("v_cmp_eq_u32 vcc, 0, v88")
            a("s_nop 1")
            a("v_cndmask_b32 v98, 0, v98, vcc")
        for sw in ("32", "16"):
            a("v_mov_b32 v99, v98"); a("s_nop 1")
            a(f"v_permlane{sw}_swap_b32 v98, v99"); a("s_nop 1")
            a("v_add_f32 v98, v98, v99")
        for sh in (8, 4, 2, 1):
            a("s_nop 1")
            a(f"v_max_f32_dpp v98, v98, v98 row_ror:{sh} row_mask:0xf bank_mask:0xf")
        a("s_lshl_b32 s55, s53, 3"); a(f"s_add_u32 s55, s55, {KMX + 4*slot}")
        a("v_mov_b32 v99, 0")
        a("s_mov_b64 exec, 1")
        a("buffer_store_dword v98, v99, s[36:39], s55 offen sc1")
        a("s_mov_b64 exec, -1")
    a.label(l0)
    a("v_lshl_add_u32 v95, v93, 5, v90"); a("v_lshlrev_b32 v95, 4, v95"); a("v_lshl_add_u32 v95, v94, 3, v95")
    a("buffer_store_dwordx2 v[96:97], v95, s[36:39], s52 offen sc1")
    knorm(0)
    a(f"s_branch {lst}")
    a.label(l1)
    a("v_cmp_eq_u32 vcc, 1, v88")
    a("v_mov_b32 v98, 0x3f803f80"); a("v_mov_b32 v99, 0x00003f80")
    a("v_cndmask_b32 v96, v96, v98, vcc"); a("v_cndmask_b32 v97, v97, v99, vcc")
    a("v_lshl_add_u32 v95, v88, 5, v90"); a("v_lshlrev_b32 v95, 3, v95"); a("v_add_u32 v95, 1024, v95")
    a("v_cmp_gt_u32 vcc, 2, v88")
    a("s_and_saveexec_b64 s[54:55], vcc")
    a("buffer_store_dwordx2 v[96:97], v95, s[36:39], s52 offen sc1")
    a("s_mov_b64 exec, s[54:55]")
    knorm(1)
    a(f"s_branch {lst}")
    a.label(l3v)
    a("v_cmp_gt_u32 vcc, 4, v89"); a("s_nop 1")
    a("v_cndmask_b32 v96, 0, v96, vcc"); a("v_cndmask_b32 v97, 0, v97, vcc")
    a("v_cmp_eq_u32 vcc, 4, v89"); a("v_mov_b32 v98, 0x3f803f80"); a("s_nop 0")
    a("v_cndmask_b32 v96, v96, v98, vcc"); a("v_cndmask_b32 v97, v97, v98, vcc")
    a("v_add_u32 v89, 16, v89")
    a.label(l2)
    a("v_lshl_add_u32 v95, v93, 5, v89"); a("v_lshlrev_b32 v95, 4, v95"); a("v_lshl_add_u32 v95, v94, 3, v95")
    a("s_lshl_b32 s55, s49, 10"); a("s_add_u32 s55, s55, s52"); a("s_add_u32 s55, s55, 2048")
    a("buffer_store_dwordx2 v[96:97], v95, s[36:39], s55 offen sc1")
    a.label(lst)
    a("s_barrier")
    rstamp(a, 4)
    a("s_waitcnt vmcnt(0)")
    rstamp(a, 5)
    a("s_barrier")
    a("s_barrier")
    a.label(ldone)
    a("s_setprio 0")

def gen_main(name="main_kernel", ffn=True, prio_attn=None, prio_ffn=None):
    a = Asm()
    a(f".globl {name}\n.p2align 8\n.type {name},@function")
    a.label(name)
    a("s_cmp_ge_u32 s2, 256")
    a(f"s_cbranch_scc1 {name}_end")
    stamp_rt(a, 0); stamp(a, 1)
    dbg_mark(a, 0, 0, first=True, vt=160, nl=2, sreg=78)
    a("s_load_dwordx2 s[22:23], s[0:1], 0")
    a("s_load_dwordx8 s[8:15], s[0:1], 8")
    a("s_load_dwordx4 s[16:19], s[0:1], 48")
    a("s_load_dwordx2 s[90:91], s[0:1], 72")
    a("s_load_dwordx2 s[20:21], s[0:1], 80")
    a("s_load_dwordx2 s[88:89], s[0:1], 64")
    a("v_lshrrev_b32 v1, 6, v0")
    a("v_and_b32 v0, 63, v0")
    a("v_readfirstlane_b32 s3, v1")
    a("v_lshlrev_b32 v3, 4, v0")
    a("s_lshr_b32 s4, s2, 3"); a("s_and_b32 s4, s4, 7")
    a("s_lshr_b32 s5, s2, 6"); a("s_lshl_b32 s5, s5, 3"); a("s_and_b32 s6, s2, 7"); a("s_add_u32 s5, s5, s6")
    a("s_waitcnt lgkmcnt(0)")
    lffn = f"{name}_ffn"
    a("s_cmp_ge_u32 s3, 8")
    a(f"s_cbranch_scc1 {lffn}")
    errs = gen_attn(a, name, prio_attn)
    a.label(lffn)
    a("s_sub_u32 s6, s3, 8")
    gen_ffn_head(a, name)
    import kfffn
    errs += kfffn.gen_ffn_main(a, name, prio_ffn, ffn)
    a.label(f"{name}_end")
    a("s_endpgm")
    errs += check_hazards(a.lines, name)
    return a.text(), kd(name, 168, 102), errs

def kernels(which):
    k2.PROF = bool(os.environ.get("PROF"))
    KN = "parallel_sum__grouped_kv_mqa__dense_activation_silu__prompt_kernel"
    t, d, e = gen_main(KN, ffn=(which != "attn"), prio_attn=X("PRIOA"), prio_ffn=X("PRIOF"))
    return [(KN, t, d, e, 256, 768, LDS_MAIN)]
```

```python
from asmlib import *
from layout import *
from k0 import srd, kd
import os
import k2
from k2 import X, ST, mfma32, mfma8, attn_tile, Q1, Q2, KB, VB, P, S, O, E, THR, stamp, stamp_rt, stamp_store

XT = 42240; XC = 528; XKS = 1056
KVL = 84480
WKVL = KVL
SB = (KVL + 25600, KVL + 46080, KVL)
STAGE_BUF = (0, 1, 0, 2, 1)
J3L = KVL + 66560
QXL = KVL
NONCE_L = 163824
OCNT_L = 163820
OB = 73728
LDS_MAIN = 163840
CODE_PF_KB = 40
NONCE = 98

HS = X("HSTAMP")
def hstamp(a, who, i):
    if HS == who: stamp(a, i)
def nstamp(a, i):
    if not HS: stamp(a, i)
def rstamp(a, i):
    if HS == "R": stamp_rt(a, i)
def spin_timeout(a, sreg): a(f"s_mov_b32 s{sreg}, 0x8000")

def j3b_params(a):
    lo2, lg2 = a.uid("h_j2o"), a.uid("h_j2g")
    a("s_sub_u32 s83, s2, 220"); a("s_cmp_ge_u32 s2, 220"); a("s_cselect_b32 s83, s83, s2")
    a("s_cmp_ge_u32 s83, 180"); a(f"s_cbranch_scc1 {lo2}")
    a(f"s_mul_hi_u32 s80, s83, {(1 << 32)//10 + 1}")
    a("s_mul_i32 s81, s80, 10"); a("s_sub_u32 s81, s83, s81")
    a(f"s_mul_i32 s92, s80, {96*1280}"); a("s_lshl_b32 s82, s81, 7"); a("s_add_u32 s92, s92, s82")
    a(f"s_mul_i32 s93, s81, {2*W2K*1024}"); a("s_mul_i32 s82, s80, 6144"); a("s_add_u32 s93, s93, s82"); a(f"s_add_u32 s93, s93, {W2F}")
    a(f"s_mov_b32 s94, {W2K*1024}"); a("s_mov_b32 s95, 4"); a("s_movk_i32 s99, 1024")
    a(f"s_branch {lg2}")
    a.label(lo2)
    a("s_sub_u32 s83, s83, 180")
    a(f"s_mul_hi_u32 s80, s83, {(1 << 32)//10 + 1}")
    a("s_mul_i32 s81, s80, 10"); a("s_sub_u32 s81, s83, s81")
    a("s_mul_i32 s80, s80, 5"); a("s_add_u32 s80, s80, 20"); a("s_min_u32 s80, s80, 34")
    a(f"s_mul_i32 s92, s80, {16*1280}"); a("s_lshl_b32 s82, s81, 7"); a("s_add_u32 s92, s92, s82")
    a(f"s_mul_i32 s93, s81, {2*40*1024}"); a("s_lshl_b32 s82, s80, 10"); a("s_add_u32 s93, s93, s82"); a(f"s_add_u32 s93, s93, {WOF}")
    a("s_mov_b32 s94, 40960"); a("s_mov_b32 s95, 8"); a("s_movk_i32 s99, 512")
    a.label(lg2)


def tail_setup(a):
    srd(a, 52, 20, WOF_SZ, WOF)
    srd(a, 56, 20, OF_SZ, OF)
    a("s_mul_i32 s80, s3, 43"); a("s_lshr_b32 s80, s80, 7")
    for w_ in range(12): assert (w_*43) >> 7 == w_//3
    a("s_mul_i32 s81, s80, 3"); a("s_sub_u32 s81, s3, s81")
    a("s_lshr_b32 s82, s4, 1"); a("s_mul_i32 s82, s82, 5"); a("s_and_b32 s83, s4, 1"); a("s_mul_i32 s84, s83, 3"); a("s_add_u32 s82, s82, s84")
    a("s_add_u32 s82, s82, s81"); a("s_mul_i32 s84, s82, 40960")
    a("s_mul_i32 s82, s80, 10240"); a("s_add_u32 s84, s84, s82")
    a("s_lshl_b32 s86, s80, 0"); a("s_mul_i32 s86, s80, 10240")
    a("s_cmp_eq_u32 s81, 2"); a("s_cselect_b32 s85, s83, 0"); a("s_xor_b32 s85, s85, 1")

def tail_wo_loads(a, reg):
    for k in range(10):
        a(f"s_add_u32 s80, s84, {(k//4)*4096}")
        a(f"buffer_load_dwordx4 v[{reg+4*k}:{reg+4*k+3}], v3, s[52:55], s80 offen offset:{(k%4)*1024} sc1")

def tail_gemm(a, wo, acc, br, hook=None):
    for i in range(4):
        a(f"s_add_u32 s80, s3, {12*i}")
        a("s_mul_i32 s81, s80, 52429"); a("s_lshr_b32 s81, s81, 18")
        a("s_mul_i32 s82, s81, 5"); a("s_sub_u32 s82, s80, s82")
        a("s_mul_i32 s81, s81, 10240"); a("s_lshl_b32 s82, s82, 10")
        a(f"s_add_u32 s{92+i}, s81, s82")
    a("s_mul_i32 s83, s5, 81920")
    l4 = [a.uid("t_no4"), a.uid("t_no4")]
    for st in range(2):
        for i in range(4):
            if i == 3:
                a("s_cmp_ge_u32 s3, 4"); a(f"s_cbranch_scc1 {l4[st]}")
            a(f"s_add_u32 s80, s{92+i}, {st*5120}")
            a(f"s_add_u32 m0, s80, {OB}")
            a("s_add_u32 s80, s80, s83")
            a("buffer_load_dwordx4 v3, s[56:59], s80 offen sc1 lds")
        a.label(l4[st])
    lskip, ldone = a.uid("t_skip"), a.uid("t_done")
    if hook:
        n_after = hook()
        a(f"s_waitcnt vmcnt({3 + n_after})")
    else:
        lw4, lwd = a.uid("t_w4"), a.uid("t_wd")
        a("s_cmp_lt_u32 s3, 4"); a(f"s_cbranch_scc1 {lw4}")
        a("s_waitcnt vmcnt(3)"); a(f"s_branch {lwd}")
        a.label(lw4); a("s_waitcnt vmcnt(4)")
        a.label(lwd)
    a(f"s_add_u32 s80, s86, {OB}")
    a(f"v_add_u32 v1, s80, v3"); a("v_add_u32 v2, 40960, v1")
    a("s_barrier")
    if not hook: hstamp(a, "T", 5)
    else: hstamp(a, "T", 4)
    def bl(k):
        r = br + 8*(k % 4)
        a(f"ds_read_b128 v[{r}:{r+3}], v1 offset:{k*1024}")
        a(f"ds_read_b128 v[{r+4}:{r+7}], v2 offset:{k*1024}")
    def half(h):
        k0 = 5*h
        for k in range(k0, k0 + 3): bl(k)
        for k in range(k0, k0 + 5):
            if k + 3 < k0 + 5: bl(k + 3)
            a(f"s_waitcnt lgkmcnt({2*min(3, k0 + 4 - k)})")
            r = br + 8*(k % 4)
            a(mfma32(acc, wo + 4*k, r, None if k == 0 else acc))
            a(mfma32(acc + 16, wo + 4*k, r + 4, None if k == 0 else acc + 16))
    a("s_cmp_eq_u32 s85, 0"); a(f"s_cbranch_scc1 {lskip}")
    if hook: a("s_waitcnt vmcnt(5)")
    half(0)
    a("s_waitcnt vmcnt(0)")
    a("s_barrier")
    half(1)
    a("s_barrier")
    a("s_lshl_b32 s80, s3, 13"); a("v_add_u32 v1, s80, v3")
    a("s_nop 7")
    for tt in range(2):
        for i in range(4):
            a(f"ds_write_b128 v1, v[{acc+16*tt+4*i}:{acc+16*tt+4*i+3}] offset:{(tt*4+i)*1024}")
    a("s_waitcnt lgkmcnt(0)")
    a(f"s_branch {ldone}")
    a.label(lskip)
    a("s_waitcnt vmcnt(0)")
    a("s_barrier")
    a("s_barrier")
    a.label(ldone)
    a("s_barrier")

def gen_attn(a, name, prio):
    if X("PRIOX"): a("s_setprio 3")
    srd(a, 24, 22, X_SZ)
    srd(a, 28, 20, KV_SZ, KV)
    srd(a, 36, 20, YF + YF_SZ)
    srd(a, 32, 8, 640*640*2)
    a("s_lshr_b32 s6, s3, 1")
    a("s_lshl_b32 s7, s4, 2")
    a("s_add_u32 s6, s6, s7")
    a("s_and_b32 s7, s3, 1")
    XR = (88, 108)
    a("v_lshrrev_b32 v10, 4, v0")
    a("v_and_b32 v11, 15, v0")
    a("s_and_b32 s11, s4, 6"); a("s_add_u32 s11, s11, s3"); a("s_and_b32 s11, s11, 7")
    a("s_lshl_b32 s8, s11, 3")
    a("v_add_u32 v12, s8, v10")
    a("s_lshl_b32 s9, s5, 6")
    a("v_add_u32 v13, s9, v12")
    a("v_mul_u32_u24 v13, 1280, v13")
    a("v_lshl_add_u32 v13, v11, 4, v13")
    for ps in range(2):
        a(f"s_mov_b32 s10, {ps*4*1280}")
        for j in range(5):
            a(f"buffer_load_dwordx4 v[{XR[ps]+4*j}:{XR[ps]+4*j+3}], v13, s[24:27], s10 offen offset:{256*j}")
    if X("TOUCH", "1") == "1":
        lt, ltb = a.uid("a_notouch"), a.uid("a_touchb")
        a("s_cmp_lt_u32 s3, 4"); a(f"s_cbranch_scc1 {lt}")
        a("s_cmp_ge_u32 s3, 6"); a(f"s_cbranch_scc1 {ltb}")
        a("s_lshr_b32 s10, s5, 3"); a("s_mul_i32 s10, s10, 96")
        a("s_sub_u32 s42, s3, 4"); a("s_lshl_b32 s42, s42, 6"); a("s_add_u32 s10, s10, s42")
        a("v_add_u32 v150, s10, v0")
        a("v_cmp_gt_u32 vcc, 192, v150")
        a("v_add_u32 v151, 128, v150"); a("v_add_u32 v152, 256, v150")
        a("v_cndmask_b32 v151, v152, v151, vcc")
        a("v_mul_u32_u24 v151, 1280, v151")
        a("s_mul_i32 s10, s4, 160")
        a("s_cmp_eq_u32 s3, 5"); a("s_cselect_b32 exec_hi, 0, -1")
        a("buffer_load_dword v153, v151, s[32:35], s10 offen")
        a("buffer_load_dword v154, v151, s[32:35], s10 offen offset:128")
        a("s_mov_b64 exec, -1")
        a(f"s_branch {lt}")
        a.label(ltb)
        j3b_params(a)
        lt2o, lt2g = a.uid("a_t2o"), a.uid("a_t2g")
        a("s_cmp_eq_u32 s99, 512"); a(f"s_cbranch_scc1 {lt2o}")
        srd(a, 32, 18, 1728*640*2)
        a(f"s_branch {lt2g}")
        a.label(lt2o)
        srd(a, 32, 14, 640*640*2)
        a.label(lt2g)
        a("s_sub_u32 s42, s3, 6"); a("s_mul_i32 s42, s42, 81920"); a("s_add_u32 s42, s42, s92")
        a("v_mul_u32_u24 v151, 1280, v0")
        a("s_cmp_eq_u32 s3, 7"); a("s_cselect_b32 exec_hi, 0, -1")
        a("buffer_load_dword v153, v151, s[32:35], s42 offen")
        a("s_mov_b64 exec, -1")
        a.label(lt)
    if X("PRIOX"): a("s_setprio 0")
    if X("B0", "1") == "1": a("s_barrier")
    a("s_lshr_b32 s10, s11, 2"); a(f"s_mul_i32 s10, s10, {XT}")
    a("v_and_b32 v14, 31, v12")
    a("v_lshlrev_b32 v14, 4, v14")
    a(f"v_mul_u32_u24 v15, {XC}, v11")
    a("v_add3_u32 v14, v14, v15, s10")
    a(f"v_add_u32 v1, {KVL}, v3")
    a("v_lshlrev_b32 v2, 3, v0")
    a(f"v_add_u32 v2, {KVL}, v2")
    a("v_mov_b32 v16, 0x3f803f80")
    for ps in range(2):
        R = XR[ps]
        a("v_mov_b32 v17, 0"); a("v_mov_b32 v18, 0")
        if ps == 0: hstamp(a, "A", 2)
        base = 5 if ps == 0 else 0
        if X("TOUCH", "1") == "1":
            l0, l1, l2 = a.uid("a_wx"), a.uid("a_wx"), a.uid("a_wx")
            a("s_cmp_lt_u32 s3, 4"); a(f"s_cbranch_scc1 {l0}")
            a("s_cmp_lt_u32 s3, 6"); a(f"s_cbranch_scc1 {l1}")
            a(f"s_waitcnt vmcnt({base + 1})"); a(f"s_branch {l2}")
            a.label(l1); a(f"s_waitcnt vmcnt({base + 2})"); a(f"s_branch {l2}")
            a.label(l0); a(f"s_waitcnt vmcnt({base})")
            a.label(l2)
        else:
            a(f"s_waitcnt vmcnt({base})")
        hstamp(a, "A", 3 + ps)
        if ps == 1:
            npf = 0
            if X("WQPF", "0") == "1":
                lnp = a.uid("a_nopf")
                a("s_cmp_ge_u32 s3, 6"); a(f"s_cbranch_scc1 {lnp}")
                a("s_lshl_b32 s10, s3, 6"); a("s_add_u32 s10, s10, 128")
                a("s_add_u32 s11, s10, 128"); a("s_cmp_ge_u32 s3, 3"); a("s_cselect_b32 s10, s11, s10")
                a("v_add_u32 v150, s10, v0"); a("v_mul_u32_u24 v150, 1280, v150")
                a("s_mul_i32 s10, s4, 160")
                a("buffer_load_dword v151, v150, s[32:35], s10 offen")
                a("buffer_load_dword v152, v150, s[32:35], s10 offen offset:128")
                a.label(lnp)
                npf = 0
        for i in range(20):
            a(f"v_dot2_f32_bf16 v17, v{R+i}, v16, v17")
            a(f"v_dot2_f32_bf16 v18, v{R+i}, v{R+i}, v18")
        for sh in (8, 4, 2, 1):
            a("s_nop 1")
            a(f"v_add_f32_dpp v17, v17, v17 row_ror:{sh} row_mask:0xf bank_mask:0xf")
            a(f"v_add_f32_dpp v18, v18, v18 row_ror:{sh} row_mask:0xf bank_mask:0xf")
        a("s_nop 0")
        a(f"v_mul_f32 v17, {f2u(1/640.):#x}, v17")
        a(f"v_mul_f32 v18, {f2u(1/640.):#x}, v18")
        a("v_fma_f32 v18, -v17, v17, v18")
        a("v_max_f32 v18, 0, v18")
        a(f"v_add_f32 v18, {f2u(1e-5):#x}, v18")
        a("v_rsq_f32 v18, v18")
        a("s_nop 0")
        a(f"v_mul_f32 v18, {f2u(LOG2E):#x}, v18")
        a("v_mul_f32 v19, v17, v18")
        for j in range(5):
            for i in range(4):
                r = R + 4*j + i
                t = 20 + 2*(i & 1)
                a(f"v_lshlrev_b32 v{t}, 16, v{r}")
                a(f"v_and_b32 v{t+1}, 0xffff0000, v{r}")
                a(f"v_fma_f32 v{t}, v{t}, v18, -v19")
                a(f"v_fma_f32 v{t+1}, v{t+1}, v18, -v19")
                a(f"v_cvt_pk_bf16_f32 v{r}, v{t}, v{t+1}")
            a(f"ds_write_b128 v14, v[{R+4*j}:{R+4*j+3}] offset:{j*16*XC + ps*64}")
    a(f"v_mov_b32 v20, {OCNT_L}"); a("v_mov_b32 v21, 0")
    a("ds_write_b32 v20, v21")
    a("s_waitcnt lgkmcnt(0)")
    hstamp(a, "A", 5)
    a("s_barrier")
    hstamp(a, "A", 6)
    nstamp(a, 2)
    dbg_mark(a, 0, 1, vt=160, nl=2, sreg=78)
    if prio is not None: a(f"s_setprio {prio}")
    a("v_lshrrev_b32 v16, 5, v0")
    a("v_and_b32 v17, 31, v0")
    a(f"v_mul_u32_u24 v10, {XC}, v16")
    a("v_lshl_add_u32 v10, v17, 4, v10")
    a(f"s_mul_i32 s10, s7, {20*XKS}")
    a("v_add_u32 v10, s10, v10")
    a(f"v_add_u32 v11, {XT}, v10")
    a("v_and_b32 v17, 15, v0"); a("v_lshrrev_b32 v18, 2, v17")
    a("v_lshl_add_u32 v18, v16, 3, v18")
    a("s_lshl_b32 s10, s7, 6"); a("v_add_u32 v18, s10, v18")
    a("v_mul_u32_u24 v18, 160, v18")
    a("v_bfe_u32 v19, v0, 4, 1"); a("v_lshl_add_u32 v18, v19, 5, v18")
    a("v_and_b32 v19, 3, v17"); a("v_lshl_add_u32 v18, v19, 3, v18")
    a("s_lshr_b32 s10, s3, 1"); a("s_mul_i32 s10, s10, 40")
    a("v_add_u32 v18, s10, v18")
    for b in range(3): a(f"v_add_u32 v{12+b}, {SB[b]}, v18")
    D0, D1 = S
    AQ = 88; BQ = (104, 136)
    def bread(st):
        b = BQ[st & 1]
        for kk in range(4):
            ks = 4*st + kk
            a(f"ds_read_b128 v[{b+8*kk}:{b+8*kk+3}], v10 offset:{ks*XKS}")
            a(f"ds_read_b128 v[{b+8*kk+4}:{b+8*kk+7}], v11 offset:{ks*XKS}")
    bread(0)
    for st in range(5):
        if st > 0: a("s_barrier")
        if st > 0: hstamp(a, "Q", st + 1)
        vb = 12 + STAGE_BUF[st]
        for kk in range(4):
            a(f"ds_read_b64_tr_b16 v[{AQ+4*kk}:{AQ+4*kk+1}], v{vb} offset:{kk*16*160}")
            a(f"ds_read_b64_tr_b16 v[{AQ+4*kk+2}:{AQ+4*kk+3}], v{vb} offset:{kk*16*160 + 640}")
        b = BQ[st & 1]
        for kk in range(4):
            ks = 4*st + kk
            nxt = 8 if (st < 4 and kk >= 1) else 0
            a(f"s_waitcnt lgkmcnt({min(15, 2*(3 - kk) + nxt)})")
            a(mfma32(D0, AQ + 4*kk, b + 8*kk, None if ks == 0 else D0))
            a(mfma32(D1, AQ + 4*kk, b + 8*kk + 4, None if ks == 0 else D1))
            if kk == 0 and st < 4: bread(st + 1)
        if st < 4: a("s_waitcnt lgkmcnt(0)")
    a("s_mul_i32 s44, s3, 3072")
    a(f"s_add_u32 s44, s44, {QXL}")
    a("v_add_u32 v12, s44, v3")
    a("s_xor_b32 s45, s3, 1"); a("s_mul_i32 s45, s45, 3072"); a(f"s_add_u32 s45, s45, {QXL}")
    a("v_add_u32 v13, s45, v3")
    lp1, lpd = a.uid("qx1"), a.uid("qxd")
    a("s_nop 7")
    a("s_cmp_eq_u32 s7, 1"); a(f"s_cbranch_scc1 {lp1}")
    for i in range(3): a(f"ds_write_b128 v12, v[{D1+4*i}:{D1+4*i+3}] offset:{i*1024}")
    a(f"s_branch {lpd}")
    a.label(lp1)
    for i in range(3): a(f"ds_write_b128 v12, v[{D0+4*i}:{D0+4*i+3}] offset:{i*1024}")
    a("s_waitcnt lgkmcnt(0)")
    for r in range(12): a(f"v_mov_b32 v{D0+r}, v{D1+r}")
    a.label(lpd)
    a("s_waitcnt lgkmcnt(0)")
    a("s_barrier")
    hstamp(a, "Q", 6)
    dbg_mark(a, 0, 2, vt=160, nl=2, sreg=78)
    for i in range(3): a(f"ds_read_b128 v[{D1+4*i}:{D1+4*i+3}], v13 offset:{i*1024}")
    a("v_cmp_gt_u32 vcc, 32, v0")
    a("s_waitcnt lgkmcnt(0)")
    D = D0
    for r in range(12): a(f"v_add_f32 v{D+r}, v{D+r}, v{D1+r}")
    for r in range(8, 12): a(f"v_cndmask_b32 v{D+r}, 0, v{D+r}, vcc")
    a(f"s_mov_b32 s45, {f2u(QSCALE):#x}")
    for r in range(12): a(f"v_mul_f32 v{D+r}, s45, v{D+r}")
    a(f"v_mul_f32 v136, v{D}, v{D}")
    for r in range(1, 12): a(f"v_fmac_f32 v136, v{D+r}, v{D+r}")
    for r in range(4): a(f"v_cvt_pk_bf16_f32 v{Q1+r}, v{D+2*r}, v{D+2*r+1}")
    for r in range(2): a(f"v_cvt_pk_bf16_f32 v{Q2+r}, v{D+8+2*r}, v{D+8+2*r+1}")
    a("v_mov_b32 v137, v136"); a("s_nop 1")
    a("v_permlane32_swap_b32 v136, v137"); a("s_nop 1")
    a("v_add_f32 v136, v136, v137")
    for r in range(16): a(f"v_mov_b32 v{O+r}, 0")
    for r in range(8): a(f"v_mov_b32 v{P+r}, 0")
    for r in range(8): a(f"v_mov_b32 v{E+r}, 0")
    for r in range(4): a(f"v_mov_b32 v{VB[1][1]+r}, 0")
    nstamp(a, 3)
    lw, lwp = a.uid("a_gw"), a.uid("a_gp")
    a("s_cmp_lg_u32 s3, 0"); a(f"s_cbranch_scc1 {lw}")
    a(f"v_mov_b32 v140, {NONCE_L}")
    a("ds_read_b32 v141, v140")
    spin_timeout(a, 42)
    a(f"s_mov_b32 s43, {GFL}")
    a("s_waitcnt lgkmcnt(0)")
    a("v_readfirstlane_b32 s44, v141")
    a.label(lwp)
    a("buffer_load_dwordx4 v[140:143], v3, s[36:39], s43 offen sc1")
    a("buffer_load_dwordx4 v[144:147], v3, s[36:39], s43 offen offset:1024 sc1")
    a("s_waitcnt vmcnt(0)")
    for r in range(140, 148): a(f"v_xor_b32 v{r}, s44, v{r}")
    for r in range(141, 148): a(f"v_or_b32 v140, v140, v{r}")
    a("v_cmp_ne_u32 vcc, 0, v140")
    a("s_sub_u32 s42, s42, 1")
    a("s_nop 3")
    a(f"s_cbranch_vccz {lw}")
    a("s_cmp_eq_u32 s42, 0"); a(f"s_cbranch_scc1 {lw}")
    a(f"s_sleep {X('GSLEEP', '4')}")
    a(f"s_branch {lwp}")
    a.label(lw)
    a("s_barrier")
    dbg_mark(a, 0, 3, vt=160, nl=2, sreg=78)
    a(f"s_mov_b32 s43, {KMX}")
    a(f"buffer_load_dwordx4 v[140:143], v3, s[36:39], s43 offen sc1")
    a("s_waitcnt vmcnt(0)")
    a("v_max_f32 v140, v140, v142")
    a("v_max_f32 v141, v141, v143")
    for sh in (8, 4, 2, 1):
        a("s_nop 1")
        a(f"v_max_f32_dpp v140, v140, v140 row_ror:{sh} row_mask:0xf bank_mask:0xf")
        a(f"v_max_f32_dpp v141, v141, v141 row_ror:{sh} row_mask:0xf bank_mask:0xf")
    for sw in ("16", "32"):
        a("v_mov_b32 v142, v140"); a("v_mov_b32 v143, v141"); a("s_nop 1")
        a(f"v_permlane{sw}_swap_b32 v140, v142"); a(f"v_permlane{sw}_swap_b32 v141, v143"); a("s_nop 1")
        a("v_max_f32 v140, v140, v142"); a("v_max_f32 v141, v141, v143")
    a("v_add_f32 v140, v140, v141")
    a("v_mul_f32 v136, v136, v140")
    a(f"s_mov_b32 s45, {f2u(THR*THR):#x}")
    a("v_cmp_nle_f32 vcc, v136, s45")
    lfast = a.uid("attn_fast")
    a("s_nop 4")
    a(f"s_cbranch_vccz {lfast}")
    lm = a.uid("attn_maxloop")
    M = 136; TK = 140
    a(f"v_mov_b32 v{M}, 0xff800000")
    a("s_mov_b32 s46, 0")
    a(f"v_lshlrev_b32 v{M+1}, 3, v0")
    a.label(lm)
    a(f"buffer_load_dwordx4 v[{TK}:{TK+3}], v3, s[28:31], s46 offen sc1")
    a(f"buffer_load_dwordx2 v[{TK+4}:{TK+5}], v{M+1}, s[28:31], s46 offen offset:1024 sc1")
    a("s_waitcnt vmcnt(0)")
    a(mfma32(S[1], TK, Q1, None))
    a(mfma8(S[1], TK+4, Q2, S[1]))
    a("s_add_u32 s46, s46, 4096")
    a("s_nop 15")
    for r in range(0, 16, 2): a(f"v_max3_f32 v{M}, v{M}, v{S[1]+r}, v{S[1]+r+1}")
    a(f"s_cmp_lt_u32 s46, {64*4096}")
    a(f"s_cbranch_scc1 {lm}")
    a(f"v_mov_b32 v{M+2}, v{M}"); a("s_nop 1")
    a(f"v_permlane32_swap_b32 v{M}, v{M+2}"); a("s_nop 1")
    a(f"v_max_f32 v{M}, v{M}, v{M+2}")
    a(f"v_xor_b32 v{M}, 0x80000000, v{M}")
    a(f"v_and_b32 v{M+1}, 0xffff0000, v{M}")
    a(f"v_sub_f32 v{M+2}, v{M}, v{M+1}")
    a(f"v_and_b32 v{M+3}, 0xffff0000, v{M+2}")
    a(f"v_sub_f32 v{M+2}, v{M+2}, v{M+3}")
    a(f"v_lshrrev_b32 v{M+2}, 16, v{M+2}")
    a(f"v_lshrrev_b32 v{M+1}, 16, v{M+1}")
    a(f"v_or_b32 v{M+1}, v{M+1}, v{M+3}")
    a("v_cmp_lt_u32 vcc, 31, v0")
    a("s_nop 1")
    a(f"v_cndmask_b32 v{Q2}, v{Q2}, v{M+1}, vcc")
    a(f"v_cndmask_b32 v{Q2+1}, v{Q2+1}, v{M+2}, vcc")
    a.label(lfast)
    a("s_barrier")
    a(f"ds_read_b128 v[{KB[0][0]}:{KB[0][0]+3}], v1 offset:0")
    a(f"ds_read_b64 v[{KB[0][1]}:{KB[0][1]+1}], v2 offset:1024")
    a("s_waitcnt lgkmcnt(0)")
    a(mfma32(S[0], KB[0][0], Q1, None))
    a(mfma8(S[0], KB[0][1], Q2, S[0]))
    a(f"ds_read_b128 v[{KB[1][0]}:{KB[1][0]+3}], v1 offset:{4096}")
    a(f"ds_read_b64 v[{KB[1][1]}:{KB[1][1]+1}], v2 offset:{4096+1024}")
    a(f"ds_read_b128 v[{VB[0][0]}:{VB[0][0]+3}], v1 offset:2048")
    a(f"ds_read_b128 v[{VB[0][1]}:{VB[0][1]+3}], v1 offset:3072")
    a("s_nop 7")
    nstamp(a, 4)
    dbg_mark(a, 0, 4, vt=160, nl=2, sreg=78)
    tail_setup(a)
    a("s_mov_b32 s47, 4")
    lp = a.uid("attn_loop")
    body = Asm()
    WOR = 104
    for t in range(16):
        if t % 4 == 0 and t > 0: body("s_barrier")
        if t == 12:
            lw = body.uid("nowo")
            body("s_cmp_lg_u32 s47, 1"); body(f"s_cbranch_scc1 {lw}")
            tail_wo_loads(body, WOR)
            body.label(lw)
        attn_tile(body, t)
    a.label(lp)
    a.lines += body.lines
    a("s_sub_u32 s47, s47, 1")
    a("s_cmp_eq_u32 s47, 0")
    lout = a.uid("attn_out")
    a(f"s_cbranch_scc1 {lout}")
    a("s_barrier")
    a(f"s_branch {lp}")
    a.label(lout)
    nstamp(a, 5)
    hstamp(a, "T", 1)
    dbg_mark(a, 0, 5, vt=160, nl=2, sreg=78)
    a(f"v_cvt_pk_bf16_f32 v{P+6}, v{E+4}, v{E+5}")
    a(f"v_cvt_pk_bf16_f32 v{P+7}, v{E+6}, v{E+7}")
    a("s_waitcnt lgkmcnt(0)")
    a("s_nop 0")
    a(mfma32(O, VB[1][1], P + 4, O))
    a("v_lshrrev_b32 v144, 5, v0")
    a("s_mul_i32 s48, s6, 5")
    a("v_add_u32 v145, s48, v144")
    a("v_and_b32 v146, 31, v0")
    a("v_lshlrev_b32 v146, 4, v146")
    def qoff(dst, q):
        a(f"v_lshrrev_b32 v147, 2, v{q}")
        a(f"v_lshlrev_b32 v{dst}, 10, v147")
        a(f"v_bfe_u32 v147, v{q}, 1, 1")
        a(f"v_lshl_add_u32 v{dst}, v147, 9, v{dst}")
        a(f"v_and_b32 v147, 1, v{q}")
        a(f"v_lshl_add_u32 v{dst}, v147, 3, v{dst}")
        a(f"v_add_u32 v{dst}, v{dst}, v146")
    qoff(148, 145)
    a("v_add_u32 v145, 2, v145")
    qoff(149, 145)
    a("s_add_u32 s48, s48, 4")
    a("v_mov_b32 v145, s48")
    qoff(150, 145)
    a("s_lshl_b32 s49, s5, 1")
    a("s_add_u32 s49, s49, s7")
    a("s_mul_i32 s49, s49, 40960")
    a(f"s_add_u32 s49, s49, {OF}")
    a(f"v_mov_b32 v152, v{O+8}")
    a(f"v_mov_b32 v153, v{O+8}")
    a("s_nop 1")
    a("v_permlane32_swap_b32 v152, v153")
    a("s_nop 1")
    a("v_rcp_f32 v153, v153")
    a("s_nop 0")
    for r in range(12): a(f"v_mul_f32 v{O+r}, v{O+r}, v153")
    for r in range(6): a(f"v_cvt_pk_bf16_f32 v{154+r}, v{O+2*r}, v{O+2*r+1}")
    a("buffer_store_dwordx2 v[154:155], v148, s[36:39], s49 offen" + ST)
    a("buffer_store_dwordx2 v[156:157], v149, s[36:39], s49 offen" + ST)
    a("v_cmp_gt_u32 vcc, 32, v0")
    a("s_and_saveexec_b64 s[50:51], vcc")
    a("buffer_store_dwordx2 v[158:159], v150, s[36:39], s49 offen" + ST)
    a("s_mov_b64 exec, s[50:51]")
    hstamp(a, "T", 2)
    a(f"v_mov_b32 v144, {OCNT_L}"); a("v_mov_b32 v145, 1")
    a(f"v_mov_b32 v146, {NONCE_L}"); a("ds_read_b32 v147, v146")
    a("s_waitcnt vmcnt(0)")
    hstamp(a, "T", 3)
    a("s_mov_b64 exec, 1")
    a("ds_add_u32 v144, v145")
    a("s_mov_b64 exec, -1")
    lw, lc, lp = a.uid("t_w"), a.uid("t_c"), a.uid("t_p")
    a("s_cmp_lg_u32 s3, 0"); a(f"s_cbranch_scc1 {lw}")
    a("s_lshl_b32 s48, s5, 7"); a(f"s_add_u32 s48, s48, {OFL}")
    a("s_lshl_b32 s49, s4, 2"); a("s_add_u32 s49, s49, s48")
    a("v_and_b32 v148, 7, v0"); a("v_lshlrev_b32 v148, 2, v148"); a("v_mov_b32 v149, 0")
    a("s_mov_b32 s43, 0x100000")
    a("s_waitcnt lgkmcnt(0)")
    a("v_readfirstlane_b32 s44, v147")
    a.label(lc)
    a("ds_read_b32 v150, v144")
    a("s_waitcnt lgkmcnt(0)")
    a("v_readfirstlane_b32 s45, v150")
    a("s_sub_u32 s43, s43, 1")
    a("s_cmp_eq_u32 s43, 0"); a(f"s_cbranch_scc1 {lw}")
    a("s_cmp_lt_u32 s45, 8"); a(f"s_cbranch_scc1 {lc}")
    a("v_mov_b32 v150, s44")
    a("s_mov_b64 exec, 1")
    a("buffer_store_dword v150, v149, s[36:39], s49 offen sc1")
    a("s_mov_b64 exec, -1")
    a("s_mov_b32 s43, 0x8000")
    a.label(lp)
    a("buffer_load_dword v150, v148, s[36:39], s48 offen sc1")
    a("s_waitcnt vmcnt(0)")
    a("v_cmp_ne_u32 vcc, s44, v150")
    a("s_sub_u32 s43, s43, 1")
    a("s_nop 3")
    a(f"s_cbranch_vccz {lw}")
    a("s_cmp_eq_u32 s43, 0"); a(f"s_cbranch_scc1 {lw}")
    a(f"s_branch {lp}")
    a.label(lw)
    a("s_waitcnt lgkmcnt(0)")
    a("s_barrier")
    hstamp(a, "T", 4)
    tail_gemm(a, WOR, S[0], 64)
    dbg_mark(a, 0, 6, vt=160, nl=1, sreg=78)
    nstamp(a, 6); hstamp(a, "T", 6); stamp_rt(a, 7)
    stamp_store(a, 8)
    a("s_endpgm")
    return check_hazards(body.lines + body.lines, name + ":loop")

def tr_addr(a, dst, base_s, hm, delta):
    a(f"v_lshrrev_b32 v{dst}, 5, v0"); a(f"v_mul_lo_u32 v{dst}, v{dst}, {hm}")
    a(f"v_and_b32 v{dst+1}, 15, v0"); a(f"v_lshrrev_b32 v{dst+2}, 2, v{dst+1}"); a(f"v_add_u32 v{dst}, v{dst}, v{dst+2}")
    a(f"v_lshlrev_b32 v{dst}, 7, v{dst}")
    a(f"v_bfe_u32 v{dst+2}, v0, 4, 1"); a(f"v_lshl_add_u32 v{dst}, v{dst+2}, 5, v{dst}")
    a(f"v_and_b32 v{dst+2}, 3, v{dst+1}"); a(f"v_lshl_add_u32 v{dst}, v{dst+2}, 3, v{dst}")
    a(f"v_add_u32 v{dst}, {base_s}, v{dst}")
    a(f"v_add_u32 v{dst+1}, {delta}, v{dst}")

def gen_ffn_head(a, name):
    if not X("PRIOX"): a("s_setprio 3")
    srd(a, 28, 20, KV_SZ, KV)
    srd(a, 36, 20, YF + YF_SZ)
    lkvw, lcommon = a.uid("h_kvw"), a.uid("h_common")
    a("s_cmp_lt_u32 s6, 2"); a(f"s_cbranch_scc1 {lkvw}")
    srd(a, 32, 8, 640*640*2)
    l3, lq = a.uid("h_w3"), a.uid("h_wq")
    a("s_cmp_eq_u32 s6, 3"); a(f"s_cbranch_scc1 {l3}")
    lwo, lgo = a.uid("h_jo"), a.uid("h_jg")
    a("s_cmp_ge_u32 s2, 216"); a(f"s_cbranch_scc1 {lwo}")
    srd(a, 24, 16, 640*1728*2)
    a(f"s_mul_hi_u32 s54, s2, {(1 << 32)//27 + 1}")
    a("s_mul_i32 s55, s54, 27"); a("s_sub_u32 s55, s2, s55")
    a("s_mov_b32 s48, 3456")
    a(f"s_mul_i32 s49, s54, {80*3456}"); a("s_lshl_b32 s43, s55, 7"); a("s_add_u32 s49, s49, s43")
    a(f"s_mul_i32 s50, s55, {2*40*1024}"); a("s_mul_i32 s43, s54, 5120"); a("s_add_u32 s50, s50, s43"); a(f"s_add_u32 s50, s50, {W1F}")
    a(f"s_branch {lgo}")
    a.label(lwo)
    srd(a, 24, 14, 640*640*2)
    a("s_sub_u32 s42, s2, 216")
    a(f"s_mul_hi_u32 s54, s42, {(1 << 32)//10 + 1}")
    a("s_mul_i32 s55, s54, 10"); a("s_sub_u32 s55, s42, s55")
    a("s_mov_b32 s48, 1280")
    a(f"s_mul_i32 s49, s54, {80*1280}"); a("s_lshl_b32 s43, s55, 7"); a("s_add_u32 s49, s49, s43")
    a(f"s_mul_i32 s50, s55, {2*40*1024}"); a("s_mul_i32 s43, s54, 5120"); a("s_add_u32 s50, s50, s43"); a(f"s_add_u32 s50, s50, {WOF}")
    a.label(lgo)
    a("v_lshrrev_b32 v4, 3, v0"); a("v_mul_lo_u32 v4, v4, s48")
    a("v_and_b32 v5, 7, v0"); a("v_lshl_add_u32 v4, v5, 4, v4")
    a("v_mov_b32 v8, v4")
    a(f"s_branch {lq}")
    a.label(l3)
    if X("TLBW", "0") == "1":
        a("v_lshlrev_b32 v4, 21, v0")
        a("s_mov_b64 exec, 0xffff")
        a("buffer_load_dword v162, v4, s[36:39], 0 offen")
        a("s_mov_b64 exec, 3")
        srd(a, 24, 88, X_SZ)
        a("buffer_load_dword v163, v4, s[24:27], 0 offen")
        srd(a, 24, 18, 1728*640*2)
        a("buffer_load_dword v164, v4, s[24:27], 0 offen")
        srd(a, 24, 14, 640*640*2)
        a("buffer_load_dword v165, v4, s[24:27], 0 offen")
        srd(a, 24, 16, 640*1728*2)
        a("buffer_load_dword v166, v4, s[24:27], 0 offen")
        a("s_mov_b64 exec, -1")
    if X("CODEPF", "0") == "1":
        lcp = a.uid("h_nocp")
        a("s_cmp_ge_u32 s2, 8"); a(f"s_cbranch_scc1 {lcp}")
        a("s_getpc_b64 s[54:55]")
        a.label(f"{name}_pc0")
        a(f"s_sub_u32 s54, s54, {name}_pc0-{name}"); a("s_subb_u32 s55, s55, 0")
        a("v_lshlrev_b32 v4, 7, v0")
        for i in range(CODE_PF_KB // 8):
            a(f"global_load_dword v{160+i}, v4, s[54:55]")
            a("s_add_u32 s54, s54, 8192"); a("s_addc_u32 s55, s55, 0")
        a.label(lcp)
    a("s_cmp_lg_u32 s2, 0"); a(f"s_cbranch_scc1 {lq}")
    a("s_memrealtime s[54:55]")
    a("s_waitcnt lgkmcnt(0)")
    a("s_or_b32 s54, s54, 1")
    a("v_mov_b32 v4, 0"); a("v_mov_b32 v5, s54")
    a("s_mov_b64 exec, 1")
    a("global_store_dword v4, v5, s[90:91] sc1")
    a("s_mov_b64 exec, -1")
    a.label(lq)
    WQ = 148
    a("s_sub_u32 s56, s6, 2")
    a(f"v_mul_u32_u24 v4, 26, v0"); a("v_lshrrev_b32 v4, 8, v4")
    for l_ in range(64): assert (l_*26) >> 8 == l_//10
    a("v_mul_u32_u24 v5, 10, v4"); a("v_sub_u32 v5, v0, v5")
    a("v_mul_u32_u24 v4, 1280, v4")
    a(f"v_lshl_add_u32 v{WQ}, v5, 4, v4")
    a("s_mul_i32 s57, s4, 160")
    a(f"s_mul_i32 s58, s56, {320*1280}"); a("s_add_u32 s58, s58, s57")
    a("s_mul_i32 s59, s56, 10240")
    a("s_mov_b32 s76, -1"); a("s_mov_b32 s77, 0x0fffffff")
    a("s_mov_b32 s78, -1"); a("s_mov_b32 s79, 0xff")
    NWQ = 11
    def wq_stage(st):
        a(f"s_add_u32 s41, s58, {st*64*1280}")
        a("s_mov_b64 exec, s[76:77]")
        for i in range(NWQ):
            if i == NWQ - 1: a("s_mov_b64 exec, s[78:79]")
            a(f"s_add_u32 m0, s59, {SB[STAGE_BUF[st]] + i*960}")
            a("s_nop 0")
            a(f"buffer_load_dwordx4 v{WQ}, s[32:35], s41 offen lds")
            if i < NWQ - 1: a("s_add_u32 s41, s41, 7680")
        a("s_mov_b64 exec, -1")
    if X("TOUCH0", "0") == "1":
        lt3, ltd = a.uid("h_t3"), a.uid("h_td")
        a("s_cmp_eq_u32 s6, 3"); a(f"s_cbranch_scc1 {lt3}")
        a("v_mul_lo_u32 v4, v0, s48")
        a("buffer_load_dword v160, v4, s[24:27], s49 offen")
        a("s_lshl_b32 s42, s48, 6"); a("s_add_u32 s42, s42, s49")
        a("s_mov_b64 exec, 0xffff")
        a("buffer_load_dword v161, v4, s[24:27], s42 offen")
        a("s_mov_b64 exec, -1")
        a(f"s_branch {ltd}")
        a.label(lt3)
        a("s_lshr_b32 s42, s5, 3"); a("s_and_b32 s43, s42, 1"); a("s_lshl_b32 s43, s43, 6")
        a("s_lshr_b32 s42, s42, 1"); a("s_mul_i32 s42, s42, 320"); a("s_add_u32 s42, s42, s43")
        a("v_add_u32 v4, s42, v0"); a("v_mul_u32_u24 v4, 1280, v4")
        a("buffer_load_dword v160, v4, s[32:35], s57 offen")
        a("buffer_load_dword v161, v4, s[32:35], s57 offen offset:128")
        a.label(ltd)
    if X("B0", "1") == "1": a("s_barrier")
    wq_stage(0); wq_stage(1)
    if X("PRIOX"): a("s_setprio 3")
    lw3, lbln = a.uid("h_w3b"), a.uid("h_bln")
    a("s_cmp_eq_u32 s6, 3"); a(f"s_cbranch_scc1 {lw3}")
    a("s_lshl_b32 s43, s48, 3")
    for i in range(10):
        a(f"s_mov_b32 m0, {J3L + i*1024}")
        a("s_nop 0")
        a("buffer_load_dwordx4 v8, s[24:27], s49 offen lds")
        a("s_add_u32 s49, s49, s43")
    j3b_params(a)
    tr_addr(a, 5, J3L, 8, 512)
    hstamp(a, "F", 2)
    a("s_waitcnt vmcnt(21)")
    hstamp(a, "F", 3)
    a("s_barrier")
    hstamp(a, "F", 4)
    a("s_waitcnt vmcnt(0)")
    hstamp(a, "F", 5)
    for nt in range(2):
        for kk in range(5):
            r = 16 + 4*(nt*5+kk)
            a(f"ds_read_b64_tr_b16 v[{r}:{r+1}], v5 offset:{nt*64 + kk*2048}")
            a(f"ds_read_b64_tr_b16 v[{r+2}:{r+3}], v6 offset:{nt*64 + kk*2048}")
        a("s_waitcnt lgkmcnt(0)")
        for kk in range(5):
            r = 16 + 4*(nt*5+kk)
            a(f"s_add_u32 s42, s50, {kk*1024 + nt*40960}")
            a(f"buffer_store_dwordx4 v[{r}:{r+3}], v3, s[36:39], s42 offen sc1")
    a(f"s_branch {lbln}")
    a.label(lw3)
    j3b_params(a)
    hstamp(a, "K", 2)
    a("s_waitcnt vmcnt(11)")
    a("s_barrier")
    lp, lpd = a.uid("h_np"), a.uid("h_npd")
    spin_timeout(a, 42)
    a("v_mov_b32 v4, 0")
    a.label(lp)
    a("global_load_dword v5, v4, s[90:91] sc1")
    a("s_waitcnt vmcnt(0)")
    a("v_readfirstlane_b32 s43, v5")
    a("s_sub_u32 s42, s42, 1")
    a("s_cmp_lg_u32 s43, 0"); a(f"s_cbranch_scc1 {lpd}")
    a("s_cmp_eq_u32 s42, 0"); a(f"s_cbranch_scc1 {lpd}")
    a("s_sleep 1")
    a(f"s_branch {lp}")
    a.label(lpd)
    hstamp(a, "K", 3)
    a(f"v_mov_b32 v4, {NONCE_L}")
    a("ds_write_b32 v4, v5")
    a("s_waitcnt lgkmcnt(0)")
    hstamp(a, "K", 4)
    a.label(lbln)
    hstamp(a, "F", 6)
    a("s_barrier")
    wq_stage(2); wq_stage(3)
    a(f"v_mov_b32 v4, {NONCE_L}")
    a("ds_read_b32 v5, v4")
    a("s_waitcnt lgkmcnt(0)")
    a(f"v_readfirstlane_b32 s{NONCE}, v5")
    a("s_waitcnt vmcnt(11)")
    a("s_barrier")
    wq_stage(4)
    lj2o, lj2g = a.uid("h_j2so"), a.uid("h_j2sg")
    a("s_cmp_eq_u32 s99, 512"); a(f"s_cbranch_scc1 {lj2o}")
    srd(a, 24, 18, 1728*640*2)
    a(f"s_branch {lj2g}")
    a.label(lj2o)
    srd(a, 24, 14, 640*640*2)
    a.label(lj2g)
    a("v_lshrrev_b32 v4, 3, v0"); a("v_mul_u32_u24 v4, 1280, v4")
    a("v_and_b32 v5, 7, v0"); a("v_lshl_add_u32 v4, v5, 4, v4")
    a("s_mul_i32 s48, s56, 61440"); a("s_add_u32 s48, s48, s92")
    a("s_mul_i32 s49, s56, 6144")
    for i in range(6):
        a(f"s_add_u32 m0, s49, {J3L + i*1024}")
        a("s_nop 0")
        a("buffer_load_dwordx4 v4, s[24:27], s48 offen lds")
        if i < 5: a("s_add_u32 s48, s48, 10240")
    lnf, lw2 = a.uid("h_nf"), a.uid("h_w2f")
    ldone = a.uid("h_done")
    a("v_mov_b32 v4, 0"); a(f"v_mov_b32 v5, s{NONCE}")
    a("s_cmp_eq_u32 s6, 3"); a(f"s_cbranch_scc1 {lnf}")
    a("s_lshl_b32 s42, s2, 2"); a(f"s_add_u32 s42, s42, {GFL + 1024}")
    a("s_mov_b64 exec, 1")
    a("buffer_store_dword v5, v4, s[36:39], s42 offen sc1")
    a("s_mov_b64 exec, -1")
    a("s_waitcnt vmcnt(18)"); a("s_barrier")
    a("s_waitcnt vmcnt(1)"); a("s_barrier")
    a(f"s_branch {ldone}")
    a.label(lnf)
    a("s_waitcnt vmcnt(17)"); a("s_barrier")
    a("s_lshl_b32 s42, s2, 2"); a(f"s_add_u32 s42, s42, {GFL}")
    a("s_mov_b64 exec, 1")
    a("buffer_store_dword v5, v4, s[36:39], s42 offen sc1")
    a("s_mov_b64 exec, -1")
    a("s_waitcnt vmcnt(1)"); a("s_barrier")
    a(f"s_branch {ldone}")
    a.label(lkvw)
    lv, lkv = a.uid("h_isv"), a.uid("h_kv")
    a("s_and_b32 s7, s4, 1")
    a("s_cmp_eq_u32 s7, 1"); a(f"s_cbranch_scc1 {lv}")
    srd(a, 44, 10, 25600)
    a(f"s_branch {lkv}")
    a.label(lv)
    srd(a, 44, 12, 25600)
    a.label(lkv)
    if X("TOUCH0", "0") == "1":
        lt0 = a.uid("h_t0")
        a("s_cmp_lg_u32 s6, 0"); a(f"s_cbranch_scc1 {lt0}")
        a("s_lshr_b32 s42, s4, 1"); a("s_lshr_b32 s43, s5, 3"); a("s_lshl_b32 s43, s43, 2"); a("s_add_u32 s42, s42, s43")
        a("s_mul_i32 s42, s42, 1664")
        a("v_lshlrev_b32 v4, 7, v0")
        a("s_mov_b64 exec, 0x1fff")
        a("buffer_load_dword v160, v4, s[44:47], s42 offen")
        a("s_mov_b64 exec, -1")
        a.label(lt0)
    if X("B0", "1") == "1": a("s_barrier")
    a("s_lshr_b32 s42, s2, 3"); a("s_and_b32 s42, s42, 31"); a("s_mul_i32 s42, s42, 43"); a("s_lshr_b32 s42, s42, 7")
    a("s_lshl_b32 s40, s6, 10")
    for j in range(12):
        a(f"s_add_u32 s43, s42, {j}"); a("s_sub_u32 s41, s43, 12"); a("s_cmp_ge_u32 s43, 12"); a("s_cselect_b32 s43, s41, s43")
        a("s_lshl_b32 s43, s43, 11"); a("s_add_u32 s41, s43, s40")
        a(f"s_add_u32 m0, s41, {WKVL}")
        a("s_nop 0")
        a("buffer_load_dwordx4 v3, s[44:47], s41 offen lds")
    l24 = a.uid("h_no24")
    a("s_cmp_lg_u32 s6, 0"); a(f"s_cbranch_scc1 {l24}")
    a(f"s_mov_b32 m0, {WKVL + 24576}")
    a("s_movk_i32 s41, 24576")
    a("buffer_load_dwordx4 v3, s[44:47], s41 offen lds")
    a.label(l24)
    if X("PRIOX"): a("s_setprio 3")
    j3b_params(a)
    XF, WF, D = 4, 84, 164
    a("s_lshr_b32 s48, s4, 1")
    a("v_lshrrev_b32 v4, 4, v0")
    a("v_and_b32 v5, 15, v0")
    a("s_and_b32 s49, s48, 1"); a("s_lshl_b32 s50, s49, 4")
    a("v_add_u32 v6, s50, v5")
    a(f"v_mul_u32_u24 v1, {XC}, v4"); a("v_lshl_add_u32 v1, v6, 4, v1")
    a("s_lshr_b32 s51, s48, 1"); a(f"s_mul_i32 s51, s51, {XT}")
    a("v_add_u32 v1, s51, v1")
    a("v_lshrrev_b32 v2, 2, v5"); a("v_lshl_add_u32 v2, v4, 3, v2"); a("v_mul_u32_u24 v2, 40, v2")
    a("v_and_b32 v7, 3, v5"); a("v_lshl_add_u32 v2, v7, 3, v2")
    a("s_lshl_b32 s51, s6, 5"); a(f"s_add_u32 s51, s51, {WKVL}")
    a("v_add_u32 v2, s51, v2")
    a("s_lshl_b32 s52, s5, 1"); a("s_lshr_b32 s53, s48, 1"); a("s_add_u32 s52, s52, s53")
    a("s_lshl_b32 s52, s52, 12"); a(f"s_add_u32 s52, s52, {KV}")
    a("s_lshl_b32 s53, s5, 2"); a("s_add_u32 s53, s53, s48")
    hstamp(a, "K", 2)
    a("s_waitcnt vmcnt(0)")
    hstamp(a, "K", 3)
    rstamp(a, 2)
    a("s_barrier")
    hstamp(a, "K", 4)
    rstamp(a, 3)
    lvm, lmd = a.uid("h_vm"), a.uid("h_md")
    for ks in range(20):
        a(f"ds_read_b128 v[{XF+4*ks}:{XF+4*ks+3}], v1 offset:{ks*2*XKS}")
        a(f"ds_read_b64_tr_b16 v[{WF+4*ks}:{WF+4*ks+1}], v2 offset:{ks*1280}")
        a(f"ds_read_b64_tr_b16 v[{WF+4*ks+2}:{WF+4*ks+3}], v2 offset:{ks*1280+160}")
        if ks % 4 == 3: a("s_waitcnt lgkmcnt(3)")
    a("s_waitcnt lgkmcnt(0)")
    hstamp(a, "K", 5)
    a("s_barrier")
    hstamp(a, "K", 6)
    a(f"v_mov_b32 v1, {NONCE_L}")
    a("ds_read_b32 v2, v1")
    def kvmm(isv):
        for k in range(20):
            c = "0" if k == 0 else f"v[{D}:{D+3}]"
            x, w = f"v[{XF+4*k}:{XF+4*k+3}]", f"v[{WF+4*k}:{WF+4*k+3}]"
            a(f"v_mfma_f32_16x16x32_bf16 v[{D}:{D+3}], {x if isv else w}, {w if isv else x}, {c}")
    a("s_cmp_eq_u32 s7, 1"); a(f"s_cbranch_scc1 {lvm}")
    kvmm(False)
    a(f"s_branch {lmd}")
    a.label(lvm)
    kvmm(True)
    a.label(lmd)
    a("s_waitcnt lgkmcnt(0)")
    a(f"v_readfirstlane_b32 s{NONCE}, v2")
    a("v_lshrrev_b32 v88, 4, v0")
    a("v_and_b32 v89, 15, v0")
    a("v_add_u32 v90, s50, v89")
    a("v_and_b32 v93, 1, v88")
    a("v_lshrrev_b32 v94, 1, v88")
    a("s_nop 7")
    for r in range(4): a(f"v_mul_f32 v{D+r}, {f2u(LN2):#x}, v{D+r}")
    a(f"v_cvt_pk_bf16_f32 v96, v{D}, v{D+1}")
    a(f"v_cvt_pk_bf16_f32 v97, v{D+2}, v{D+3}")
    l0, l1, l2, l3v, lst = (a.uid("h_ep") for _ in range(5))
    a("s_lshl_b32 s54, s7, 1"); a("s_add_u32 s54, s54, s6")
    a("s_cmp_eq_u32 s54, 0"); a(f"s_cbranch_scc1 {l0}")
    a("s_cmp_eq_u32 s54, 1"); a(f"s_cbranch_scc1 {l1}")
    a("s_cmp_eq_u32 s54, 2"); a(f"s_cbranch_scc1 {l2}")
    a(f"s_branch {l3v}")
    def knorm(slot):
        a(f"v_mul_f32 v98, v{D}, v{D}")
        for r in range(1, 4): a(f"v_fmac_f32 v98, v{D+r}, v{D+r}")
        if slot == 1:
            a("v_cmp_eq_u32 vcc, 0, v88")
            a("s_nop 1")
            a("v_cndmask_b32 v98, 0, v98, vcc")
        for sw in ("32", "16"):
            a("v_mov_b32 v99, v98"); a("s_nop 1")
            a(f"v_permlane{sw}_swap_b32 v98, v99"); a("s_nop 1")
            a("v_add_f32 v98, v98, v99")
        for sh in (8, 4, 2, 1):
            a("s_nop 1")
            a(f"v_max_f32_dpp v98, v98, v98 row_ror:{sh} row_mask:0xf bank_mask:0xf")
        a("s_lshl_b32 s55, s53, 3"); a(f"s_add_u32 s55, s55, {KMX + 4*slot}")
        a("v_mov_b32 v99, 0")
        a("s_mov_b64 exec, 1")
        a("buffer_store_dword v98, v99, s[36:39], s55 offen sc1")
        a("s_mov_b64 exec, -1")
    a.label(l0)
    a("v_lshl_add_u32 v95, v93, 5, v90"); a("v_lshlrev_b32 v95, 4, v95"); a("v_lshl_add_u32 v95, v94, 3, v95")
    a("buffer_store_dwordx2 v[96:97], v95, s[36:39], s52 offen sc1")
    knorm(0)
    a(f"s_branch {lst}")
    a.label(l1)
    a("v_cmp_eq_u32 vcc, 1, v88")
    a("v_mov_b32 v98, 0x3f803f80"); a("v_mov_b32 v99, 0x00003f80")
    a("v_cndmask_b32 v96, v96, v98, vcc"); a("v_cndmask_b32 v97, v97, v99, vcc")
    a("v_lshl_add_u32 v95, v88, 5, v90"); a("v_lshlrev_b32 v95, 3, v95"); a("v_add_u32 v95, 1024, v95")
    a("v_cmp_gt_u32 vcc, 2, v88")
    a("s_and_saveexec_b64 s[54:55], vcc")
    a("buffer_store_dwordx2 v[96:97], v95, s[36:39], s52 offen sc1")
    a("s_mov_b64 exec, s[54:55]")
    knorm(1)
    a(f"s_branch {lst}")
    a.label(l3v)
    a("v_cmp_gt_u32 vcc, 4, v89"); a("s_nop 1")
    a("v_cndmask_b32 v96, 0, v96, vcc"); a("v_cndmask_b32 v97, 0, v97, vcc")
    a("v_cmp_eq_u32 vcc, 4, v89"); a("v_mov_b32 v98, 0x3f803f80"); a("s_nop 0")
    a("v_cndmask_b32 v96, v96, v98, vcc"); a("v_cndmask_b32 v97, v97, v98, vcc")
    a("v_add_u32 v89, 16, v89")
    a.label(l2)
    a("v_lshl_add_u32 v95, v93, 5, v89"); a("v_lshlrev_b32 v95, 4, v95"); a("v_lshl_add_u32 v95, v94, 3, v95")
    a("s_lshl_b32 s55, s49, 10"); a("s_add_u32 s55, s55, s52"); a("s_add_u32 s55, s55, 2048")
    a("buffer_store_dwordx2 v[96:97], v95, s[36:39], s55 offen sc1")
    a.label(lst)
    a("s_barrier")
    rstamp(a, 4)
    a("s_waitcnt vmcnt(0)")
    rstamp(a, 5)
    a("s_barrier")
    a("s_barrier")
    a.label(ldone)
    a("s_setprio 0")

def gen_main(name="main_kernel", ffn=True, prio_attn=None, prio_ffn=None):
    a = Asm()
    a(f".globl {name}\n.p2align 8\n.type {name},@function")
    a.label(name)
    a("s_cmp_ge_u32 s2, 256")
    a(f"s_cbranch_scc1 {name}_end")
    stamp_rt(a, 0); stamp(a, 1)
    dbg_mark(a, 0, 0, first=True, vt=160, nl=2, sreg=78)
    a("s_load_dwordx2 s[22:23], s[0:1], 0")
    a("s_load_dwordx8 s[8:15], s[0:1], 8")
    a("s_load_dwordx4 s[16:19], s[0:1], 48")
    a("s_load_dwordx2 s[90:91], s[0:1], 72")
    a("s_load_dwordx2 s[20:21], s[0:1], 80")
    a("s_load_dwordx2 s[88:89], s[0:1], 64")
    a("v_lshrrev_b32 v1, 6, v0")
    a("v_and_b32 v0, 63, v0")
    a("v_readfirstlane_b32 s3, v1")
    a("v_lshlrev_b32 v3, 4, v0")
    a("s_lshr_b32 s4, s2, 3"); a("s_and_b32 s4, s4, 7")
    a("s_lshr_b32 s5, s2, 6"); a("s_lshl_b32 s5, s5, 3"); a("s_and_b32 s6, s2, 7"); a("s_add_u32 s5, s5, s6")
    a("s_waitcnt lgkmcnt(0)")
    lffn = f"{name}_ffn"
    a("s_cmp_ge_u32 s3, 8")
    a(f"s_cbranch_scc1 {lffn}")
    errs = gen_attn(a, name, prio_attn)
    a.label(lffn)
    a("s_sub_u32 s6, s3, 8")
    gen_ffn_head(a, name)
    import kfffn
    errs += kfffn.gen_ffn_main(a, name, prio_ffn, ffn)
    a.label(f"{name}_end")
    a("s_endpgm")
    errs += check_hazards(a.lines, name)
    return a.text(), kd(name, 168, 102), errs

def kernels(which):
    k2.PROF = bool(os.environ.get("PROF"))
    KN = "parallel_sum__grouped_kv_mqa__dense_activation_silu__prompt_kernel"
    t, d, e = gen_main(KN, ffn=(which != "attn"), prio_attn=X("PRIOA"), prio_ffn=X("PRIOF"))
    return [(KN, t, d, e, 256, 768, LDS_MAIN)]
```

```python
from asmlib import *
from layout import *
from k0 import srd
import k2
from k2 import mfma32, stamp, stamp_rt, stamp_store, X, ST
from kf import KVL, XT, XC, XKS, NONCE, HS, J3L, tail_setup, tail_wo_loads, tail_gemm

VX0, VX1 = 164, 165
VT = 160

class VM:
    def __init__(self, a): self.a = a; self.q = []
    def issue(self, tag, maybe=False): self.q.append((tag, maybe))
    def wait(self, tag, extra=""):
        hits = [i for i, t in enumerate(self.q) if t[0] == tag]
        if not hits:
            if extra: self.a("s_waitcnt" + extra)
            return
        idx = max(hits)
        n = sum(1 for t in self.q[idx + 1:] if not t[1])
        assert n <= 63
        self.a(f"s_waitcnt vmcnt({n}){extra}")
        self.q = self.q[idx + 1:]
    def clone(self, a):
        v = VM(a); v.q = list(self.q); return v

def kv_dma(a, vm, c):
    if c > 15: return
    a(f"s_add_u32 m0, s41, {(c % 4)*16384}")
    a(f"s_add_u32 s15, s40, {c*16384}")
    for i in range(4):
        a(f"buffer_load_dwordx4 v3, s[28:31], s15 offen offset:{i*1024} sc1 lds"); vm.issue(("kv", c))

BARS = ["B4", "HQ", "S1"] + [f"C{i}" for i in range(16)]
def bstamp(a, name):
    if not X("BSTAMP"): return
    i = BARS.index(name)
    a("s_memtime s[96:97]"); a("s_waitcnt lgkmcnt(0)"); a(f"s_mov_b32 s{64+i}, s96")
def bstamp_store(a):
    if not X("BSTAMP"): return
    a("s_memtime s[96:97]"); a("s_waitcnt lgkmcnt(0)"); a("s_mov_b32 s85, s96")
    a("s_lshl_b32 s58, s2, 2"); a("s_add_u32 s58, s58, s6"); a("s_lshl_b32 s58, s58, 7")
    a(f"s_add_u32 s56, s20, 0x8400000"); a("s_addc_u32 s57, s21, 0")
    a("v_mov_b32 v160, s58")
    for i in range(22):
        a(f"v_mov_b32 v161, s{64+i}")
        a(f"global_store_dword v160, v161, s[56:57] offset:{4*i}")
        a("s_nop 1")
def barrier(a, vm, name):
    if name == "B4":
        pass
    elif name == "HQ":
        a("s_barrier")
    elif name == "S1":
        a("s_barrier")
        for c in range(2): kv_dma(a, vm, c)
    else:
        c = int(name[1:])
        vm.wait(("kv", c + 1))
        if c == 0: vm.wait("j3st")
        a("s_barrier")
        if c == 0: kv_dma(a, vm, 2)
        kv_dma(a, vm, c + 3)
    bstamp(a, name)

VPRIO = int(X("VPRIO", "2"))
def hi(a):
    if VPRIO: a(f"s_setprio {VPRIO}")
def lo(a):
    if VPRIO: a("s_setprio 0")
def interleave(a, steps, fill):
    nslots = sum(len(s) for s in steps)
    out = []; done = 0; used = 0
    for s in steps:
        grp = []
        for slot in s:
            done += 1
            tgt = (len(fill)*done + nslots - 1)//nslots if nslots else 0
            mine = fill[used:tgt]; used = max(used, tgt)
            grp.append((slot, mine))
        def emit(grp=grp):
            for slot, mine in grp:
                slot()
                if mine and VPRIO: a(f"s_setprio {VPRIO}")
                for f in mine:
                    f() if callable(f) else a(f)
                if mine and VPRIO: a("s_setprio 0")
        out.append(emit)
    return out

def gen_ffn_main(a, name, prio, ffn=True):
    lend = f"{name}_end"
    vm0 = VM(a)
    a("s_lshl_b32 s40, s6, 12")
    a(f"s_add_u32 s41, s40, {KVL}")
    if not ffn:
        for b in BARS: barrier(a, vm0, b)
        a(f"s_branch {lend}")
        return []
    srd(a, 44, 20, W1F_SZ, W1F)
    srd(a, 48, 20, W2F_SZ, W2F)
    a("s_lshr_b32 s8, s4, 1"); a("s_and_b32 s9, s4, 1")
    a("s_lshl_b32 s7, s4, 2"); a("s_add_u32 s7, s7, s6")
    a("s_mul_i32 s12, s8, 5"); a("s_mul_i32 s13, s9, 3"); a("s_add_u32 s12, s12, s13")
    a("s_lshl_b32 s14, s5, 8"); a(f"s_add_u32 s14, s14, {FLG}")
    a("s_lshl_b32 s13, s7, 2"); a("s_add_u32 s16, s14, s13")
    a(f"s_mul_i32 s17, s5, {2*108*1024}"); a(f"s_add_u32 s17, s17, {HF}")
    a(f"v_lshrrev_b32 v{VX0}, 5, v0"); a(f"v_mul_u32_u24 v{VX0}, {XC}, v{VX0}")
    a(f"v_and_b32 v{VX1}, 31, v0"); a(f"v_lshl_add_u32 v{VX0}, v{VX1}, 4, v{VX0}")
    a(f"v_add_u32 v{VX1}, {XT}, v{VX0}")
    if prio is not None: a(f"s_setprio {prio}")
    def set_flag(vm, stage):
        a(f"v_mov_b32 v{VT+2}, 0"); a(f"v_mov_b32 v{VT+3}, s{NONCE}")
        a("s_mov_b64 exec, 1")
        a(f"buffer_store_dword v{VT+3}, v{VT+2}, s[36:39], s16 offen offset:{128*stage} sc1"); vm.issue("flag")
        a("s_mov_b64 exec, -1")
    def poll_issue(vm, stage):
        a(f"v_and_b32 v{VT}, 31, v0"); a(f"v_lshlrev_b32 v{VT}, 2, v{VT}")
        a(f"buffer_load_dword v{VT+1}, v{VT}, s[36:39], s14 offen offset:{128*stage} sc1"); vm.issue(("poll", stage))
    def poll_check(vm, stage):
        lp, ld = a.uid("poll"), a.uid("polld")
        vm.wait(("poll", stage))
        a(f"v_cmp_ne_u32 vcc, s{NONCE}, v{VT+1}")
        a("s_mov_b32 s13, 0x4000")
        a("s_nop 3")
        a(f"s_cbranch_vccz {ld}")
        a.label(lp)
        a(f"buffer_load_dword v{VT+1}, v{VT}, s[36:39], s14 offen offset:{128*stage} sc1")
        a("s_waitcnt vmcnt(0)")
        a(f"v_cmp_ne_u32 vcc, s{NONCE}, v{VT+1}")
        a("s_sub_u32 s13, s13, 1")
        a("s_nop 3")
        a(f"s_cbranch_vccz {ld}")
        a("s_cmp_eq_u32 s13, 0"); a(f"s_cbranch_scc1 {ld}")
        a("s_sleep 2")
        a(f"s_branch {lp}")
        a.label(ld)
    T0 = 4; AR = 68; BR = 100; DA = 8
    ACC = 4; AR2 = 100

    def path(n):
        vm = vm0.clone(a)
        full_b = (n == 2)
        def silu(tiles, T, sbase, tag, maybe=False):
            L = []
            for (tb_, delta) in tiles:
                for half in range(2):
                    base = tb_ + 8*half
                    L += [f"v_exp_f32 v{T+i}, -v{base+i}" for i in range(8)]
                    L += [f"v_add_f32 v{T+i}, 1.0, v{T+i}" for i in range(8)]
                    L += [f"v_rcp_f32 v{T+i}, v{T+i}" for i in range(8)]
                    L += [f"v_mul_f32 v{base+i}, v{base+i}, v{T+i}" for i in range(8)]
                    L += [f"v_cvt_pk_bf16_f32 v{base+p}, v{base+2*p}, v{base+2*p+1}" for p in range(4)]
                    def st(base=base, off=delta + half*1024):
                        a(f"s_add_u32 s15, s{sbase}, {off}")
                        a(f"buffer_store_dwordx4 v[{base}:{base+3}], v3, s[36:39], s15 offen sc1"); vm.issue(tag, maybe)
                    L.append(st)
            return L
        a("s_mul_i32 s18, s7, 40960")
        a("s_lshl_b32 s13, s7, 11"); a("s_add_u32 s10, s17, s13")
        if full_b:
            a("s_lshl_b32 s13, s8, 2"); a("s_add_u32 s13, s13, s6"); a("s_add_u32 s13, s13, 32")
            a("s_lshl_b32 s11, s13, 11"); a("s_add_u32 s11, s11, s17")
        else:
            a("s_lshr_b32 s13, s6, 1"); a("s_add_u32 s13, s13, s4"); a("s_add_u32 s13, s13, 48")
            a("s_and_b32 s15, s6, 1"); a("s_mul_i32 s15, s15, 110592")
            a("s_lshl_b32 s11, s13, 11"); a("s_add_u32 s11, s11, s17"); a("s_add_u32 s11, s11, s15")
            a("s_lshl_b32 s15, s6, 11"); a(f"s_add_u32 s15, s15, {DUM}")
            a("s_cmp_eq_u32 s4, 6"); a("s_cselect_b32 s11, s15, s11")
            a("s_and_b32 s15, s6, 1"); a(f"s_mul_i32 s15, s15, {XT}")
            a(f"v_add_u32 v{VT+6}, s15, v{VX0}")
        a("s_mul_i32 s19, s13, 40960")
        def a1_load(i):
            if i >= 80: return
            if X("NOLD1") and i >= DA: return
            r = AR + 4*(i % DA)
            if i == 40: a("s_mov_b32 s18, s19")
            elif i % 4 == 0 and i > 0: a("s_add_u32 s18, s18, 4096")
            a(f"buffer_load_dwordx4 v[{r}:{r+3}], v3, s[44:47], s18 offen offset:{(i%4)*1024} sc1"); vm.issue(("a1", i))
        DB = 3
        def b1_load(i):
            if i >= 80: return
            ks = i % 40; r = BR + 8*(i % DB)
            if i < 40 or full_b:
                a(f"ds_read_b128 v[{r}:{r+3}], v{VX0} offset:{ks*XKS}")
                a(f"ds_read_b128 v[{r+4}:{r+7}], v{VX1} offset:{ks*XKS}")
            else:
                a(f"ds_read_b128 v[{r}:{r+3}], v{VT+6} offset:{ks*XKS}")
        nb = lambda i: 0 if i >= 80 else (2 if (i < 40 or full_b) else 1)
        def f1(i):
            st_, ks = divmod(i, 40)
            ra = AR + 4*(i % DA); rb = BR + 8*(i % DB)
            d0 = T0 + 32*st_; d1 = d0 + 16
            two = (st_ == 0 or full_b)
            def s0():
                vm.wait(("a1", i), f" lgkmcnt({nb(i + 1)})")
                a(mfma32(d0, ra, rb, None if ks == 0 else d0))
                if not two:
                    b1_load(i + 2); a1_load(i + DA)
            def s1():
                a(mfma32(d1, ra, rb + 4, None if ks == 0 else d1))
                b1_load(i + 2)
                a1_load(i + DA)
            return [s0, s1] if two else [s0]
        P1 = [f1(i) for i in range(40)]
        P2 = [f1(i) for i in range(40, 80)]
        sl0 = silu([(T0, 0), (T0 + 16, 110592)], 124, 10, "hst0")
        lead = 3 if full_b else 5
        nfill = int(X("NFILL%d" % n, "18" if full_b else "26"))
        steps = interleave(a, P1, []) + interleave(a, P2[:lead], []) + interleave(a, P2[lead:nfill], sl0) + interleave(a, P2[nfill:], [])
        npub0 = min(80, 40 + nfill + (5 if full_b else 4))
        NF = n + 2; DEP = 3; NS = 27; NA = 16
        def setup2():
            a("s_lshl_b32 s13, s6, 14")
            a(f"s_mul_i32 s8, s12, {W2K*1024}")
            a("s_mul_i32 s15, s6, 11264"); a("s_add_u32 s15, s15, 65536")
            a("s_add_u32 s9, s8, s15"); a("s_add_u32 s8, s8, s13")
            a("s_add_u32 s19, s17, s15"); a("s_add_u32 s18, s17, s13")
        def ld_ops(s):
            if s >= NS or (X("NOLD2") and s >= DEP): return []
            sa, sb, i = (8, 18, s) if s < NA else (9, 19, s - NA)
            r = AR2 + 4*NF*(s % DEP)
            hi, lo = (i // 4)*4096, (i % 4)*1024
            ops = []
            for j in range(n):
                def f(j=j):
                    a(f"s_add_u32 s15, s{sa}, {j*W2K*1024 + hi}")
                    a(f"buffer_load_dwordx4 v[{r+4*j}:{r+4*j+3}], v3, s[48:51], s15 offen offset:{lo} sc1"); vm.issue(("l2", s))
                ops.append(f)
            for tt in range(2):
                def f(tt=tt):
                    a(f"s_add_u32 s15, s{sb}, {tt*110592 + hi}")
                    a(f"buffer_load_dwordx4 v[{r+4*(n+tt)}:{r+4*(n+tt)+3}], v3, s[36:39], s15 offen offset:{lo} sc1"); vm.issue(("l2", s))
                ops.append(f)
            return ops
        def f2(s):
            def fn():
                vm.wait(("l2", s))
                r = AR2 + 4*NF*(s % DEP)
                if s + DEP == NA: poll_check(vm, 1)
                nxt = ld_ops(s + DEP)
                mf = []
                for j in range(n):
                    for tt in ((0, 1) if j % 2 == 0 else (1, 0)):
                        d = ACC + 16*(2*j + tt)
                        mf.append((mfma32(d, r + 4*j, r + 4*(n + tt), None if s == 0 else d), j))
                for x, (m, j) in enumerate(mf):
                    if not X("NOMF2"): a(m)
                    if x % 2 == 1 and nxt and j < n - 1: nxt[j]()
                if nxt:
                    for f in nxt[n-1:]: f()
                if s + DEP == NA - 2: poll_issue(vm, 1)
                if s == 1:
                    vm.wait("hst1"); set_flag(vm, 1)
            return fn
        NT = 2*n; OWN = AR2
        def xload():
            srd(a, 44, 22, X_SZ)
            a(f"v_and_b32 v166, 31, v0"); a("s_lshl_b32 s13, s5, 6"); a(f"v_add_u32 v166, s13, v166")
            a(f"v_mul_u32_u24 v166, 1280, v166")
            a(f"v_lshrrev_b32 v{VT+1}, 5, v0"); a(f"v_lshl_add_u32 v166, v{VT+1}, 3, v166")
            a("s_lshl_b32 s13, s12, 6"); a("s_lshl_b32 s15, s6, 4"); a("s_add_u32 s13, s13, s15")
            a("v_add_u32 v166, s13, v166")
            for T in range(NT):
                j, tt = T >> 1, T & 1
                a(f"s_mov_b32 s15, {tt*32*1280 + j*64}")
                a(f"buffer_load_dwordx2 v[{OWN+24+2*T}:{OWN+24+2*T+1}], v166, s[44:47], s15 offen"); vm.issue("x")
        def red_write():
            xload()
            a("s_mul_i32 s13, s6, 18432")
            a(f"v_add_u32 v{VX0}, s13, v3")
            ld = a.uid("rw_done"); ls = [a.uid("rw") for _ in range(4)]
            for w in range(4):
                if w < 3:
                    a(f"s_cmp_lg_u32 s6, {w}"); a(f"s_cbranch_scc1 {ls[w]}")
                a("s_nop 15")
                for T in range(NT):
                    for i in range(4):
                        if i == w: continue
                        ip = (i - w - 1) % 4
                        r = ACC + 16*T + 4*i
                        a(f"ds_write_b128 v{VX0}, v[{r}:{r+3}] offset:{(T*3 + ip)*1024}")
                for T in range(NT):
                    for x in range(4): a(f"v_mov_b32 v{OWN+4*T+x}, v{ACC+16*T+4*w+x}")
                if w < 3:
                    a(f"s_branch {ld}"); a.label(ls[w])
            a.label(ld)
            a("s_waitcnt lgkmcnt(0)")
        def red_read():
            R = ACC
            for d in range(1, 4):
                a(f"s_add_u32 s13, s6, {d}"); a("s_and_b32 s13, s13, 3"); a("s_mul_i32 s13, s13, 18432")
                a(f"v_add_u32 v{VX1}, s13, v3")
                for T in range(NT):
                    r = R + 4*((d-1)*6 + T)
                    a(f"ds_read_b128 v[{r}:{r+3}], v{VX1} offset:{(T*3 + 3 - d)*1024}")
            a(f"s_mov_b32 s8, {f2u(LN2):#x}")
            a("s_waitcnt vmcnt(6) lgkmcnt(0)")
            for T in range(NT):
                y = OWN + 4*T; xr = OWN + 24 + 2*T; t = ACC + 72
                for d in range(1, 4):
                    r = R + 4*((d-1)*6 + T)
                    for x in range(4): a(f"v_add_f32 v{y+x}, v{y+x}, v{r+x}")
                a(f"v_lshlrev_b32 v{t}, 16, v{xr}"); a(f"v_and_b32 v{t+1}, 0xffff0000, v{xr}")
                a(f"v_lshlrev_b32 v{t+2}, 16, v{xr+1}"); a(f"v_and_b32 v{t+3}, 0xffff0000, v{xr+1}")
                for x in range(4): a(f"v_fma_f32 v{y+x}, v{y+x}, s8, v{t+x}")
            tail_wo_loads(a, 4)
        def tail():
            if HS == "T": stamp(a, 2)
            a("s_barrier")
            if HS == "T": stamp(a, 3)
            def hook():
                red_read()
                return 10
            tail_gemm(a, 4, 44, 124, hook)
            if HS == "T": stamp(a, 5)
            srd(a, 44, 88, X_SZ)
            a("s_lshl_b32 s13, s6, 10"); a("v_add_u32 v1, s13, v3"); a("v_add_u32 v2, 49152, v1")
            R = 4
            for T in range(NT):
                j, tt = T >> 1, T & 1
                for kq in range(4):
                    w = j + 3*kq
                    off = w*8192 + tt*4096
                    r = R + 4*(4*T + kq)
                    a(f"ds_read_b128 v[{r}:{r+3}], v{1 if off < 49152 else 2} offset:{off % 49152}")
                if T % 2 == 1: a("s_waitcnt lgkmcnt(0)")
            for T in range(NT):
                j, tt = T >> 1, T & 1
                y = OWN + 4*T
                for kq in range(4):
                    r = R + 4*(4*T + kq)
                    for x in range(4): a(f"v_add_f32 v{y+x}, v{y+x}, v{r+x}")
                a(f"v_cvt_pk_bf16_f32 v{y}, v{y}, v{y+1}")
                a(f"v_cvt_pk_bf16_f32 v{y+1}, v{y+2}, v{y+3}")
                a(f"s_mov_b32 s15, {tt*32*1280 + j*64}")
                a(f"buffer_store_dwordx2 v[{y}:{y+1}], v166, s[44:47], s15 offen")
        def mid():
            setup2()
            poll_issue(vm, 0)
            g2_issue()
            a("s_nop 7")
            tiles = [(T0 + 32, 0), (T0 + 48, 110592)] if full_b else [(T0 + 32, 0)]
            hi(a)
            for f in silu(tiles, 68, 11, "hst1"): f() if callable(f) else a(f)
            poll_check(vm, 0)
            g2_check()
            for st_ in range(DEP):
                for f in ld_ops(st_): f()
            lo(a)
        segs = {b: [] for b in BARS}
        def j3_in():
            a("v_lshrrev_b32 v147, 3, v0"); a("v_mul_u32_u24 v147, 1280, v147")
            a("v_and_b32 v146, 7, v0"); a("v_lshl_add_u32 v147, v146, 4, v147")
            a("s_mul_i32 s13, s6, 30720"); a("s_add_u32 s13, s13, s92")
            a("s_mul_i32 s15, s6, 3072")
            for i in range(3):
                a(f"s_add_u32 m0, s15, {J3L + i*1024}")
                a("s_nop 0")
                a("buffer_load_dwordx4 v147, s[24:27], s13 offen lds"); vm.issue("j3in")
                if i < 2: a("s_add_u32 s13, s13, 10240")
        def j3_out():
            a("v_lshrrev_b32 v144, 5, v0"); a("v_mul_lo_u32 v144, v144, s95")
            a("v_and_b32 v145, 15, v0"); a("v_lshrrev_b32 v146, 2, v145"); a("v_add_u32 v144, v144, v146")
            a("v_lshlrev_b32 v144, 7, v144")
            a("v_bfe_u32 v146, v0, 4, 1"); a("v_lshl_add_u32 v144, v146, 5, v144")
            a("v_and_b32 v146, 3, v145"); a("v_lshl_add_u32 v144, v146, 3, v144")
            a("s_lshr_b32 s13, s6, 1"); a("s_lshl_b32 s15, s13, 6")
            a("s_mul_i32 s13, s13, s94"); a("s_add_u32 s13, s13, s93")
            a("s_and_b32 s43, s6, 1"); a("s_mul_i32 s43, s43, 3")
            a("s_lshl_b32 s42, s43, 11"); a("s_add_u32 s15, s15, s42"); a(f"s_add_u32 s15, s15, {J3L}")
            a("s_lshl_b32 s43, s43, 10"); a("s_add_u32 s13, s13, s43")
            a("v_add_u32 v144, s15, v144")
            a("v_add_u32 v145, s99, v144")
            for i in range(3):
                a(f"ds_read_b64_tr_b16 v[{132+4*i}:{133+4*i}], v144 offset:{i*2048}")
                a(f"ds_read_b64_tr_b16 v[{134+4*i}:{135+4*i}], v145 offset:{i*2048}")
            a("s_waitcnt lgkmcnt(0)")
            for i in range(3):
                a(f"buffer_store_dwordx4 v[{132+4*i}:{135+4*i}], v3, s[36:39], s13 offen offset:{i*1024} sc1"); vm.issue("j3st")
        def g2_flag():
            l = a.uid("g2f")
            a("s_cmp_lg_u32 s6, 3"); a(f"s_cbranch_scc1 {l}")
            a("s_lshl_b32 s13, s2, 2"); a(f"s_add_u32 s13, s13, {GFL + 3072}")
            a(f"v_mov_b32 v{VT+2}, 0"); a(f"v_mov_b32 v{VT+3}, s{NONCE}")
            a("s_mov_b64 exec, 1")
            a(f"buffer_store_dword v{VT+3}, v{VT+2}, s[36:39], s13 offen sc1"); vm.issue("g2f", True)
            a("s_mov_b64 exec, -1")
            a.label(l)
        def g2_issue():
            a(f"s_mov_b32 s13, {GFL + 3072}")
            a("buffer_load_dwordx4 v[132:135], v3, s[36:39], s13 offen sc1"); vm.issue("g2p")
        def g2_check():
            lp, ld = a.uid("g2p"), a.uid("g2d")
            vm.wait("g2p")
            a("s_mov_b32 s43, 0x4000")
            a(f"s_mov_b32 s13, {GFL + 3072}")
            a.label(lp)
            for r in range(132, 136): a(f"v_xor_b32 v{r}, s{NONCE}, v{r}")
            a("v_or_b32 v132, v132, v133"); a("v_or_b32 v134, v134, v135"); a("v_or_b32 v132, v132, v134")
            a("v_cmp_ne_u32 vcc, 0, v132")
            a("s_sub_u32 s43, s43, 1")
            a("s_nop 3")
            a(f"s_cbranch_vccz {ld}")
            a("s_cmp_eq_u32 s43, 0"); a(f"s_cbranch_scc1 {ld}")
            a("s_sleep 2")
            a("buffer_load_dwordx4 v[132:135], v3, s[36:39], s13 offen sc1")
            a("s_waitcnt vmcnt(0)")
            a(f"s_branch {lp}")
            a.label(ld)
        def gw1_wait():
            lp, ld = a.uid("gw1p"), a.uid("gw1d")
            a("s_mov_b32 s43, 0x8000")
            a(f"s_mov_b32 s13, {GFL + 1024}")
            a.label(lp)
            a("buffer_load_dwordx4 v[132:135], v3, s[36:39], s13 offen sc1")
            a("s_waitcnt vmcnt(0)")
            for r in range(132, 136): a(f"v_xor_b32 v{r}, s{NONCE}, v{r}")
            a("v_or_b32 v132, v132, v133"); a("v_or_b32 v134, v134, v135"); a("v_or_b32 v132, v132, v134")
            a("v_cmp_ne_u32 vcc, 0, v132")
            a("s_sub_u32 s43, s43, 1")
            a("s_nop 3")
            a(f"s_cbranch_vccz {ld}")
            a("s_cmp_eq_u32 s43, 0"); a(f"s_cbranch_scc1 {ld}")
            a("s_sleep 4")
            a(f"s_branch {lp}")
            a.label(ld)
            vm.q = []
        segs["B4"] += [j3_out]
        segs["S1"] += [lambda: [a1_load(i) for i in range(DA)], lambda: (b1_load(0), b1_load(1))]
        segs["C0"] += [g2_flag]
        n1 = [int(x) for x in X("F1SCHED%d" % n, "0,0,4,8,8,10,10,8,8,8,8,8" if full_b else "0,0,4,8,8,10,10,14,13,13").split(",")]
        order = BARS
        k = 0
        for b, m in zip(order, n1):
            for e in steps[k:k + m]:
                segs[b].append(e)
                k += 1
                if k == npub0: segs[b].append(lambda: (vm.wait("hst0"), set_flag(vm, 0)))
        assert k == 80
        last1 = order[len(n1) - 1]
        bmid = order[len(n1)]
        segs[bmid].append(mid)
        n2 = [int(x) for x in X("F2SCHED%d" % n, "4,4,4,4,4,4,3" if full_b else "3,3,3,3,3,3,3,3,3").split(",")]
        F2 = [f2(s) for s in range(NS)]
        k = 0
        rest = order[len(n1) + 1:] + ["E"]
        assert len(rest) == len(n2), (rest, n2)
        segs["E"] = []
        for b, m in zip(rest, n2):
            segs[b] += F2[k:k + m]; k += m
        assert k == NS
        segs["E"] += [lambda: tail_setup(a), red_write]
        for b in BARS:
            barrier(a, vm, b)
            if b == "B4" and not HS: stamp(a, 2)
            if b == bmid and not HS: stamp(a, 3)
            if b == order[len(n1) + 1] and not HS: stamp(a, 4)
            if b == "C15" and not HS: stamp(a, 5)
            if b == "C15" and HS == "T": stamp(a, 1)
            for fn in segs[b]: fn()
        for fn in segs["E"]: fn()
        tail()
        if not HS: stamp(a, 6)
        if HS in ("G", "T"): stamp(a, 6)
        stamp_rt(a, 7); stamp_store(a, 8)
        bstamp_store(a)
        a(f"s_branch {lend}")
    lodd = f"{name}_ffn_odd"
    a("s_cmp_eq_u32 s9, 1")
    a(f"s_cbranch_scc1 {lodd}")
    path(3)
    a.label(lodd)
    path(2)
    return []
```

```python
from asmlib import *
from layout import *
from k0 import srd, kd
import os
import k2
from k2 import X, ST, mfma32, mfma8, attn_tile, Q1, Q2, KB, VB, P, S, O, E, THR, stamp, stamp_rt, stamp_store

XT = 42240; XC = 528; XKS = 1056
KVL = 84480
WKVL = KVL
SB = (KVL + 25600, KVL + 46080, KVL)
STAGE_BUF = (0, 1, 0, 2, 1)
J3L = KVL + 66560
QXL = KVL
NONCE_L = 163824
OCNT_L = 163820
OB = 73728
LDS_MAIN = 163840
CODE_PF_KB = 40
NONCE = 98

HS = X("HSTAMP")
def hstamp(a, who, i):
    if HS == who: stamp(a, i)
def nstamp(a, i):
    if not HS: stamp(a, i)
def rstamp(a, i):
    if HS == "R": stamp_rt(a, i)
def spin_timeout(a, sreg): a(f"s_mov_b32 s{sreg}, 0x8000")

def j3b_params(a):
    lo2, lg2 = a.uid("h_j2o"), a.uid("h_j2g")
    a("s_sub_u32 s83, s2, 220"); a("s_cmp_ge_u32 s2, 220"); a("s_cselect_b32 s83, s83, s2")
    a("s_cmp_ge_u32 s83, 180"); a(f"s_cbranch_scc1 {lo2}")
    a(f"s_mul_hi_u32 s80, s83, {(1 << 32)//10 + 1}")
    a("s_mul_i32 s81, s80, 10"); a("s_sub_u32 s81, s83, s81")
    a(f"s_mul_i32 s92, s80, {96*1280}"); a("s_lshl_b32 s82, s81, 7"); a("s_add_u32 s92, s92, s82")
    a(f"s_mul_i32 s93, s81, {2*W2K*1024}"); a("s_mul_i32 s82, s80, 6144"); a("s_add_u32 s93, s93, s82"); a(f"s_add_u32 s93, s93, {W2F}")
    a(f"s_mov_b32 s94, {W2K*1024}"); a("s_mov_b32 s95, 4"); a("s_movk_i32 s99, 1024")
    a(f"s_branch {lg2}")
    a.label(lo2)
    a("s_sub_u32 s83, s83, 180")
    a(f"s_mul_hi_u32 s80, s83, {(1 << 32)//10 + 1}")
    a("s_mul_i32 s81, s80, 10"); a("s_sub_u32 s81, s83, s81")
    a("s_mul_i32 s80, s80, 5"); a("s_add_u32 s80, s80, 20"); a("s_min_u32 s80, s80, 34")
    a(f"s_mul_i32 s92, s80, {16*1280}"); a("s_lshl_b32 s82, s81, 7"); a("s_add_u32 s92, s92, s82")
    a(f"s_mul_i32 s93, s81, {2*40*1024}"); a("s_lshl_b32 s82, s80, 10"); a("s_add_u32 s93, s93, s82"); a(f"s_add_u32 s93, s93, {WOF}")
    a("s_mov_b32 s94, 40960"); a("s_mov_b32 s95, 8"); a("s_movk_i32 s99, 512")
    a.label(lg2)


def tail_setup(a):
    srd(a, 52, 20, WOF_SZ, WOF)
    srd(a, 56, 20, OF_SZ, OF)
    a("s_mul_i32 s80, s3, 43"); a("s_lshr_b32 s80, s80, 7")
    for w_ in range(12): assert (w_*43) >> 7 == w_//3
    a("s_mul_i32 s81, s80, 3"); a("s_sub_u32 s81, s3, s81")
    a("s_lshr_b32 s82, s4, 1"); a("s_mul_i32 s82, s82, 5"); a("s_and_b32 s83, s4, 1"); a("s_mul_i32 s84, s83, 3"); a("s_add_u32 s82, s82, s84")
    a("s_add_u32 s82, s82, s81"); a("s_mul_i32 s84, s82, 40960")
    a("s_mul_i32 s82, s80, 10240"); a("s_add_u32 s84, s84, s82")
    a("s_lshl_b32 s86, s80, 0"); a("s_mul_i32 s86, s80, 10240")
    a("s_cmp_eq_u32 s81, 2"); a("s_cselect_b32 s85, s83, 0"); a("s_xor_b32 s85, s85, 1")

def tail_wo_loads(a, reg):
    for k in range(10):
        a(f"s_add_u32 s80, s84, {(k//4)*4096}")
        a(f"buffer_load_dwordx4 v[{reg+4*k}:{reg+4*k+3}], v3, s[52:55], s80 offen offset:{(k%4)*1024} sc1")

def tail_gemm(a, wo, acc, br, hook=None):
    for i in range(4):
        a(f"s_add_u32 s80, s3, {12*i}")
        a("s_mul_i32 s81, s80, 52429"); a("s_lshr_b32 s81, s81, 18")
        a("s_mul_i32 s82, s81, 5"); a("s_sub_u32 s82, s80, s82")
        a("s_mul_i32 s81, s81, 10240"); a("s_lshl_b32 s82, s82, 10")
        a(f"s_add_u32 s{92+i}, s81, s82")
    a("s_mul_i32 s83, s5, 81920")
    l4 = [a.uid("t_no4"), a.uid("t_no4")]
    for st in range(2):
        for i in range(4):
            if i == 3:
                a("s_cmp_ge_u32 s3, 4"); a(f"s_cbranch_scc1 {l4[st]}")
            a(f"s_add_u32 s80, s{92+i}, {st*5120}")
            a(f"s_add_u32 m0, s80, {OB}")
            a("s_add_u32 s80, s80, s83")
            a("buffer_load_dwordx4 v3, s[56:59], s80 offen sc1 lds")
        a.label(l4[st])
    lskip, ldone = a.uid("t_skip"), a.uid("t_done")
    if hook:
        n_after = hook()
        a(f"s_waitcnt vmcnt({3 + n_after})")
    else:
        lw4, lwd = a.uid("t_w4"), a.uid("t_wd")
        a("s_cmp_lt_u32 s3, 4"); a(f"s_cbranch_scc1 {lw4}")
        a("s_waitcnt vmcnt(3)"); a(f"s_branch {lwd}")
        a.label(lw4); a("s_waitcnt vmcnt(4)")
        a.label(lwd)
    a(f"s_add_u32 s80, s86, {OB}")
    a(f"v_add_u32 v1, s80, v3"); a("v_add_u32 v2, 40960, v1")
    a("s_barrier")
    if not hook: hstamp(a, "T", 5)
    else: hstamp(a, "T", 4)
    def bl(k):
        r = br + 8*(k % 4)
        a(f"ds_read_b128 v[{r}:{r+3}], v1 offset:{k*1024}")
        a(f"ds_read_b128 v[{r+4}:{r+7}], v2 offset:{k*1024}")
    def half(h):
        k0 = 5*h
        for k in range(k0, k0 + 3): bl(k)
        for k in range(k0, k0 + 5):
            if k + 3 < k0 + 5: bl(k + 3)
            a(f"s_waitcnt lgkmcnt({2*min(3, k0 + 4 - k)})")
            r = br + 8*(k % 4)
            a(mfma32(acc, wo + 4*k, r, None if k == 0 else acc))
            a(mfma32(acc + 16, wo + 4*k, r + 4, None if k == 0 else acc + 16))
    a("s_cmp_eq_u32 s85, 0"); a(f"s_cbranch_scc1 {lskip}")
    if hook: a("s_waitcnt vmcnt(5)")
    half(0)
    a("s_waitcnt vmcnt(0)")
    a("s_barrier")
    half(1)
    a("s_barrier")
    a("s_lshl_b32 s80, s3, 13"); a("v_add_u32 v1, s80, v3")
    a("s_nop 7")
    for tt in range(2):
        for i in range(4):
            a(f"ds_write_b128 v1, v[{acc+16*tt+4*i}:{acc+16*tt+4*i+3}] offset:{(tt*4+i)*1024}")
    a("s_waitcnt lgkmcnt(0)")
    a(f"s_branch {ldone}")
    a.label(lskip)
    a("s_waitcnt vmcnt(0)")
    a("s_barrier")
    a("s_barrier")
    a.label(ldone)
    a("s_barrier")

def gen_attn(a, name, prio):
    if X("PRIOX"): a("s_setprio 3")
    srd(a, 24, 22, X_SZ)
    srd(a, 28, 20, KV_SZ, KV)
    srd(a, 36, 20, YF + YF_SZ)
    srd(a, 32, 8, 640*640*2)
    a("s_lshr_b32 s6, s3, 1")
    a("s_lshl_b32 s7, s4, 2")
    a("s_add_u32 s6, s6, s7")
    a("s_and_b32 s7, s3, 1")
    XR = (88, 108)
    a("v_lshrrev_b32 v10, 4, v0")
    a("v_and_b32 v11, 15, v0")
    a("s_and_b32 s11, s4, 6"); a("s_add_u32 s11, s11, s3"); a("s_and_b32 s11, s11, 7")
    a("s_lshl_b32 s8, s11, 3")
    a("v_add_u32 v12, s8, v10")
    a("s_lshl_b32 s9, s5, 6")
    a("v_add_u32 v13, s9, v12")
    a("v_mul_u32_u24 v13, 1280, v13")
    a("v_lshl_add_u32 v13, v11, 4, v13")
    for ps in range(2):
        a(f"s_mov_b32 s10, {ps*4*1280}")
        for j in range(5):
            a(f"buffer_load_dwordx4 v[{XR[ps]+4*j}:{XR[ps]+4*j+3}], v13, s[24:27], s10 offen offset:{256*j}")
    if X("TOUCH", "1") == "1":
        lt, ltb = a.uid("a_notouch"), a.uid("a_touchb")
        a("s_cmp_lt_u32 s3, 4"); a(f"s_cbranch_scc1 {lt}")
        a("s_cmp_ge_u32 s3, 6"); a(f"s_cbranch_scc1 {ltb}")
        a("s_lshr_b32 s10, s5, 3"); a("s_mul_i32 s10, s10, 96")
        a("s_sub_u32 s42, s3, 4"); a("s_lshl_b32 s42, s42, 6"); a("s_add_u32 s10, s10, s42")
        a("v_add_u32 v150, s10, v0")
        a("v_cmp_gt_u32 vcc, 192, v150")
        a("v_add_u32 v151, 128, v150"); a("v_add_u32 v152, 256, v150")
        a("v_cndmask_b32 v151, v152, v151, vcc")
        a("v_mul_u32_u24 v151, 1280, v151")
        a("s_mul_i32 s10, s4, 160")
        a("s_cmp_eq_u32 s3, 5"); a("s_cselect_b32 exec_hi, 0, -1")
        a("buffer_load_dword v153, v151, s[32:35], s10 offen")
        a("buffer_load_dword v154, v151, s[32:35], s10 offen offset:128")
        a("s_mov_b64 exec, -1")
        a(f"s_branch {lt}")
        a.label(ltb)
        j3b_params(a)
        lt2o, lt2g = a.uid("a_t2o"), a.uid("a_t2g")
        a("s_cmp_eq_u32 s99, 512"); a(f"s_cbranch_scc1 {lt2o}")
        srd(a, 32, 18, 1728*640*2)
        a(f"s_branch {lt2g}")
        a.label(lt2o)
        srd(a, 32, 14, 640*640*2)
        a.label(lt2g)
        a("s_sub_u32 s42, s3, 6"); a("s_mul_i32 s42, s42, 81920"); a("s_add_u32 s42, s42, s92")
        a("v_mul_u32_u24 v151, 1280, v0")
        a("s_cmp_eq_u32 s3, 7"); a("s_cselect_b32 exec_hi, 0, -1")
        a("buffer_load_dword v153, v151, s[32:35], s42 offen")
        a("s_mov_b64 exec, -1")
        a.label(lt)
    if X("PRIOX"): a("s_setprio 0")
    if X("B0", "1") == "1": a("s_barrier")
    a("s_lshr_b32 s10, s11, 2"); a(f"s_mul_i32 s10, s10, {XT}")
    a("v_and_b32 v14, 31, v12")
    a("v_lshlrev_b32 v14, 4, v14")
    a(f"v_mul_u32_u24 v15, {XC}, v11")
    a("v_add3_u32 v14, v14, v15, s10")
    a(f"v_add_u32 v1, {KVL}, v3")
    a("v_lshlrev_b32 v2, 3, v0")
    a(f"v_add_u32 v2, {KVL}, v2")
    a("v_mov_b32 v16, 0x3f803f80")
    for ps in range(2):
        R = XR[ps]
        a("v_mov_b32 v17, 0"); a("v_mov_b32 v18, 0")
        if ps == 0: hstamp(a, "A", 2)
        base = 5 if ps == 0 else 0
        if X("TOUCH", "1") == "1":
            l0, l1, l2 = a.uid("a_wx"), a.uid("a_wx"), a.uid("a_wx")
            a("s_cmp_lt_u32 s3, 4"); a(f"s_cbranch_scc1 {l0}")
            a("s_cmp_lt_u32 s3, 6"); a(f"s_cbranch_scc1 {l1}")
            a(f"s_waitcnt vmcnt({base + 1})"); a(f"s_branch {l2}")
            a.label(l1); a(f"s_waitcnt vmcnt({base + 2})"); a(f"s_branch {l2}")
            a.label(l0); a(f"s_waitcnt vmcnt({base})")
            a.label(l2)
        else:
            a(f"s_waitcnt vmcnt({base})")
        hstamp(a, "A", 3 + ps)
        if ps == 1:
            npf = 0
            if X("WQPF", "0") == "1":
                lnp = a.uid("a_nopf")
                a("s_cmp_ge_u32 s3, 6"); a(f"s_cbranch_scc1 {lnp}")
                a("s_lshl_b32 s10, s3, 6"); a("s_add_u32 s10, s10, 128")
                a("s_add_u32 s11, s10, 128"); a("s_cmp_ge_u32 s3, 3"); a("s_cselect_b32 s10, s11, s10")
                a("v_add_u32 v150, s10, v0"); a("v_mul_u32_u24 v150, 1280, v150")
                a("s_mul_i32 s10, s4, 160")
                a("buffer_load_dword v151, v150, s[32:35], s10 offen")
                a("buffer_load_dword v152, v150, s[32:35], s10 offen offset:128")
                a.label(lnp)
                npf = 0
        for i in range(20):
            a(f"v_dot2_f32_bf16 v17, v{R+i}, v16, v17")
            a(f"v_dot2_f32_bf16 v18, v{R+i}, v{R+i}, v18")
        for sh in (8, 4, 2, 1):
            a("s_nop 1")
            a(f"v_add_f32_dpp v17, v17, v17 row_ror:{sh} row_mask:0xf bank_mask:0xf")
            a(f"v_add_f32_dpp v18, v18, v18 row_ror:{sh} row_mask:0xf bank_mask:0xf")
        a("s_nop 0")
        a(f"v_mul_f32 v17, {f2u(1/640.):#x}, v17")
        a(f"v_mul_f32 v18, {f2u(1/640.):#x}, v18")
        a("v_fma_f32 v18, -v17, v17, v18")
        a("v_max_f32 v18, 0, v18")
        a(f"v_add_f32 v18, {f2u(1e-5):#x}, v18")
        a("v_rsq_f32 v18, v18")
        a("s_nop 0")
        a(f"v_mul_f32 v18, {f2u(LOG2E):#x}, v18")
        a("v_mul_f32 v19, v17, v18")
        for j in range(5):
            for i in range(4):
                r = R + 4*j + i
                t = 20 + 2*(i & 1)
                a(f"v_lshlrev_b32 v{t}, 16, v{r}")
                a(f"v_and_b32 v{t+1}, 0xffff0000, v{r}")
                a(f"v_fma_f32 v{t}, v{t}, v18, -v19")
                a(f"v_fma_f32 v{t+1}, v{t+1}, v18, -v19")
                a(f"v_cvt_pk_bf16_f32 v{r}, v{t}, v{t+1}")
            a(f"ds_write_b128 v14, v[{R+4*j}:{R+4*j+3}] offset:{j*16*XC + ps*64}")
    a(f"v_mov_b32 v20, {OCNT_L}"); a("v_mov_b32 v21, 0")
    a("ds_write_b32 v20, v21")
    a("s_waitcnt lgkmcnt(0)")
    hstamp(a, "A", 5)
    hstamp(a, "L", 2)
    a("s_barrier")
    hstamp(a, "L", 3)
    hstamp(a, "A", 6)
    nstamp(a, 2)
    dbg_mark(a, 0, 1, vt=160, nl=2, sreg=78)
    if prio is not None: a(f"s_setprio {prio}")
    a("v_lshrrev_b32 v16, 5, v0")
    a("v_and_b32 v17, 31, v0")
    a(f"v_mul_u32_u24 v10, {XC}, v16")
    a("v_lshl_add_u32 v10, v17, 4, v10")
    a(f"s_mul_i32 s10, s7, {20*XKS}")
    a("v_add_u32 v10, s10, v10")
    a(f"v_add_u32 v11, {XT}, v10")
    a("v_and_b32 v17, 15, v0"); a("v_lshrrev_b32 v18, 2, v17")
    a("v_lshl_add_u32 v18, v16, 3, v18")
    a("s_lshl_b32 s10, s7, 6"); a("v_add_u32 v18, s10, v18")
    a("v_mul_u32_u24 v18, 160, v18")
    a("v_bfe_u32 v19, v0, 4, 1"); a("v_lshl_add_u32 v18, v19, 5, v18")
    a("v_and_b32 v19, 3, v17"); a("v_lshl_add_u32 v18, v19, 3, v18")
    a("s_lshr_b32 s10, s3, 1"); a("s_mul_i32 s10, s10, 40")
    a("v_add_u32 v18, s10, v18")
    for b in range(3): a(f"v_add_u32 v{12+b}, {SB[b]}, v18")
    D0, D1 = S
    AQ = 88; BQ = (104, 136)
    def bread(st):
        b = BQ[st & 1]
        for kk in range(4):
            ks = 4*st + kk
            a(f"ds_read_b128 v[{b+8*kk}:{b+8*kk+3}], v10 offset:{ks*XKS}")
            a(f"ds_read_b128 v[{b+8*kk+4}:{b+8*kk+7}], v11 offset:{ks*XKS}")
    bread(0)
    for st in range(5):
        if st > 0: a("s_barrier")
        if st > 0: hstamp(a, "Q", st + 1)
        vb = 12 + STAGE_BUF[st]
        for kk in range(4):
            a(f"ds_read_b64_tr_b16 v[{AQ+4*kk}:{AQ+4*kk+1}], v{vb} offset:{kk*16*160}")
            a(f"ds_read_b64_tr_b16 v[{AQ+4*kk+2}:{AQ+4*kk+3}], v{vb} offset:{kk*16*160 + 640}")
        b = BQ[st & 1]
        for kk in range(4):
            ks = 4*st + kk
            nxt = 8 if (st < 4 and kk >= 1) else 0
            a(f"s_waitcnt lgkmcnt({min(15, 2*(3 - kk) + nxt)})")
            a(mfma32(D0, AQ + 4*kk, b + 8*kk, None if ks == 0 else D0))
            a(mfma32(D1, AQ + 4*kk, b + 8*kk + 4, None if ks == 0 else D1))
            if kk == 0 and st < 4: bread(st + 1)
        if st < 4: a("s_waitcnt lgkmcnt(0)")
    a("s_mul_i32 s44, s3, 3072")
    a(f"s_add_u32 s44, s44, {QXL}")
    a("v_add_u32 v12, s44, v3")
    a("s_xor_b32 s45, s3, 1"); a("s_mul_i32 s45, s45, 3072"); a(f"s_add_u32 s45, s45, {QXL}")
    a("v_add_u32 v13, s45, v3")
    lp1, lpd = a.uid("qx1"), a.uid("qxd")
    a("s_nop 7")
    a("s_cmp_eq_u32 s7, 1"); a(f"s_cbranch_scc1 {lp1}")
    for i in range(3): a(f"ds_write_b128 v12, v[{D1+4*i}:{D1+4*i+3}] offset:{i*1024}")
    a(f"s_branch {lpd}")
    a.label(lp1)
    for i in range(3): a(f"ds_write_b128 v12, v[{D0+4*i}:{D0+4*i+3}] offset:{i*1024}")
    a("s_waitcnt lgkmcnt(0)")
    for r in range(12): a(f"v_mov_b32 v{D0+r}, v{D1+r}")
    a.label(lpd)
    a("s_waitcnt lgkmcnt(0)")
    a("s_barrier")
    hstamp(a, "Q", 6)
    dbg_mark(a, 0, 2, vt=160, nl=2, sreg=78)
    lg0 = a.uid("a_g0")
    a("s_cmp_lg_u32 s3, 0"); a(f"s_cbranch_scc1 {lg0}")
    a(f"s_mov_b32 s43, {GFL}")
    a("buffer_load_dwordx4 v[140:143], v3, s[36:39], s43 offen sc1")
    a("buffer_load_dwordx4 v[144:147], v3, s[36:39], s43 offen offset:1024 sc1")
    a.label(lg0)
    for i in range(3): a(f"ds_read_b128 v[{D1+4*i}:{D1+4*i+3}], v13 offset:{i*1024}")
    a("v_cmp_gt_u32 vcc, 32, v0")
    a("s_waitcnt lgkmcnt(0)")
    D = D0
    for r in range(12): a(f"v_add_f32 v{D+r}, v{D+r}, v{D1+r}")
    for r in range(8, 12): a(f"v_cndmask_b32 v{D+r}, 0, v{D+r}, vcc")
    a(f"s_mov_b32 s45, {f2u(QSCALE):#x}")
    for r in range(12): a(f"v_mul_f32 v{D+r}, s45, v{D+r}")
    a(f"v_mul_f32 v136, v{D}, v{D}")
    for r in range(1, 12): a(f"v_fmac_f32 v136, v{D+r}, v{D+r}")
    for r in range(4): a(f"v_cvt_pk_bf16_f32 v{Q1+r}, v{D+2*r}, v{D+2*r+1}")
    for r in range(2): a(f"v_cvt_pk_bf16_f32 v{Q2+r}, v{D+8+2*r}, v{D+8+2*r+1}")
    a("v_mov_b32 v137, v136"); a("s_nop 1")
    a("v_permlane32_swap_b32 v136, v137"); a("s_nop 1")
    a("v_add_f32 v136, v136, v137")
    for r in range(16): a(f"v_mov_b32 v{O+r}, 0")
    for r in range(8): a(f"v_mov_b32 v{P+r}, 0")
    for r in range(8): a(f"v_mov_b32 v{E+r}, 0")
    for r in range(4): a(f"v_mov_b32 v{VB[1][1]+r}, 0")
    a("v_lshrrev_b32 v163, 5, v0")
    a("s_mul_i32 s50, s6, 5")
    a("v_add_u32 v164, s50, v163")
    a("v_and_b32 v165, 31, v0")
    a("v_lshlrev_b32 v165, 4, v165")
    def qoff(dst, q):
        a(f"v_lshrrev_b32 v166, 2, v{q}")
        a(f"v_lshlrev_b32 v{dst}, 10, v166")
        a(f"v_bfe_u32 v166, v{q}, 1, 1")
        a(f"v_lshl_add_u32 v{dst}, v166, 9, v{dst}")
        a(f"v_and_b32 v166, 1, v{q}")
        a(f"v_lshl_add_u32 v{dst}, v166, 3, v{dst}")
        a(f"v_add_u32 v{dst}, v{dst}, v165")
    qoff(160, 164)
    a("v_add_u32 v164, 2, v164")
    qoff(161, 164)
    a("s_add_u32 s50, s50, 4")
    a("v_mov_b32 v164, s50")
    qoff(162, 164)
    a("s_lshl_b32 s87, s5, 1")
    a("s_add_u32 s87, s87, s7")
    a("s_mul_i32 s87, s87, 40960")
    a(f"s_add_u32 s87, s87, {OF}")
    tail_setup(a)
    nstamp(a, 3)
    lw, lwp = a.uid("a_gw"), a.uid("a_gp")
    a("s_cmp_lg_u32 s3, 0"); a(f"s_cbranch_scc1 {lw}")
    a(f"v_mov_b32 v148, {NONCE_L}")
    a("ds_read_b32 v149, v148")
    spin_timeout(a, 42)
    a(f"s_mov_b32 s43, {GFL}")
    a("s_waitcnt vmcnt(0) lgkmcnt(0)")
    a("v_readfirstlane_b32 s44, v149")
    lwf = a.uid("a_gf")
    a(f"s_branch {lwf}")
    a.label(lwp)
    a("buffer_load_dwordx4 v[140:143], v3, s[36:39], s43 offen sc1")
    a("buffer_load_dwordx4 v[144:147], v3, s[36:39], s43 offen offset:1024 sc1")
    a("s_waitcnt vmcnt(0)")
    a.label(lwf)
    for r in range(140, 148): a(f"v_xor_b32 v{r}, s44, v{r}")
    for r in range(141, 148): a(f"v_or_b32 v140, v140, v{r}")
    a("v_cmp_ne_u32 vcc, 0, v140")
    a("s_sub_u32 s42, s42, 1")
    a("s_nop 3")
    a(f"s_cbranch_vccz {lw}")
    a("s_cmp_eq_u32 s42, 0"); a(f"s_cbranch_scc1 {lw}")
    a(f"s_sleep {X('GSLEEP', '4')}")
    a(f"s_branch {lwp}")
    a.label(lw)
    a("s_barrier")
    dbg_mark(a, 0, 3, vt=160, nl=2, sreg=78)
    a(f"s_mov_b32 s43, {KMX}")
    a(f"buffer_load_dwordx4 v[140:143], v3, s[36:39], s43 offen sc1")
    a("s_waitcnt vmcnt(0)")
    a("v_max_f32 v140, v140, v142")
    a("v_max_f32 v141, v141, v143")
    for sh in (8, 4, 2, 1):
        a("s_nop 1")
        a(f"v_max_f32_dpp v140, v140, v140 row_ror:{sh} row_mask:0xf bank_mask:0xf")
        a(f"v_max_f32_dpp v141, v141, v141 row_ror:{sh} row_mask:0xf bank_mask:0xf")
    for sw in ("16", "32"):
        a("v_mov_b32 v142, v140"); a("v_mov_b32 v143, v141"); a("s_nop 1")
        a(f"v_permlane{sw}_swap_b32 v140, v142"); a(f"v_permlane{sw}_swap_b32 v141, v143"); a("s_nop 1")
        a("v_max_f32 v140, v140, v142"); a("v_max_f32 v141, v141, v143")
    a("v_add_f32 v140, v140, v141")
    a("v_mul_f32 v136, v136, v140")
    a(f"s_mov_b32 s45, {f2u(THR*THR):#x}")
    a("v_cmp_nle_f32 vcc, v136, s45")
    lfast = a.uid("attn_fast")
    a("s_nop 4")
    a(f"s_cbranch_vccz {lfast}")
    lm = a.uid("attn_maxloop")
    M = 136; TK = 140
    a(f"v_mov_b32 v{M}, 0xff800000")
    a("s_mov_b32 s46, 0")
    a(f"v_lshlrev_b32 v{M+1}, 3, v0")
    a.label(lm)
    a(f"buffer_load_dwordx4 v[{TK}:{TK+3}], v3, s[28:31], s46 offen sc1")
    a(f"buffer_load_dwordx2 v[{TK+4}:{TK+5}], v{M+1}, s[28:31], s46 offen offset:1024 sc1")
    a("s_waitcnt vmcnt(0)")
    a(mfma32(S[1], TK, Q1, None))
    a(mfma8(S[1], TK+4, Q2, S[1]))
    a("s_add_u32 s46, s46, 4096")
    a("s_nop 15")
    for r in range(0, 16, 2): a(f"v_max3_f32 v{M}, v{M}, v{S[1]+r}, v{S[1]+r+1}")
    a(f"s_cmp_lt_u32 s46, {64*4096}")
    a(f"s_cbranch_scc1 {lm}")
    a(f"v_mov_b32 v{M+2}, v{M}"); a("s_nop 1")
    a(f"v_permlane32_swap_b32 v{M}, v{M+2}"); a("s_nop 1")
    a(f"v_max_f32 v{M}, v{M}, v{M+2}")
    a(f"v_xor_b32 v{M}, 0x80000000, v{M}")
    a(f"v_and_b32 v{M+1}, 0xffff0000, v{M}")
    a(f"v_sub_f32 v{M+2}, v{M}, v{M+1}")
    a(f"v_and_b32 v{M+3}, 0xffff0000, v{M+2}")
    a(f"v_sub_f32 v{M+2}, v{M+2}, v{M+3}")
    a(f"v_lshrrev_b32 v{M+2}, 16, v{M+2}")
    a(f"v_lshrrev_b32 v{M+1}, 16, v{M+1}")
    a(f"v_or_b32 v{M+1}, v{M+1}, v{M+3}")
    a("v_cmp_lt_u32 vcc, 31, v0")
    a("s_nop 1")
    a(f"v_cndmask_b32 v{Q2}, v{Q2}, v{M+1}, vcc")
    a(f"v_cndmask_b32 v{Q2+1}, v{Q2+1}, v{M+2}, vcc")
    a.label(lfast)
    a("s_barrier")
    a(f"ds_read_b128 v[{KB[0][0]}:{KB[0][0]+3}], v1 offset:0")
    a(f"ds_read_b64 v[{KB[0][1]}:{KB[0][1]+1}], v2 offset:1024")
    a("s_waitcnt lgkmcnt(0)")
    a(mfma32(S[0], KB[0][0], Q1, None))
    a(mfma8(S[0], KB[0][1], Q2, S[0]))
    a(f"ds_read_b128 v[{KB[1][0]}:{KB[1][0]+3}], v1 offset:{4096}")
    a(f"ds_read_b64 v[{KB[1][1]}:{KB[1][1]+1}], v2 offset:{4096+1024}")
    a(f"ds_read_b128 v[{VB[0][0]}:{VB[0][0]+3}], v1 offset:2048")
    a(f"ds_read_b128 v[{VB[0][1]}:{VB[0][1]+3}], v1 offset:3072")
    a("s_nop 7")
    nstamp(a, 4)
    dbg_mark(a, 0, 4, vt=160, nl=2, sreg=78)
    a("s_mov_b32 s47, 4")
    lp = a.uid("attn_loop")
    body = Asm()
    WOR = 104
    for t in range(16):
        if t % 4 == 0 and t > 0: body("s_barrier")
        if t == 12:
            lw = body.uid("nowo")
            body("s_cmp_lg_u32 s47, 1"); body(f"s_cbranch_scc1 {lw}")
            tail_wo_loads(body, WOR)
            body.label(lw)
        attn_tile(body, t)
    a.label(lp)
    a.lines += body.lines
    a("s_sub_u32 s47, s47, 1")
    a("s_cmp_eq_u32 s47, 0")
    lout = a.uid("attn_out")
    a(f"s_cbranch_scc1 {lout}")
    a("s_barrier")
    a(f"s_branch {lp}")
    a.label(lout)
    nstamp(a, 5)
    hstamp(a, "T", 1)
    dbg_mark(a, 0, 5, vt=160, nl=2, sreg=78)
    a(f"v_cvt_pk_bf16_f32 v{P+6}, v{E+4}, v{E+5}")
    a(f"v_cvt_pk_bf16_f32 v{P+7}, v{E+6}, v{E+7}")
    a("s_waitcnt lgkmcnt(0)")
    a("s_nop 0")
    a(mfma32(O, VB[1][1], P + 4, O))
    a("s_nop 11")
    a(f"v_mov_b32 v152, v{O+8}")
    a(f"v_mov_b32 v153, v{O+8}")
    a("s_nop 1")
    a("v_permlane32_swap_b32 v152, v153")
    a("s_nop 1")
    a("v_rcp_f32 v153, v153")
    a("s_nop 0")
    for r in range(12): a(f"v_mul_f32 v{O+r}, v{O+r}, v153")
    for r in range(6): a(f"v_cvt_pk_bf16_f32 v{154+r}, v{O+2*r}, v{O+2*r+1}")
    a("buffer_store_dwordx2 v[154:155], v160, s[36:39], s87 offen" + ST)
    a("buffer_store_dwordx2 v[156:157], v161, s[36:39], s87 offen" + ST)
    a("v_cmp_gt_u32 vcc, 32, v0")
    a("s_and_saveexec_b64 s[50:51], vcc")
    a("buffer_store_dwordx2 v[158:159], v162, s[36:39], s87 offen" + ST)
    a("s_mov_b64 exec, s[50:51]")
    hstamp(a, "T", 2)
    a(f"v_mov_b32 v144, {OCNT_L}"); a("v_mov_b32 v145, 1")
    a(f"v_mov_b32 v146, {NONCE_L}"); a("ds_read_b32 v147, v146")
    a("s_waitcnt vmcnt(0)")
    hstamp(a, "T", 3)
    a("s_mov_b64 exec, 1")
    a("ds_add_u32 v144, v145")
    a("s_mov_b64 exec, -1")
    lw, lc, lp = a.uid("t_w"), a.uid("t_c"), a.uid("t_p")
    a("s_cmp_lg_u32 s3, 0"); a(f"s_cbranch_scc1 {lw}")
    a("s_lshl_b32 s48, s5, 7"); a(f"s_add_u32 s48, s48, {OFL}")
    a("s_lshl_b32 s49, s4, 2"); a("s_add_u32 s49, s49, s48")
    a("v_and_b32 v148, 7, v0"); a("v_lshlrev_b32 v148, 2, v148"); a("v_mov_b32 v149, 0")
    a("s_mov_b32 s43, 0x100000")
    a("s_waitcnt lgkmcnt(0)")
    a("v_readfirstlane_b32 s44, v147")
    a.label(lc)
    a("ds_read_b32 v150, v144")
    a("s_waitcnt lgkmcnt(0)")
    a("v_readfirstlane_b32 s45, v150")
    a("s_sub_u32 s43, s43, 1")
    a("s_cmp_eq_u32 s43, 0"); a(f"s_cbranch_scc1 {lw}")
    a("s_cmp_lt_u32 s45, 8"); a(f"s_cbranch_scc1 {lc}")
    a("v_mov_b32 v150, s44")
    a("s_mov_b64 exec, 1")
    a("buffer_store_dword v150, v149, s[36:39], s49 offen sc1")
    a("s_mov_b64 exec, -1")
    a("s_mov_b32 s43, 0x8000")
    a.label(lp)
    a("buffer_load_dword v150, v148, s[36:39], s48 offen sc1")
    a("s_waitcnt vmcnt(0)")
    a("v_cmp_ne_u32 vcc, s44, v150")
    a("s_sub_u32 s43, s43, 1")
    a("s_nop 3")
    a(f"s_cbranch_vccz {lw}")
    a("s_cmp_eq_u32 s43, 0"); a(f"s_cbranch_scc1 {lw}")
    a(f"s_branch {lp}")
    a.label(lw)
    a("s_waitcnt lgkmcnt(0)")
    a("s_barrier")
    hstamp(a, "T", 4)
    tail_gemm(a, WOR, S[0], 64)
    dbg_mark(a, 0, 6, vt=160, nl=1, sreg=78)
    nstamp(a, 6); hstamp(a, "T", 6); stamp_rt(a, 7)
    stamp_store(a, 8)
    a("s_endpgm")
    return check_hazards(body.lines + body.lines, name + ":loop")

def tr_addr(a, dst, base_s, hm, delta):
    a(f"v_lshrrev_b32 v{dst}, 5, v0"); a(f"v_mul_lo_u32 v{dst}, v{dst}, {hm}")
    a(f"v_and_b32 v{dst+1}, 15, v0"); a(f"v_lshrrev_b32 v{dst+2}, 2, v{dst+1}"); a(f"v_add_u32 v{dst}, v{dst}, v{dst+2}")
    a(f"v_lshlrev_b32 v{dst}, 7, v{dst}")
    a(f"v_bfe_u32 v{dst+2}, v0, 4, 1"); a(f"v_lshl_add_u32 v{dst}, v{dst+2}, 5, v{dst}")
    a(f"v_and_b32 v{dst+2}, 3, v{dst+1}"); a(f"v_lshl_add_u32 v{dst}, v{dst+2}, 3, v{dst}")
    a(f"v_add_u32 v{dst}, {base_s}, v{dst}")
    a(f"v_add_u32 v{dst+1}, {delta}, v{dst}")

def gen_ffn_head(a, name):
    if not X("PRIOX"): a("s_setprio 3")
    srd(a, 28, 20, KV_SZ, KV)
    srd(a, 36, 20, YF + YF_SZ)
    srd(a, 24, 16, 640*1728*2)
    a("v_mov_b32 v8, v3")
    a("s_mov_b32 s48, 0"); a("s_mov_b32 s49, 0")
    lkvw, lcommon = a.uid("h_kvw"), a.uid("h_common")
    a("s_cmp_lt_u32 s6, 2"); a(f"s_cbranch_scc1 {lkvw}")
    srd(a, 32, 8, 640*640*2)
    l3, lq = a.uid("h_w3"), a.uid("h_wq")
    a("s_cmp_eq_u32 s6, 3"); a(f"s_cbranch_scc1 {l3}")
    lwo, lgo = a.uid("h_jo"), a.uid("h_jg")
    a("s_cmp_ge_u32 s2, 216"); a(f"s_cbranch_scc1 {lwo}")
    srd(a, 24, 16, 640*1728*2)
    a(f"s_mul_hi_u32 s54, s2, {(1 << 32)//27 + 1}")
    a("s_mul_i32 s55, s54, 27"); a("s_sub_u32 s55, s2, s55")
    a("s_mov_b32 s48, 3456")
    a(f"s_mul_i32 s49, s54, {80*3456}"); a("s_lshl_b32 s43, s55, 7"); a("s_add_u32 s49, s49, s43")
    a(f"s_mul_i32 s50, s55, {2*40*1024}"); a("s_mul_i32 s43, s54, 5120"); a("s_add_u32 s50, s50, s43"); a(f"s_add_u32 s50, s50, {W1F}")
    a(f"s_branch {lgo}")
    a.label(lwo)
    srd(a, 24, 14, 640*640*2)
    a("s_sub_u32 s42, s2, 216")
    a(f"s_mul_hi_u32 s54, s42, {(1 << 32)//10 + 1}")
    a("s_mul_i32 s55, s54, 10"); a("s_sub_u32 s55, s42, s55")
    a("s_mov_b32 s48, 1280")
    a(f"s_mul_i32 s49, s54, {80*1280}"); a("s_lshl_b32 s43, s55, 7"); a("s_add_u32 s49, s49, s43")
    a(f"s_mul_i32 s50, s55, {2*40*1024}"); a("s_mul_i32 s43, s54, 5120"); a("s_add_u32 s50, s50, s43"); a(f"s_add_u32 s50, s50, {WOF}")
    a.label(lgo)
    a("v_lshrrev_b32 v4, 3, v0"); a("v_mul_lo_u32 v4, v4, s48")
    a("v_and_b32 v5, 7, v0"); a("v_lshl_add_u32 v4, v5, 4, v4")
    a("v_mov_b32 v8, v4")
    a(f"s_branch {lq}")
    a.label(l3)
    if X("TLBW", "0") == "1":
        a("v_lshlrev_b32 v4, 21, v0")
        a("s_mov_b64 exec, 0xffff")
        a("buffer_load_dword v162, v4, s[36:39], 0 offen")
        a("s_mov_b64 exec, 3")
        srd(a, 24, 88, X_SZ)
        a("buffer_load_dword v163, v4, s[24:27], 0 offen")
        srd(a, 24, 18, 1728*640*2)
        a("buffer_load_dword v164, v4, s[24:27], 0 offen")
        srd(a, 24, 14, 640*640*2)
        a("buffer_load_dword v165, v4, s[24:27], 0 offen")
        srd(a, 24, 16, 640*1728*2)
        a("buffer_load_dword v166, v4, s[24:27], 0 offen")
        a("s_mov_b64 exec, -1")
    if X("CODEPF", "0") == "1":
        lcp = a.uid("h_nocp")
        a("s_cmp_ge_u32 s2, 8"); a(f"s_cbranch_scc1 {lcp}")
        a("s_getpc_b64 s[54:55]")
        a.label(f"{name}_pc0")
        a(f"s_sub_u32 s54, s54, {name}_pc0-{name}"); a("s_subb_u32 s55, s55, 0")
        a("v_lshlrev_b32 v4, 7, v0")
        for i in range(CODE_PF_KB // 8):
            a(f"global_load_dword v{160+i}, v4, s[54:55]")
            a("s_add_u32 s54, s54, 8192"); a("s_addc_u32 s55, s55, 0")
        a.label(lcp)
    a("s_cmp_lg_u32 s2, 0"); a(f"s_cbranch_scc1 {lq}")
    a("s_memrealtime s[54:55]")
    a("s_waitcnt lgkmcnt(0)")
    a("s_or_b32 s54, s54, 1")
    a("v_mov_b32 v4, 0"); a("v_mov_b32 v5, s54")
    a("s_mov_b64 exec, 1")
    a("global_store_dword v4, v5, s[90:91] sc1")
    a("s_mov_b64 exec, -1")
    a.label(lq)
    WQ = 148
    a("s_sub_u32 s56, s6, 2")
    a(f"v_mul_u32_u24 v4, 26, v0"); a("v_lshrrev_b32 v4, 8, v4")
    for l_ in range(64): assert (l_*26) >> 8 == l_//10
    a("v_mul_u32_u24 v5, 10, v4"); a("v_sub_u32 v5, v0, v5")
    a("v_mul_u32_u24 v4, 1280, v4")
    a(f"v_lshl_add_u32 v{WQ}, v5, 4, v4")
    a("s_mul_i32 s57, s4, 160")
    a(f"s_mul_i32 s58, s56, {320*1280}"); a("s_add_u32 s58, s58, s57")
    a("s_mul_i32 s59, s56, 10240")
    a("s_mov_b32 s76, -1"); a("s_mov_b32 s77, 0x0fffffff")
    a("s_mov_b32 s78, -1"); a("s_mov_b32 s79, 0xff")
    NWQ = 11
    def wq_stage(st):
        a(f"s_add_u32 s41, s58, {st*64*1280}")
        a("s_mov_b64 exec, s[76:77]")
        for i in range(NWQ):
            if i == NWQ - 1: a("s_mov_b64 exec, s[78:79]")
            a(f"s_add_u32 m0, s59, {SB[STAGE_BUF[st]] + i*960}")
            a("s_nop 0")
            a(f"buffer_load_dwordx4 v{WQ}, s[32:35], s41 offen lds")
            if i < NWQ - 1: a("s_add_u32 s41, s41, 7680")
        a("s_mov_b64 exec, -1")
    if X("TOUCH0", "0") == "1":
        lt3, ltd = a.uid("h_t3"), a.uid("h_td")
        a("s_cmp_eq_u32 s6, 3"); a(f"s_cbranch_scc1 {lt3}")
        a("v_mul_lo_u32 v4, v0, s48")
        a("buffer_load_dword v160, v4, s[24:27], s49 offen")
        a("s_lshl_b32 s42, s48, 6"); a("s_add_u32 s42, s42, s49")
        a("s_mov_b64 exec, 0xffff")
        a("buffer_load_dword v161, v4, s[24:27], s42 offen")
        a("s_mov_b64 exec, -1")
        a(f"s_branch {ltd}")
        a.label(lt3)
        a("s_lshr_b32 s42, s5, 3"); a("s_and_b32 s43, s42, 1"); a("s_lshl_b32 s43, s43, 6")
        a("s_lshr_b32 s42, s42, 1"); a("s_mul_i32 s42, s42, 320"); a("s_add_u32 s42, s42, s43")
        a("v_add_u32 v4, s42, v0"); a("v_mul_u32_u24 v4, 1280, v4")
        a("buffer_load_dword v160, v4, s[32:35], s57 offen")
        a("buffer_load_dword v161, v4, s[32:35], s57 offen offset:128")
        a.label(ltd)
    if X("EARLYF"):
        wq_stage(0)
        a("s_barrier")
        wq_stage(1)
    else:
        if X("B0", "1") == "1": a("s_barrier")
        wq_stage(0); wq_stage(1)
    if X("PRIOX"): a("s_setprio 3")
    lw3, lbln = a.uid("h_w3b"), a.uid("h_bln")
    a("s_cmp_eq_u32 s6, 3"); a(f"s_cbranch_scc1 {lw3}")
    a("s_lshl_b32 s43, s48, 3")
    for i in range(10):
        a(f"s_mov_b32 m0, {J3L + i*1024}")
        a("s_nop 0")
        a("buffer_load_dwordx4 v8, s[24:27], s49 offen lds")
        a("s_add_u32 s49, s49, s43")
    j3b_params(a)
    tr_addr(a, 5, J3L, 8, 512)
    hstamp(a, "F", 2)
    a("s_waitcnt vmcnt(21)")
    hstamp(a, "F", 3)
    hstamp(a, "L", 2)
    a("s_barrier")
    hstamp(a, "L", 3)
    hstamp(a, "F", 4)
    a("s_waitcnt vmcnt(0)")
    hstamp(a, "F", 5)
    for nt in range(2):
        for kk in range(5):
            r = 16 + 4*(nt*5+kk)
            a(f"ds_read_b64_tr_b16 v[{r}:{r+1}], v5 offset:{nt*64 + kk*2048}")
            a(f"ds_read_b64_tr_b16 v[{r+2}:{r+3}], v6 offset:{nt*64 + kk*2048}")
        a("s_waitcnt lgkmcnt(0)")
        for kk in range(5):
            r = 16 + 4*(nt*5+kk)
            a(f"s_add_u32 s42, s50, {kk*1024 + nt*40960}")
            a(f"buffer_store_dwordx4 v[{r}:{r+3}], v3, s[36:39], s42 offen sc1")
    a(f"s_branch {lbln}")
    a.label(lw3)
    j3b_params(a)
    hstamp(a, "K", 2)
    a("s_waitcnt vmcnt(11)")
    hstamp(a, "L", 2)
    a("s_barrier")
    hstamp(a, "L", 3)
    lp, lpd = a.uid("h_np"), a.uid("h_npd")
    spin_timeout(a, 42)
    a("v_mov_b32 v4, 0")
    a.label(lp)
    a("global_load_dword v5, v4, s[90:91] sc1")
    a("s_waitcnt vmcnt(0)")
    a("v_readfirstlane_b32 s43, v5")
    a("s_sub_u32 s42, s42, 1")
    a("s_cmp_lg_u32 s43, 0"); a(f"s_cbranch_scc1 {lpd}")
    a("s_cmp_eq_u32 s42, 0"); a(f"s_cbranch_scc1 {lpd}")
    a("s_sleep 1")
    a(f"s_branch {lp}")
    a.label(lpd)
    hstamp(a, "K", 3)
    a(f"v_mov_b32 v4, {NONCE_L}")
    a("ds_write_b32 v4, v5")
    a("s_waitcnt lgkmcnt(0)")
    hstamp(a, "K", 4)
    a.label(lbln)
    hstamp(a, "F", 6)
    a("s_barrier")
    wq_stage(2); wq_stage(3)
    a(f"v_mov_b32 v4, {NONCE_L}")
    a("ds_read_b32 v5, v4")
    a("s_waitcnt lgkmcnt(0)")
    a(f"v_readfirstlane_b32 s{NONCE}, v5")
    a("s_waitcnt vmcnt(11)")
    a("s_barrier")
    wq_stage(4)
    lj2o, lj2g = a.uid("h_j2so"), a.uid("h_j2sg")
    a("s_cmp_eq_u32 s99, 512"); a(f"s_cbranch_scc1 {lj2o}")
    srd(a, 24, 18, 1728*640*2)
    a(f"s_branch {lj2g}")
    a.label(lj2o)
    srd(a, 24, 14, 640*640*2)
    a.label(lj2g)
    a("v_lshrrev_b32 v4, 3, v0"); a("v_mul_u32_u24 v4, 1280, v4")
    a("v_and_b32 v5, 7, v0"); a("v_lshl_add_u32 v4, v5, 4, v4")
    a("s_mul_i32 s48, s56, 61440"); a("s_add_u32 s48, s48, s92")
    a("s_mul_i32 s49, s56, 6144")
    for i in range(6):
        a(f"s_add_u32 m0, s49, {J3L + i*1024}")
        a("s_nop 0")
        a("buffer_load_dwordx4 v4, s[24:27], s48 offen lds")
        if i < 5: a("s_add_u32 s48, s48, 10240")
    lnf, lw2 = a.uid("h_nf"), a.uid("h_w2f")
    ldone = a.uid("h_done")
    a("v_mov_b32 v4, 0"); a(f"v_mov_b32 v5, s{NONCE}")
    a("s_cmp_eq_u32 s6, 3"); a(f"s_cbranch_scc1 {lnf}")
    a("s_lshl_b32 s42, s2, 2"); a(f"s_add_u32 s42, s42, {GFL + 1024}")
    a("s_mov_b64 exec, 1")
    a("buffer_store_dword v5, v4, s[36:39], s42 offen sc1")
    a("s_mov_b64 exec, -1")
    a("s_waitcnt vmcnt(18)"); a("s_barrier")
    a("s_waitcnt vmcnt(1)"); a("s_barrier")
    a(f"s_branch {ldone}")
    a.label(lnf)
    a("s_waitcnt vmcnt(17)"); a("s_barrier")
    a("s_lshl_b32 s42, s2, 2"); a(f"s_add_u32 s42, s42, {GFL}")
    a("s_mov_b64 exec, 1")
    a("buffer_store_dword v5, v4, s[36:39], s42 offen sc1")
    a("s_mov_b64 exec, -1")
    a("s_waitcnt vmcnt(1)"); a("s_barrier")
    a(f"s_branch {ldone}")
    a.label(lkvw)
    lv, lkv = a.uid("h_isv"), a.uid("h_kv")
    a("s_and_b32 s7, s4, 1")
    a("s_cmp_eq_u32 s7, 1"); a(f"s_cbranch_scc1 {lv}")
    srd(a, 44, 10, 25600)
    a(f"s_branch {lkv}")
    a.label(lv)
    srd(a, 44, 12, 25600)
    a.label(lkv)
    if X("TOUCH0", "0") == "1":
        lt0 = a.uid("h_t0")
        a("s_cmp_lg_u32 s6, 0"); a(f"s_cbranch_scc1 {lt0}")
        a("s_lshr_b32 s42, s4, 1"); a("s_lshr_b32 s43, s5, 3"); a("s_lshl_b32 s43, s43, 2"); a("s_add_u32 s42, s42, s43")
        a("s_mul_i32 s42, s42, 1664")
        a("v_lshlrev_b32 v4, 7, v0")
        a("s_mov_b64 exec, 0x1fff")
        a("buffer_load_dword v160, v4, s[44:47], s42 offen")
        a("s_mov_b64 exec, -1")
        a.label(lt0)
    if X("B0", "1") == "1" and not X("EARLYF"): a("s_barrier")
    a("s_lshr_b32 s42, s2, 3"); a("s_and_b32 s42, s42, 31"); a("s_mul_i32 s42, s42, 43"); a("s_lshr_b32 s42, s42, 7")
    a("s_lshl_b32 s40, s6, 10")
    for j in range(12):
        a(f"s_add_u32 s43, s42, {j}"); a("s_sub_u32 s41, s43, 12"); a("s_cmp_ge_u32 s43, 12"); a("s_cselect_b32 s43, s41, s43")
        a("s_lshl_b32 s43, s43, 11"); a("s_add_u32 s41, s43, s40")
        a(f"s_add_u32 m0, s41, {WKVL}")
        a("s_nop 0")
        a("buffer_load_dwordx4 v3, s[44:47], s41 offen lds")
    l24 = a.uid("h_no24")
    a("s_cmp_lg_u32 s6, 0"); a(f"s_cbranch_scc1 {l24}")
    a(f"s_mov_b32 m0, {WKVL + 24576}")
    a("s_movk_i32 s41, 24576")
    a("buffer_load_dwordx4 v3, s[44:47], s41 offen lds")
    a.label(l24)
    if X("EARLYF"): a("s_barrier")
    if X("PRIOX"): a("s_setprio 3")
    j3b_params(a)
    XF, WF, D = 4, 84, 164
    a("s_lshr_b32 s48, s4, 1")
    a("v_lshrrev_b32 v4, 4, v0")
    a("v_and_b32 v5, 15, v0")
    a("s_and_b32 s49, s48, 1"); a("s_lshl_b32 s50, s49, 4")
    a("v_add_u32 v6, s50, v5")
    a(f"v_mul_u32_u24 v1, {XC}, v4"); a("v_lshl_add_u32 v1, v6, 4, v1")
    a("s_lshr_b32 s51, s48, 1"); a(f"s_mul_i32 s51, s51, {XT}")
    a("v_add_u32 v1, s51, v1")
    a("v_lshrrev_b32 v2, 2, v5"); a("v_lshl_add_u32 v2, v4, 3, v2"); a("v_mul_u32_u24 v2, 40, v2")
    a("v_and_b32 v7, 3, v5"); a("v_lshl_add_u32 v2, v7, 3, v2")
    a("s_lshl_b32 s51, s6, 5"); a(f"s_add_u32 s51, s51, {WKVL}")
    a("v_add_u32 v2, s51, v2")
    a("s_lshl_b32 s52, s5, 1"); a("s_lshr_b32 s53, s48, 1"); a("s_add_u32 s52, s52, s53")
    a("s_lshl_b32 s52, s52, 12"); a(f"s_add_u32 s52, s52, {KV}")
    a("s_lshl_b32 s53, s5, 2"); a("s_add_u32 s53, s53, s48")
    hstamp(a, "K", 2)
    a("s_waitcnt vmcnt(0)")
    hstamp(a, "K", 3)
    rstamp(a, 2)
    hstamp(a, "L", 2)
    a("s_barrier")
    hstamp(a, "L", 3)
    hstamp(a, "K", 4)
    rstamp(a, 3)
    lvm, lmd = a.uid("h_vm"), a.uid("h_md")
    for ks in range(20):
        a(f"ds_read_b128 v[{XF+4*ks}:{XF+4*ks+3}], v1 offset:{ks*2*XKS}")
        a(f"ds_read_b64_tr_b16 v[{WF+4*ks}:{WF+4*ks+1}], v2 offset:{ks*1280}")
        a(f"ds_read_b64_tr_b16 v[{WF+4*ks+2}:{WF+4*ks+3}], v2 offset:{ks*1280+160}")
        if ks % 4 == 3: a("s_waitcnt lgkmcnt(3)")
    a("s_waitcnt lgkmcnt(0)")
    hstamp(a, "K", 5)
    a("s_barrier")
    hstamp(a, "K", 6)
    a(f"v_mov_b32 v1, {NONCE_L}")
    a("ds_read_b32 v2, v1")
    def kvmm(isv):
        for k in range(20):
            c = "0" if k == 0 else f"v[{D}:{D+3}]"
            x, w = f"v[{XF+4*k}:{XF+4*k+3}]", f"v[{WF+4*k}:{WF+4*k+3}]"
            a(f"v_mfma_f32_16x16x32_bf16 v[{D}:{D+3}], {x if isv else w}, {w if isv else x}, {c}")
    a("s_cmp_eq_u32 s7, 1"); a(f"s_cbranch_scc1 {lvm}")
    kvmm(False)
    a(f"s_branch {lmd}")
    a.label(lvm)
    kvmm(True)
    a.label(lmd)
    a("s_waitcnt lgkmcnt(0)")
    a(f"v_readfirstlane_b32 s{NONCE}, v2")
    a("v_lshrrev_b32 v88, 4, v0")
    a("v_and_b32 v89, 15, v0")
    a("v_add_u32 v90, s50, v89")
    a("v_and_b32 v93, 1, v88")
    a("v_lshrrev_b32 v94, 1, v88")
    a("s_nop 7")
    for r in range(4): a(f"v_mul_f32 v{D+r}, {f2u(LN2):#x}, v{D+r}")
    a(f"v_cvt_pk_bf16_f32 v96, v{D}, v{D+1}")
    a(f"v_cvt_pk_bf16_f32 v97, v{D+2}, v{D+3}")
    l0, l1, l2, l3v, lst = (a.uid("h_ep") for _ in range(5))
    a("s_lshl_b32 s54, s7, 1"); a("s_add_u32 s54, s54, s6")
    a("s_cmp_eq_u32 s54, 0"); a(f"s_cbranch_scc1 {l0}")
    a("s_cmp_eq_u32 s54, 1"); a(f"s_cbranch_scc1 {l1}")
    a("s_cmp_eq_u32 s54, 2"); a(f"s_cbranch_scc1 {l2}")
    a(f"s_branch {l3v}")
    def knorm(slot):
        a(f"v_mul_f32 v98, v{D}, v{D}")
        for r in range(1, 4): a(f"v_fmac_f32 v98, v{D+r}, v{D+r}")
        if slot == 1:
            a("v_cmp_eq_u32 vcc, 0, v88")
            a("s_nop 1")
            a("v_cndmask_b32 v98, 0, v98, vcc")
        for sw in ("32", "16"):
            a("v_mov_b32 v99, v98"); a("s_nop 1")
            a(f"v_permlane{sw}_swap_b32 v98, v99"); a("s_nop 1")
            a("v_add_f32 v98, v98, v99")
        for sh in (8, 4, 2, 1):
            a("s_nop 1")
            a(f"v_max_f32_dpp v98, v98, v98 row_ror:{sh} row_mask:0xf bank_mask:0xf")
        a("s_lshl_b32 s55, s53, 3"); a(f"s_add_u32 s55, s55, {KMX + 4*slot}")
        a("v_mov_b32 v99, 0")
        a("s_mov_b64 exec, 1")
        a("buffer_store_dword v98, v99, s[36:39], s55 offen sc1")
        a("s_mov_b64 exec, -1")
    a.label(l0)
    a("v_lshl_add_u32 v95, v93, 5, v90"); a("v_lshlrev_b32 v95, 4, v95"); a("v_lshl_add_u32 v95, v94, 3, v95")
    a("buffer_store_dwordx2 v[96:97], v95, s[36:39], s52 offen sc1")
    knorm(0)
    a(f"s_branch {lst}")
    a.label(l1)
    a("v_cmp_eq_u32 vcc, 1, v88")
    a("v_mov_b32 v98, 0x3f803f80"); a("v_mov_b32 v99, 0x00003f80")
    a("v_cndmask_b32 v96, v96, v98, vcc"); a("v_cndmask_b32 v97, v97, v99, vcc")
    a("v_lshl_add_u32 v95, v88, 5, v90"); a("v_lshlrev_b32 v95, 3, v95"); a("v_add_u32 v95, 1024, v95")
    a("v_cmp_gt_u32 vcc, 2, v88")
    a("s_and_saveexec_b64 s[54:55], vcc")
    a("buffer_store_dwordx2 v[96:97], v95, s[36:39], s52 offen sc1")
    a("s_mov_b64 exec, s[54:55]")
    knorm(1)
    a(f"s_branch {lst}")
    a.label(l3v)
    a("v_cmp_gt_u32 vcc, 4, v89"); a("s_nop 1")
    a("v_cndmask_b32 v96, 0, v96, vcc"); a("v_cndmask_b32 v97, 0, v97, vcc")
    a("v_cmp_eq_u32 vcc, 4, v89"); a("v_mov_b32 v98, 0x3f803f80"); a("s_nop 0")
    a("v_cndmask_b32 v96, v96, v98, vcc"); a("v_cndmask_b32 v97, v97, v98, vcc")
    a("v_add_u32 v89, 16, v89")
    a.label(l2)
    a("v_lshl_add_u32 v95, v93, 5, v89"); a("v_lshlrev_b32 v95, 4, v95"); a("v_lshl_add_u32 v95, v94, 3, v95")
    a("s_lshl_b32 s55, s49, 10"); a("s_add_u32 s55, s55, s52"); a("s_add_u32 s55, s55, 2048")
    a("buffer_store_dwordx2 v[96:97], v95, s[36:39], s55 offen sc1")
    a.label(lst)
    a("s_barrier")
    rstamp(a, 4)
    a("s_waitcnt vmcnt(0)")
    rstamp(a, 5)
    a("s_barrier")
    a("s_barrier")
    a.label(ldone)
    a("s_setprio 0")

def gen_main(name="main_kernel", ffn=True, prio_attn=None, prio_ffn=None):
    a = Asm()
    a(f".globl {name}\n.p2align 8\n.type {name},@function")
    a.label(name)
    a("s_cmp_ge_u32 s2, 256")
    a(f"s_cbranch_scc1 {name}_end")
    stamp_rt(a, 0); stamp(a, 1)
    dbg_mark(a, 0, 0, first=True, vt=160, nl=2, sreg=78)
    a("s_load_dwordx2 s[22:23], s[0:1], 0")
    a("s_load_dwordx8 s[8:15], s[0:1], 8")
    a("s_load_dwordx4 s[16:19], s[0:1], 48")
    a("s_load_dwordx2 s[90:91], s[0:1], 72")
    a("s_load_dwordx2 s[20:21], s[0:1], 80")
    a("s_load_dwordx2 s[88:89], s[0:1], 64")
    a("v_lshrrev_b32 v1, 6, v0")
    a("v_and_b32 v0, 63, v0")
    a("v_readfirstlane_b32 s3, v1")
    a("v_lshlrev_b32 v3, 4, v0")
    a("s_lshr_b32 s4, s2, 3"); a("s_and_b32 s4, s4, 7")
    a("s_lshr_b32 s5, s2, 6"); a("s_lshl_b32 s5, s5, 3"); a("s_and_b32 s6, s2, 7"); a("s_add_u32 s5, s5, s6")
    a("s_waitcnt lgkmcnt(0)")
    lffn = f"{name}_ffn"
    a("s_cmp_ge_u32 s3, 8")
    a(f"s_cbranch_scc1 {lffn}")
    errs = gen_attn(a, name, prio_attn)
    a.label(lffn)
    a("s_sub_u32 s6, s3, 8")
    gen_ffn_head(a, name)
    import kfffn
    errs += kfffn.gen_ffn_main(a, name, prio_ffn, ffn)
    a.label(f"{name}_end")
    a("s_endpgm")
    errs += check_hazards(a.lines, name)
    return a.text(), kd(name, 168, 102), errs

def kernels(which):
    k2.PROF = bool(os.environ.get("PROF"))
    KN = "parallel_sum__grouped_kv_mqa__dense_activation_silu__prompt_kernel"
    t, d, e = gen_main(KN, ffn=(which != "attn"), prio_attn=X("PRIOA"), prio_ffn=X("PRIOF"))
    return [(KN, t, d, e, 256, 768, LDS_MAIN)]
```
